```python
import torch

def _softmax(x, axis=-1):
    return torch.softmax(x, dim=axis)
def _gelu(x):
    return torch.nn.functional.gelu(x, approximate="tanh")
def _silu(x):
    return torch.nn.functional.silu(x)
def _sigmoid(x):
    return torch.sigmoid(x)
def _layernorm(x, axis=-1, eps=1e-5):
    m = x.mean(dim=axis, keepdim=True)
    v = x.var(dim=axis, keepdim=True, unbiased=False)
    return (x - m) / torch.sqrt(v + eps)
def _scatter_add(tgt, idx, src, axis=0):
    return tgt.clone().index_add_(axis, idx, src)
def _segment_sum(src, seg, n):
    out = torch.zeros((n,) + src.shape[1:], dtype=src.dtype)
    return out.index_add_(0, seg, src)
def _pad(x, pw):
    flat = tuple(v for pair in reversed(pw) for v in pair)
    return torch.nn.functional.pad(x, flat)

kernel_name = 'recurrent_scan__sliding_local_dilated__dense_activation_relu__prompt'

def setup_inputs():

    _w = (lambda a: (lambda t: t.to(torch.bfloat16) if t.is_floating_point() else t)(torch.as_tensor(a)))
    def _A_setup():
        B, S, D = 1, 2048, 576
        return {
            "x": _w((lambda *s: torch.randn(*s, dtype=torch.bfloat16) * 0.05)(B, S, D)),
            "wqkv": _w((lambda *s: torch.randn(*s, dtype=torch.bfloat16) * 0.05)(D, 3 * D)),
            "wo": _w((lambda *s: torch.randn(*s, dtype=torch.bfloat16) * 0.05)(D, D)),
        }
    _A_in = _A_setup()

    def _B_setup():
        B, S, D, Dff = 1, 2048, 576, 4608
        return {
            "x": _w((lambda *s: torch.randn(*s, dtype=torch.bfloat16) * 0.05)(B, S, D)),
            "w1": _w((lambda *s: torch.randn(*s, dtype=torch.bfloat16) * 0.05)(D, Dff)),
            "w2": _w((lambda *s: torch.randn(*s, dtype=torch.bfloat16) * 0.05)(Dff, D)),
        }
    _B_in = _B_setup()

    return {
        "A_x": _A_in["x"],
        "A_wqkv": _A_in["wqkv"],
        "A_wo": _A_in["wo"],
        "B_x": _B_in["x"],
        "B_w1": _B_in["w1"],
        "B_w2": _B_in["w2"],
    }

def reference(A_x, A_wqkv, A_wo, B_x, B_w1, B_w2):
    def _A_ref(x, wqkv, wo):
        B, S, D = x.shape
        H = 32; Dh = D // H
        W, dil = 8, 2
        qkv = (lambda x, *d: x.permute(*d))((x @ wqkv).reshape(B, S, 3, H, Dh), 2, 0, 3, 1, 4)
        q, k, v = qkv[0], qkv[1], qkv[2]
        scale = Dh ** -0.5
        pos = torch.arange(S)
        off = torch.arange(W) * dil
        idx = pos[:, None] - off[None, :]
        mask = idx >= 0
        idx_c = torch.where(mask, idx, 0).reshape(-1)
        kg = k[:, :, idx_c, :].reshape(B, H, S, W, Dh)
        vg = v[:, :, idx_c, :].reshape(B, H, S, W, Dh)
        logits = torch.einsum("bhsd,bhswd->bhsw", q, kg) * scale
        logits = torch.where(mask[None, None, :, :], logits, -1e9)
        attn = _softmax(logits, axis=-1)
        o = torch.einsum("bhsw,bhswd->bhsd", attn, vg)
        return (lambda x, *d: x.permute(*d))(o, 0, 2, 1, 3).reshape(B, S, D) @ wo

    def _B_ref(x, w1, w2):
        h = torch.einsum("bsd,df->bsf", x, w1)
        zero = torch.zeros_like(h)
        h = torch.maximum(h, zero)
        return torch.einsum("bsf,fd->bsd", h, w2)

    x = A_x
    xn = _layernorm(x, axis=-1)
    s = _A_ref(xn, A_wqkv, A_wo)
    g = _silu(_B_ref(xn, B_w1, B_w2))
    return x + s * g
```

```python
import sys
NAME = "recurrent_scan__sliding_local_dilated__dense_activation_relu__prompt"
OUT = "cdna_kernels/%s.s" % NAME

H_OFF = 0
H_BYTES = 128 * 144 * 1024
O_OFF = H_BYTES
O_BYTES = 2048 * 1152
P_OFF = O_OFF + O_BYTES
SLAB = 128 * 36 * 1024
L = []
def e(s): L.append("    " + s)
def lab(s): L.append(s + ":")
def v(i, n=1): return "v%d" % i if n == 1 else "v[%d:%d]" % (i, i + n - 1)
def s(i, n=1): return "s%d" % i if n == 1 else "s[%d:%d]" % (i, i + n - 1)
def nop(n): e("s_nop %d" % (n - 1))
def srd(d, lo, nbytes, add=0):
    if add:
        e("s_add_u32 %s, %s, 0x%x" % (s(d), s(lo), add))
        e("s_addc_u32 %s, %s, 0" % (s(d + 1), s(lo + 1)))
    else:
        e("s_mov_b32 %s, %s" % (s(d), s(lo)))
        e("s_mov_b32 %s, %s" % (s(d + 1), s(lo + 1)))
    e("s_mov_b32 %s, 0x%x" % (s(d + 2), nbytes))
    e("s_mov_b32 %s, 0x00020000" % s(d + 3))
def mfma(d, a, b): e("v_mfma_f32_16x16x32_bf16 %s, %s, %s, %s" % (v(d, 4), v(a, 4), v(b, 4), v(d, 4)))
def kstart(name):
    L.append(".globl %s" % name); L.append(".p2align 8"); L.append(".type %s,@function" % name); lab(name)
def perm_pi(dst, src, t0, t1):
    e("v_and_b32 %s, 35, %s" % (v(dst), v(src)))
    e("v_bfe_u32 %s, %s, 2, 2" % (v(t0), v(src)))
    e("v_lshl_add_u32 %s, %s, 3, %s" % (v(dst), v(t0), v(dst)))
    e("v_bfe_u32 %s, %s, 4, 1" % (v(t1), v(src)))
    e("v_lshl_add_u32 %s, %s, 2, %s" % (v(dst), v(t1), v(dst)))
def divc(q, r, x, c, magic, sh):
    e("v_mul_u32_u24 %s, %d, %s" % (v(q), magic, v(x)))
    e("v_lshrrev_b32 %s, %d, %s" % (v(q), sh, v(q)))
    e("v_mul_u32_u24 %s, %d, %s" % (v(r), c, v(q)))
    e("v_sub_u32 %s, %s, %s" % (v(r), v(x), v(r)))
def bf16r(d, src):
    e("v_cvt_pk_bf16_f32 %s, %s, %s" % (v(d), v(src), v(src)))
    e("v_and_b32 %s, 0xffff0000, %s" % (v(d), v(d)))
def xreduce(a, t):
    for p in ("v_permlane32_swap_b32", "v_permlane16_swap_b32"):
        e("v_mov_b32 %s, %s" % (v(t), v(a)))
        nop(2)
        e("%s %s, %s" % (p, v(a), v(t)))
        nop(2)
        e("v_add_f32 %s, %s, %s" % (v(a), v(a), v(t)))

K1_STAGE = 25600; K1_NS = 4; K1_LDS = K1_STAGE * K1_NS
def gen_k1():
    ACC = 0
    EX = 104
    ACT = 112
    WR = 148
    vF, vQ, vT, vE0, vE1 = 208, 209, 210, 211, 212
    vD0, vD1, vD2, vD3, vD4 = 213, 214, 215, 216, 217
    vA0, vA1, vAH = 218, 219, 220
    vOnes = 221
    ST = 222
    vL, vG, vM = 228, 229, 230
    T = 232
    acc = lambda i, u: ACC + (i * 2 + u) * 4
    act = lambda st, f: ACT + (st * 3 + f) * 4
    sX, sW1, sWQ, sH, sO = 8, 12, 16, 20, 24
    sWave, sJ, sMt, sIt, sDelta, sRd = 28, 29, 30, 31, 32, 33
    sM0, sOffW1, sOffWQ, sOffA, sOne2, sT = 34, 35, 36, 37, 38, 39
    sWr = 44
    kstart("k1_kernel")
    e("s_cmp_ge_u32 s2, 256"); e("s_cbranch_scc1 K1_END")
    e("s_load_dwordx4 s[48:51], s[0:1], 0")
    e("s_load_dwordx2 s[52:53], s[0:1], 32")
    e("s_load_dwordx2 s[54:55], s[0:1], 64")
    e("v_and_b32 %s, 63, v0" % v(vL))
    e("v_lshrrev_b32 %s, 6, v0" % v(T))
    e("v_lshrrev_b32 %s, 4, %s" % (v(vG), v(vL)))
    e("v_readfirstlane_b32 %s, %s" % (s(sWave), v(T)))
    e("v_and_b32 %s, 15, %s" % (v(vM), v(vL)))
    e("v_mov_b32 v231, v0")
    e("s_and_b32 s40, s2, 7"); e("s_lshr_b32 s41, s2, 3")
    e("s_lshr_b32 s42, s40, 2"); e("s_lshl_b32 s42, s42, 2"); e("s_lshr_b32 s43, s41, 3")
    e("s_add_u32 %s, s42, s43" % s(sMt))
    e("s_and_b32 s42, s40, 3"); e("s_lshl_b32 s42, s42, 3"); e("s_and_b32 s43, s41, 7")
    e("s_add_u32 %s, s42, s43" % s(sJ))
    e("s_mov_b32 %s, 0x3f803f80" % s(sOne2))
    e("s_lshl_b32 s40, %s, 3" % s(sWave))
    e("s_mul_i32 s41, %s, 288" % s(sJ))
    e("s_mul_i32 s42, %s, 36" % s(sJ))
    e("s_movk_i32 s43, 9216")
    for n, vd in enumerate((vD0, vD1, vD2)):
        e("v_add_u32 %s, %d, %s" % (v(T), 64 * n, v(vL)))
        divc(T + 1, T + 2, T, 18, 3641, 16)
        e("v_add_u32 %s, s40, %s" % (v(T + 1), v(T + 1)))
        perm_pi(T + 3, T + 1, T + 4, T + 5)
        e("v_mul_lo_u32 %s, %s, s43" % (v(T + 3), v(T + 3)))
        e("v_lshl_add_u32 %s, %s, 4, %s" % (v(T + 3), v(T + 2), v(T + 3)))
        e("v_add_u32 %s, s41, %s" % (v(vd), v(T + 3)))
    divc(T + 1, T + 2, vL, 6, 10923, 16)
    e("v_add_u32 %s, s40, %s" % (v(T + 1), v(T + 1)))
    perm_pi(T + 3, T + 1, T + 4, T + 5)
    e("v_mul_u32_u24 %s, 3456, %s" % (v(T + 3), v(T + 3)))
    e("v_lshrrev_b32 %s, 1, %s" % (v(T + 4), v(T + 2)))
    e("v_mul_u32_u24 %s, 1152, %s" % (v(T + 4), v(T + 4)))
    e("v_and_b32 %s, 1, %s" % (v(T + 2), v(T + 2)))
    e("v_lshl_add_u32 %s, %s, 4, %s" % (v(T + 3), v(T + 2), v(T + 3)))
    e("v_add3_u32 %s, %s, %s, s42" % (v(vD3), v(T + 3), v(T + 4)))
    e("v_bfe_u32 %s, %s, 2, 3" % (v(T + 1), v(vL)))
    e("v_add_u32 %s, s40, %s" % (v(T + 1), v(T + 1)))
    perm_pi(T + 3, T + 1, T + 4, T + 5)
    e("v_mul_u32_u24 %s, 3456, %s" % (v(T + 3), v(T + 3)))
    e("v_and_b32 %s, 3, %s" % (v(T + 4), v(vL)))
    e("v_min_u32 %s, 2, %s" % (v(T + 4), v(T + 4)))
    e("v_mul_u32_u24 %s, 1152, %s" % (v(T + 4), v(T + 4)))
    e("v_add3_u32 %s, %s, %s, s42" % (v(vD4), v(T + 3), v(T + 4)))
    e("v_add_u32 %s, 32, %s" % (v(vD4), v(vD4)))
    e("s_lshl_b32 s40, %s, 8" % s(sMt)); e("s_lshl_b32 s41, %s, 5" % s(sWave)); e("s_add_u32 s41, s41, s40")
    e("v_add_u32 %s, s41, %s" % (v(T), v(vM)))
    e("v_mul_u32_u24 %s, 1152, %s" % (v(T), v(T)))
    e("v_lshl_add_u32 %s, %s, 4, %s" % (v(vA0), v(vG), v(T)))
    e("v_add_u32 %s, 18432, %s" % (v(vA1), v(vA0)))
    e("s_sub_u32 s41, s40, 16")
    e("v_add_u32 %s, s41, %s" % (v(T), v(vM)))
    e("v_mul_u32_u24 %s, 1152, %s" % (v(T), v(T)))
    e("v_lshl_add_u32 %s, %s, 4, %s" % (v(vAH), v(vG), v(T)))
    e("s_sub_u32 s41, %s, 5" % s(sWave)); e("s_cmp_lt_u32 s41, 2"); e("s_cselect_b32 s41, 0, 64")
    e("v_cmp_lt_u32 vcc, s41, %s" % v(vM))
    e("v_mov_b32 %s, %s" % (v(T), s(sOne2)))
    e("v_mov_b32 %s, 0x80000000" % v(T + 1))
    e("v_cndmask_b32 %s, %s, 0, vcc" % (v(vOnes), v(T)))
    e("s_cmp_eq_u32 %s, 0" % s(sMt)); e("s_cselect_b32 s41, 64, s41")
    e("v_cmp_lt_u32 vcc, s41, %s" % v(vM))
    nop(2)
    e("v_cndmask_b32 %s, %s, %s, vcc" % (v(vAH), v(T + 1), v(vAH)))
    e("v_lshrrev_b32 %s, 1, %s" % (v(T), v(vG)))
    e("v_mul_u32_u24 %s, 3200, %s" % (v(T), v(T)))
    e("v_bfe_u32 %s, %s, 2, 3" % (v(T + 1), v(vL)))
    e("v_and_b32 %s, 3, %s" % (v(T + 2), v(vL)))
    e("v_mul_u32_u24 %s, 288, %s" % (v(T + 3), v(T + 1)))
    e("v_lshl_add_u32 %s, %s, 3, %s" % (v(T + 4), v(T + 2), v(T)))
    e("v_add_u32 %s, %s, %s" % (v(vF), v(T + 3), v(T + 4)))
    e("v_mul_u32_u24 %s, 96, %s" % (v(T + 3), v(T + 1)))
    e("v_add_u32 %s, %s, %s" % (v(vQ), v(T + 3), v(T + 4)))
    e("v_add_u32 %s, 2304, %s" % (v(vQ), v(vQ)))
    e("v_and_b32 %s, 1, %s" % (v(T + 2), v(vL)))
    e("v_lshl_add_u32 %s, %s, 3, %s" % (v(T + 4), v(T + 2), v(T)))
    e("v_lshl_add_u32 %s, %s, 4, %s" % (v(vT), v(T + 1), v(T + 4)))
    e("v_add_u32 %s, 3072, %s" % (v(vT), v(vT)))
    e("s_lshl_b32 s41, %s, 6" % s(sWave))
    e("v_add_u32 %s, s41, %s" % (v(vE0), v(vF)))
    e("v_add_u32 %s, 32, %s" % (v(vE1), v(vE0)))
    e("s_cmp_lt_u32 %s, 4" % s(sWave)); e("s_cbranch_scc1 K1_EDONE")
    e("v_mov_b32 %s, %s" % (v(vE1), v(vQ)))
    e("s_cmp_eq_u32 %s, 4" % s(sWave)); e("s_cbranch_scc1 K1_EDONE")
    e("v_add_u32 %s, 32, %s" % (v(vE0), v(vQ)))
    e("v_add_u32 %s, 64, %s" % (v(vE1), v(vQ)))
    e("s_cmp_eq_u32 %s, 5" % s(sWave)); e("s_cbranch_scc1 K1_EDONE")
    e("v_mov_b32 %s, %s" % (v(vE0), v(vT)))
    e("v_mov_b32 %s, %s" % (v(vE1), v(vT)))
    lab("K1_EDONE")
    e("s_waitcnt lgkmcnt(0)")
    srd(sX, 48, 2048 * 1152); srd(sWQ, 50, 576 * 3456); srd(sW1, 52, 576 * 9216)
    srd(sH, 54, H_BYTES, H_OFF); srd(sO, 54, O_BYTES, O_OFF)
    e("s_mul_i32 %s, %s, 3200" % (s(sWr), s(sWave)))
    e("s_mov_b32 %s, 0" % s(sOffW1)); e("s_mov_b32 %s, 0" % s(sOffWQ)); e("s_mov_b32 %s, 0" % s(sOffA))
    e("s_mov_b32 %s, 0" % s(sRd))

    def dma():
        e("s_mov_b32 m0, %s" % s(sWr))
        e("s_add_u32 %s, %s, 1024" % (s(sT), s(sWr)))
        e("buffer_load_dwordx4 %s, %s, %s offen lds" % (v(vD0), s(sW1, 4), s(sOffW1)))
        e("s_mov_b32 m0, %s" % s(sT))
        e("s_add_u32 %s, %s, 2048" % (s(sT), s(sWr)))
        e("buffer_load_dwordx4 %s, %s, %s offen lds" % (v(vD1), s(sW1, 4), s(sOffW1)))
        e("s_mov_b32 m0, %s" % s(sT))
        e("s_mov_b64 exec, 0xffff")
        e("s_add_u32 %s, %s, 2304" % (s(sT), s(sWr)))
        e("buffer_load_dwordx4 %s, %s, %s offen lds" % (v(vD2), s(sW1, 4), s(sOffW1)))
        e("s_mov_b32 m0, %s" % s(sT))
        e("s_mov_b32 exec_lo, -1"); e("s_mov_b32 exec_hi, 0xffff")
        e("s_add_u32 %s, %s, 3072" % (s(sT), s(sWr)))
        e("buffer_load_dwordx4 %s, %s, %s offen lds" % (v(vD3), s(sWQ, 4), s(sOffWQ)))
        e("s_mov_b32 m0, %s" % s(sT))
        e("s_mov_b32 exec_hi, 0")
        e("s_add_u32 %s, %s, %d" % (s(sOffW1), s(sOffW1), 64 * 9216))
        e("buffer_load_dword %s, %s, %s offen lds" % (v(vD4), s(sWQ, 4), s(sOffWQ)))
        e("s_mov_b64 exec, -1")
        e("s_add_u32 %s, %s, %d" % (s(sOffWQ), s(sOffWQ), 64 * 3456))
        e("s_add_u32 %s, %s, %d" % (s(sWr), s(sWr), K1_STAGE))
        e("s_cmp_ge_u32 %s, %d" % (s(sWr), K1_LDS))
        e("s_cselect_b32 %s, %d, 0" % (s(sT), K1_LDS))
        e("s_sub_u32 %s, %s, %s" % (s(sWr), s(sWr), s(sT)))
    def actload(st, kk):
        for f, va in enumerate((vA0, vA1, vAH)):
            e("buffer_load_dwordx4 %s, %s, %s, %s offen offset:%d" % (v(act(st, f), 4), v(va), s(sX, 4), s(sOffA), kk * 64))
    D = 6
    def wread(q, kk):
        if q < 9: base, off = vF, q * 32
        elif q < 12: base, off = vQ, (q - 9) * 32
        elif q == 12: base, off = vT, 0
        else: base, off = (vE0, vE1)[q - 13], 0
        if kk == 0 and q in (0, 9, 12, 13, 14):
            e("v_add_u32 %s, %s, %s" % (v(base), s(sDelta), v(base)))
        off += kk * 12800
        e("ds_read_b64_tr_b16 %s, %s offset:%d" % (v(WR + q * 4, 2), v(base), off))
        e("ds_read_b64_tr_b16 %s, %s offset:%d" % (v(WR + q * 4 + 2, 2), v(base), off + 6400))
    def nextdelta():
        e("s_add_u32 %s, %s, %d" % (s(sRd), s(sRd), K1_STAGE))
        e("s_cmp_ge_u32 %s, %d" % (s(sRd), K1_LDS))
        e("s_cselect_b32 %s, %d, 0" % (s(sDelta), K1_LDS))
        e("s_sub_u32 %s, %s, %s" % (s(sRd), s(sRd), s(sDelta)))
        e("s_sub_u32 %s, %d, %s" % (s(sDelta), K1_STAGE, s(sDelta)))
    dma(); dma(); actload(0, 0); dma(); actload(1, 1); actload(2, 2)
    for r in range(0, 112): e("v_mov_b32 %s, 0" % v(r))
    for r in range(6): e("v_mov_b32 %s, 0" % v(ST + r))
    e("s_mov_b32 %s, 0" % s(sDelta))
    e("s_mov_b32 %s, 0" % s(sIt))
    e("s_waitcnt vmcnt(14)"); e("s_barrier")
    for q in range(D): wread(q, 0)
    lab("K1_LOOP")
    for st3 in range(3):
        e("s_waitcnt vmcnt(17)"); e("s_barrier")
        dma()
        for kk in range(2):
            kap = st3 * 2 + kk; a = kap % 3
            e("s_waitcnt vmcnt(%d)" % (16 if kk == 0 else 11))
            if kk == 1: nextdelta()
            valu = []
            for r in range(4): valu.append("v_or_b32 %s, %s, %s" % (v(act(a, 2) + r), v(act(a, 2) + r), v(vOnes)))
            for f in range(3):
                for r in range(4):
                    valu.append("v_dot2_f32_bf16 %s, %s, %s, %s" % (v(ST + 2 * f), v(act(a, f) + r), s(sOne2), v(ST + 2 * f)))
                    valu.append("v_dot2_f32_bf16 %s, %s, %s, %s" % (v(ST + 2 * f + 1), v(act(a, f) + r), v(act(a, f) + r), v(ST + 2 * f + 1)))
            for q in range(15):
                e("s_waitcnt lgkmcnt(%d)" % (2 * D - 2))
                qn = q + D
                if qn < 15: wread(qn, kk)
                else: wread(qn - 15, 1 - kk)
                if q < 13:
                    mfma(acc(q, 0), WR + q * 4, act(a, 0))
                    if valu: e(valu.pop(0))
                    mfma(acc(q, 1), WR + q * 4, act(a, 1))
                    if valu: e(valu.pop(0))
                    if valu and q < 2: e(valu.pop(0))
                else:
                    mfma(EX + (q - 13) * 4, WR + q * 4, act(a, 2))
            assert not valu
            actload(a, kap + 3)
    e("s_add_u32 %s, %s, 384" % (s(sOffA), s(sOffA)))
    e("s_add_u32 %s, %s, 1" % (s(sIt), s(sIt)))
    e("s_cmp_lt_u32 %s, 3" % s(sIt)); e("s_cbranch_scc1 K1_LOOP")
    QB, KB, VB, CS = 0, 20480, 20480 + 21760, 64000
    e("s_waitcnt vmcnt(0) lgkmcnt(0)"); e("s_barrier")
    e("s_lshl_b32 s40, %s, 1" % s(sWave)); e("s_min_u32 s40, s40, 12"); e("s_add_u32 s41, s40, 1"); e("s_min_u32 s41, s41, 12")
    e("s_lshl_b32 s40, s40, 6"); e("s_lshl_b32 s41, s41, 6")
    e("v_lshlrev_b32 %s, 4, %s" % (v(T), v(vG)))
    e("v_add_u32 %s, s40, %s" % (v(T + 1), v(T)))
    e("v_add_u32 %s, s41, %s" % (v(T + 2), v(T)))
    e("v_cmp_eq_u32 vcc, 0, %s" % v(vM))
    e("s_and_saveexec_b64 s[46:47], vcc")
    e("ds_write_b128 %s, %s offset:%d" % (v(T + 1), v(EX, 4), CS))
    e("ds_write_b128 %s, %s offset:%d" % (v(T + 2), v(EX + 4, 4), CS))
    e("s_mov_b64 exec, -1")
    MEAN = 248; RS = 251
    e("s_mov_b32 s40, 0x%08x" % f2u(1.0 / 576.0)); e("s_mov_b32 s41, 0x%08x" % f2u(1e-5))
    for f in range(6): xreduce(ST + f, T + 3)
    for f in range(3):
        e("v_mul_f32 %s, s40, %s" % (v(T + 3), v(ST + 2 * f)))
        e("v_mul_f32 %s, %s, %s" % (v(T + 4), v(T + 3), v(T + 3)))
        e("v_fma_f32 %s, %s, s40, -%s" % (v(T + 4), v(ST + 2 * f + 1), v(T + 4)))
        e("v_max_f32 %s, 0, %s" % (v(T + 4), v(T + 4)))
        bf16r(MEAN + f, T + 3)
        bf16r(T + 4, T + 4)
        e("v_add_f32 %s, s41, %s" % (v(T + 4), v(T + 4)))
        bf16r(T + 4, T + 4)
        e("v_sqrt_f32 %s, %s" % (v(T + 4), v(T + 4)))
        nop(1)
        bf16r(T + 4, T + 4)
        e("v_rcp_f32 %s, %s" % (v(RS + f), v(T + 4)))
    e("s_waitcnt lgkmcnt(0)"); e("s_barrier")
    CSR = WR
    for i in range(13): e("ds_read_b128 %s, %s offset:%d" % (v(CSR + i * 4, 4), v(T), CS + i * 64))
    vHE, vHO = T + 5, T + 6
    e("s_mul_i32 s40, %s, 9" % s(sJ)); e("s_and_b32 s41, %s, 1" % s(sJ))
    e("s_lshr_b32 s42, s40, 1"); e("s_lshl_b32 s42, s42, 10"); e("s_lshl_b32 s43, s41, 3"); e("s_add_u32 s42, s42, s43")
    e("s_add_u32 s40, s40, 1"); e("s_lshr_b32 s43, s40, 1"); e("s_lshl_b32 s43, s43, 10")
    e("s_xor_b32 s41, s41, 1"); e("s_lshl_b32 s41, s41, 3"); e("s_add_u32 s43, s43, s41")
    e("s_lshl_b32 s40, %s, 4" % s(sMt)); e("s_lshl_b32 s41, %s, 1" % s(sWave)); e("s_add_u32 s40, s40, s41")
    e("s_mul_i32 s40, s40, %d" % (144 * 1024))
    e("s_add_u32 s42, s42, s40"); e("s_add_u32 s43, s43, s40")
    e("v_lshlrev_b32 %s, 4, %s" % (v(T + 7), v(vL)))
    e("v_add_u32 %s, s42, %s" % (v(vHE), v(T + 7)))
    e("v_add_u32 %s, s43, %s" % (v(vHO), v(T + 7)))
    e("s_mov_b32 s40, 0"); e("s_mov_b32 s41, 4096"); e("s_mov_b32 s42, %d" % (144 * 1024)); e("s_mov_b32 s43, %d" % (144 * 1024 + 4096))
    def fix(reg, cs, f):
        for r in range(4):
            e("v_fma_f32 %s, -%s, %s, %s" % (v(reg + r), v(MEAN + f), v(cs + r), v(reg + r)))
        for r in range(4):
            e("v_mul_f32 %s, %s, %s" % (v(reg + r), v(RS + f), v(reg + r)))
    e("s_waitcnt lgkmcnt(0)")
    vRQ = T + 8
    e("s_lshl_b32 s44, %s, 5" % s(sWave))
    e("v_add_u32 %s, s44, %s" % (v(T + 9), v(vM)))
    e("v_mul_u32_u24 %s, 80, %s" % (v(T + 9), v(T + 9)))
    e("v_add_u32 %s, %s, %s" % (v(vRQ), v(T + 9), v(T)))
    e("v_mul_u32_u24 %s, %d, %s" % (v(T + 10), VB + 1280 - QB, v(vG)))
    e("v_add_u32 %s, %s, %s" % (v(T + 10), v(T + 10), v(T + 9)))
    for u in range(2):
        for i in range(9, 13): fix(acc(i, u), CSR + i * 4, u)
        e("ds_write_b128 %s, %s offset:%d" % (v(vRQ), v(acc(9, u), 4), QB + u * 1280))
        e("ds_write_b128 %s, %s offset:%d" % (v(vRQ), v(acc(10, u), 4), KB + 1280 + u * 1280))
        e("ds_write_b128 %s, %s offset:%d" % (v(vRQ), v(acc(11, u), 4), VB + 1280 + u * 1280))
        e("s_mov_b32 exec_hi, 0")
        e("ds_write_b64 %s, %s offset:%d" % (v(T + 10), v(acc(12, u), 2), QB + 64 + u * 1280))
        e("s_mov_b32 exec_lo, 0xffff")
        e("ds_write_b64 %s, %s offset:%d" % (v(T + 9), v(acc(12, u) + 2, 2), KB + 1280 + 64 + u * 1280))
        e("s_mov_b64 exec, -1")
    e("v_mul_u32_u24 %s, 80, %s" % (v(T + 9), v(vM)))
    e("s_cmp_eq_u32 %s, 5" % s(sWave)); e("s_cbranch_scc0 K1_H6")
    fix(EX, CSR + 40, 2); fix(EX + 4, CSR + 44, 2)
    e("v_add_u32 %s, %s, %s" % (v(T + 10), v(T + 9), v(T)))
    e("ds_write_b128 %s, %s offset:%d" % (v(T + 10), v(EX, 4), KB))
    e("ds_write_b128 %s, %s offset:%d" % (v(T + 10), v(EX + 4, 4), VB))
    e("s_branch K1_HD")
    lab("K1_H6")
    e("s_cmp_eq_u32 %s, 6" % s(sWave)); e("s_cbranch_scc0 K1_HD")
    fix(EX, CSR + 48, 2)
    e("s_mov_b64 exec, 0xffff")
    e("ds_write_b64 %s, %s offset:%d" % (v(T + 9), v(EX + 2, 2), KB + 64))
    e("s_mov_b32 exec_lo, 0xffff0000")
    e("ds_write_b64 %s, %s offset:%d" % (v(T + 9), v(EX, 2), VB + 64))
    e("s_mov_b64 exec, -1")
    lab("K1_HD")
    for u in range(2):
        for i in range(9):
            a0 = acc(i, u)
            fix(a0, CSR + i * 4, u)
            for r in range(4): e("v_max_f32 %s, 0, %s" % (v(a0 + r), v(a0 + r)))
            e("v_cvt_pk_bf16_f32 %s, %s, %s" % (v(a0), v(a0), v(a0 + 1)))
            e("v_cvt_pk_bf16_f32 %s, %s, %s" % (v(a0 + 1), v(a0 + 2), v(a0 + 3)))
            aa = i >> 1
            e("buffer_store_dwordx2 %s, %s, %s, s%d offen offset:%d" % (v(a0, 2), v(vHO if i & 1 else vHE), s(sH, 4), 40 + u * 2 + (aa >> 2), (aa & 3) * 1024))
    e("s_waitcnt lgkmcnt(0)"); e("s_barrier")
    Qr = 0; Kr = 12; LG = 112; Or = 124; vB, vBt, vRow = T + 12, T + 13, T + 14
    e("v_lshrrev_b32 %s, 1, v231" % v(vRow))
    e("v_and_b32 %s, 1, v231" % v(T))
    e("v_mul_u32_u24 %s, 80, %s" % (v(T + 1), v(vRow)))
    e("v_lshl_add_u32 %s, %s, 5, %s" % (v(vB), v(T), v(T + 1)))
    e("v_lshl_add_u32 %s, %s, 2, %s" % (v(vBt), v(T), v(T + 1)))
    def rec(dst, base_off):
        e("ds_read_b128 %s, %s offset:%d" % (v(dst, 4), v(vB), base_off))
        e("ds_read_b128 %s, %s offset:%d" % (v(dst + 4, 4), v(vB), base_off + 16))
        e("ds_read_b32 %s, %s offset:%d" % (v(dst + 8), v(vBt), base_off + 64))
    rec(Qr, QB)
    for w in range(4): rec(Kr + w * 12, KB + 1280 - 160 * w)
    e("s_lshl_b32 s40, %s, 8" % s(sMt))
    e("v_add_u32 %s, s40, %s" % (v(vRow), v(vRow)))
    e("s_mov_b32 s41, 0x%08x" % f2u(18 ** -0.5 * 1.4426950408889634))
    e("v_mov_b32 %s, 0x%08x" % (v(T + 2), f2u(-1e9 * 1.4426950408889634)))
    for w in range(8):
        e("s_waitcnt lgkmcnt(%d)" % (9 if w < 5 else 9 - 3 * (w - 4)) if w < 8 else "")
        kr = Kr + w * 12
        if w < 4 and False: pass
        e("v_mul_f32 %s, %s, %s" % (v(LG + w), v(Qr), v(kr)))
        for d in range(1, 9): e("v_fmac_f32 %s, %s, %s" % (v(LG + w), v(Qr + d), v(kr + d)))
        if w < 4: rec(Kr + (w + 4) * 12, KB + 1280 - 160 * (w + 4))
    for w in range(5): rec(Kr + w * 12, VB + 1280 - 160 * w)
    nop(2)
    for w in range(8):
        e("v_add_f32_dpp %s, %s, %s quad_perm:[1,0,3,2] row_mask:0xf bank_mask:0xf" % (v(Or + w), v(LG + w), v(LG + w)))
    for w in range(8):
        e("v_mul_f32 %s, s41, %s" % (v(LG + w), v(Or + w)))
        if w > 0:
            e("v_cmp_le_u32 vcc, %d, %s" % (2 * w, v(vRow)))
            nop(2)
            e("v_cndmask_b32 %s, %s, %s, vcc" % (v(LG + w), v(T + 2), v(LG + w)))
    e("v_max3_f32 %s, %s, %s, %s" % (v(T + 3), v(LG), v(LG + 1), v(LG + 2)))
    e("v_max3_f32 %s, %s, %s, %s" % (v(T + 3), v(T + 3), v(LG + 3), v(LG + 4)))
    e("v_max3_f32 %s, %s, %s, %s" % (v(T + 3), v(T + 3), v(LG + 5), v(LG + 6)))
    e("v_max_f32 %s, %s, %s" % (v(T + 3), v(T + 3), v(LG + 7)))
    for w in range(8):
        e("v_sub_f32 %s, %s, %s" % (v(LG + w), v(LG + w), v(T + 3)))
        e("v_exp_f32 %s, %s" % (v(LG + w), v(LG + w)))
    nop(1)
    e("v_add_f32 %s, %s, %s" % (v(T + 4), v(LG), v(LG + 1)))
    for w in range(2, 8): e("v_add_f32 %s, %s, %s" % (v(T + 4), v(T + 4), v(LG + w)))
    e("v_rcp_f32 %s, %s" % (v(T + 4), v(T + 4)))
    for w in range(8):
        nout = min(w + 4, 7) - w
        e("s_waitcnt lgkmcnt(%d)" % (3 * nout))
        kr = Kr + w * 12
        for d in range(9):
            if w == 0: e("v_mul_f32 %s, %s, %s" % (v(Or + d), v(LG), v(kr + d)))
            else: e("v_fmac_f32 %s, %s, %s" % (v(Or + d), v(LG + w), v(kr + d)))
        if w + 5 < 8: rec(Kr + (w + 5) * 12, VB + 1280 - 160 * (w + 5))
    for d in range(9): e("v_mul_f32 %s, %s, %s" % (v(Or + d), v(T + 4), v(Or + d)))
    for d in range(4): e("v_cvt_pk_bf16_f32 %s, %s, %s" % (v(Qr + d), v(Or + 2 * d), v(Or + 2 * d + 1)))
    e("v_cvt_pk_bf16_f32 %s, %s, %s" % (v(Qr + 4), v(Or + 8), v(Or + 8)))
    e("s_mul_i32 s42, %s, 36" % s(sJ))
    e("v_mul_u32_u24 %s, 1152, %s" % (v(T + 5), v(vRow)))
    e("v_lshl_add_u32 %s, %s, 4, %s" % (v(T + 6), v(T), v(T + 5)))
    e("v_lshl_add_u32 %s, %s, 1, %s" % (v(T + 7), v(T), v(T + 5)))
    e("buffer_store_dwordx4 %s, %s, %s, s42 offen" % (v(Qr, 4), v(T + 6), s(sO, 4)))
    e("buffer_store_short %s, %s, %s, s42 offen offset:32" % (v(Qr + 4), v(T + 7), s(sO, 4)))
    lab("K1_END")
    e("s_endpgm")

import struct
def f2u(x): return struct.unpack("<I", struct.pack("<f", x))[0]

K2_STAGE = 18432; K2_NS = 5; K2_LDS = K2_STAGE * K2_NS
def gen_k2():
    ACC = 0
    ACT = 72
    WR = 96
    vF = 132; vD0, vD1, vD2 = 133, 134, 135; vA0, vA1 = 136, 137
    vL, vG, vM, vFb = 138, 139, 140, 141
    vX, vP = 142, 143
    R8 = 144
    T = 152
    acc = lambda i, u: ACC + (i * 2 + u) * 4
    act = lambda st, f: ACT + (st * 2 + f) * 4
    sW, sA, sP = 8, 12, 16
    sWave, sKs, sMt, sNt, sCnt, sDelta, sRd, sWr = 28, 29, 30, 31, 32, 33, 34, 35
    sOffW, sOffA, sStepA, sT, sJob, sWq, sHh, sSlab = 36, 37, 38, 39, 44, 45, 46, 47
    kstart("k2_kernel")
    e("s_cmp_ge_u32 s2, 256"); e("s_cbranch_scc1 K2_END")
    e("s_load_dwordx2 s[48:49], s[0:1], 16")
    e("s_load_dwordx2 s[50:51], s[0:1], 40")
    e("s_load_dwordx2 s[54:55], s[0:1], 64")
    e("v_and_b32 %s, 63, v0" % v(vL))
    e("v_lshrrev_b32 %s, 6, v0" % v(T))
    e("v_lshrrev_b32 %s, 4, %s" % (v(vG), v(vL)))
    e("v_readfirstlane_b32 %s, %s" % (s(sWave), v(T)))
    e("v_and_b32 %s, 15, %s" % (v(vM), v(vL)))
    e("s_and_b32 s40, s2, 7"); e("s_lshr_b32 s41, s2, 3")
    e("s_and_b32 %s, s40, 3" % s(sKs))
    e("s_lshr_b32 s42, s40, 2"); e("s_lshl_b32 s42, s42, 3"); e("s_lshr_b32 s43, s41, 2")
    e("s_add_u32 %s, s42, s43" % s(sMt)); e("s_and_b32 %s, s41, 3" % s(sNt))
    e("s_and_b32 %s, %s, 3" % (s(sWq), s(sWave))); e("s_lshr_b32 %s, %s, 2" % (s(sHh), s(sWave)))
    e("s_lshl_b32 s40, %s, 3" % s(sWave))
    e("s_mul_i32 s41, %s, 288" % s(sNt))
    for n in range(3):
        e("v_add_u32 %s, %d, %s" % (v(T), 64 * n, v(vL)))
        divc(R8 + n, R8 + 3 + n, T, 18, 3641, 16)
        e("v_add_u32 %s, s40, %s" % (v(R8 + n), v(R8 + n)))
        e("v_lshlrev_b32 %s, 4, %s" % (v(R8 + 3 + n), v(R8 + 3 + n)))
        e("v_add_u32 %s, s41, %s" % (v(R8 + 3 + n), v(R8 + 3 + n)))
        e("v_mul_u32_u24 %s, 1152, %s" % (v(T), v(R8 + n)))
        e("v_add_u32 %s, %s, %s" % (v(vD0 + n), v(T), v(R8 + 3 + n)))
    e("s_lshl_b32 s40, %s, 5" % s(sHh))
    e("v_lshrrev_b32 %s, 2, %s" % (v(T), v(vL)))
    e("v_add_u32 %s, s40, %s" % (v(T), v(T)))
    e("v_mul_u32_u24 %s, 288, %s" % (v(T), v(T)))
    e("v_and_b32 %s, 3, %s" % (v(T + 1), v(vL)))
    e("v_lshl_add_u32 %s, %s, 3, %s" % (v(vFb), v(T + 1), v(T)))
    e("s_lshl_b32 s40, %s, 3" % s(sMt)); e("s_lshl_b32 s41, %s, 1" % s(sWq)); e("s_add_u32 s40, s40, s41")
    e("s_add_u32 s42, s40, %s" % s(sHh))
    e("s_xor_b32 s43, s42, 1")
    e("v_lshlrev_b32 %s, 4, %s" % (v(T), v(vL)))
    e("s_mul_i32 s40, s42, 144"); e("s_add_u32 s40, s40, %s" % s(sHh)); e("s_lshl_b32 s40, s40, 10")
    e("v_add_u32 %s, s40, %s" % (v(vA0), v(T)))
    e("s_mul_i32 s40, s43, 144"); e("s_add_u32 s40, s40, %s" % s(sHh)); e("s_lshl_b32 s40, s40, 10")
    e("v_add_u32 %s, s40, %s" % (v(vA1), v(T)))
    e("s_mul_i32 s40, s42, 36"); e("s_mul_i32 s41, %s, 9" % s(sNt)); e("s_add_u32 s40, s40, s41"); e("s_lshl_b32 s40, s40, 10")
    e("v_add_u32 %s, s40, %s" % (v(vP), v(T)))
    e("s_mul_i32 s40, %s, 9216" % s(sWave))
    e("v_add_u32 %s, s40, %s" % (v(vX), v(T)))
    e("s_mov_b32 s56, s42"); e("s_mov_b32 s57, s43")
    e("s_waitcnt lgkmcnt(0)")
    srd(sW, 50, 4608 * 1152); srd(sA, 54, H_BYTES, H_OFF); srd(sP, 54, 5 * SLAB, P_OFF)
    e("s_mul_i32 s40, %s, 21" % s(sKs))
    e("s_mul_i32 %s, s40, %d" % (s(sOffW), 64 * 1152))
    e("s_lshl_b32 %s, s40, 11" % s(sOffA))
    e("s_movk_i32 %s, 2048" % s(sStepA))
    e("s_cmp_eq_u32 %s, 3" % s(sKs)); e("s_cselect_b32 %s, 3, 7" % s(sCnt))
    e("s_mul_i32 %s, %s, %d" % (s(sSlab), s(sKs), SLAB))
    e("s_mov_b32 %s, 0" % s(sJob))
    def dma():
        e("s_mov_b32 m0, %s" % s(sWr))
        e("s_add_u32 %s, %s, 1024" % (s(sT), s(sWr)))
        e("buffer_load_dwordx4 %s, %s, %s offen lds" % (v(vD0), s(sW, 4), s(sOffW)))
        e("s_mov_b32 m0, %s" % s(sT))
        e("s_add_u32 %s, %s, 2048" % (s(sT), s(sWr)))
        e("buffer_load_dwordx4 %s, %s, %s offen lds" % (v(vD1), s(sW, 4), s(sOffW)))
        e("s_mov_b32 m0, %s" % s(sT))
        e("s_mov_b64 exec, 0xffff")
        e("s_add_u32 %s, %s, %d" % (s(sWr), s(sWr), K2_STAGE))
        e("buffer_load_dwordx4 %s, %s, %s offen lds" % (v(vD2), s(sW, 4), s(sOffW)))
        e("s_mov_b64 exec, -1")
        e("s_add_u32 %s, %s, %d" % (s(sOffW), s(sOffW), 64 * 1152))
        e("s_cmp_ge_u32 %s, %d" % (s(sWr), K2_LDS))
        e("s_cselect_b32 %s, %d, 0" % (s(sT), K2_LDS))
        e("s_sub_u32 %s, %s, %s" % (s(sWr), s(sWr), s(sT)))
    def actload(st):
        e("buffer_load_dwordx4 %s, %s, %s, %s offen" % (v(act(st, 0), 4), v(vA0), s(sA, 4), s(sOffA)))
        e("buffer_load_dwordx4 %s, %s, %s, %s offen" % (v(act(st, 1), 4), v(vA1), s(sA, 4), s(sOffA)))
        e("s_add_u32 %s, %s, %s" % (s(sOffA), s(sOffA), s(sStepA)))
    D = 6
    def wread(q):
        if q == 0:
            e("v_add_u32 %s, %s, %s" % (v(vF), s(sRd), v(vFb)))
        e("ds_read_b64_tr_b16 %s, %s offset:%d" % (v(WR + q * 4, 2), v(vF), q * 32))
        e("ds_read_b64_tr_b16 %s, %s offset:%d" % (v(WR + q * 4 + 2, 2), v(vF), q * 32 + 4608))
    def nextrd():
        e("s_add_u32 %s, %s, %d" % (s(sRd), s(sRd), K2_STAGE))
        e("s_cmp_ge_u32 %s, %d" % (s(sRd), K2_LDS))
        e("s_cselect_b32 %s, 0, %s" % (s(sRd), s(sRd)))
    lab("K2_JOB")
    e("s_mul_i32 %s, %s, 2304" % (s(sWr), s(sWave)))
    e("s_mov_b32 %s, 0" % s(sRd))
    dma(); dma(); actload(0); dma(); actload(1); dma(); actload(2)
    for r in range(72): e("v_mov_b32 %s, 0" % v(r))
    e("s_waitcnt vmcnt(12)"); e("s_barrier")
    for q in range(D): wread(q)
    lab("K2_LOOP")
    for st3 in range(3):
        e("s_waitcnt vmcnt(12)"); e("s_barrier")
        dma()
        nextrd()
        e("s_waitcnt vmcnt(13)")
        for q in range(9):
            e("s_waitcnt lgkmcnt(%d)" % (2 * D - 2))
            wread((q + D) % 9)
            mfma(acc(q, 0), WR + q * 4, act(st3, 0))
            mfma(acc(q, 1), WR + q * 4, act(st3, 1))
        actload(st3)
    e("s_sub_u32 %s, %s, 1" % (s(sCnt), s(sCnt)))
    e("s_cmp_lg_u32 %s, 0" % s(sCnt)); e("s_cbranch_scc1 K2_LOOP")
    e("s_waitcnt vmcnt(0) lgkmcnt(0)"); e("s_barrier")
    for i in range(9): e("ds_write_b128 %s, %s offset:%d" % (v(vX), v(acc(i, 1), 4), i * 1024))
    e("s_xor_b32 s40, %s, 4" % s(sWave)); e("s_mul_i32 s40, s40, 9216")
    e("v_lshlrev_b32 %s, 4, %s" % (v(T), v(vL)))
    e("v_add_u32 %s, s40, %s" % (v(T), v(T)))
    e("s_waitcnt lgkmcnt(0)"); e("s_barrier")
    for i in range(9): e("ds_read_b128 %s, %s offset:%d" % (v(WR + i * 4, 4), v(T), i * 1024))
    e("s_add_u32 s40, %s, 4096" % s(sSlab)); e("s_add_u32 s41, %s, 8192" % s(sSlab))
    for i in range(9):
        e("s_waitcnt lgkmcnt(%d)" % (8 - i))
        for r in range(4): e("v_add_f32 %s, %s, %s" % (v(acc(i, 0) + r), v(acc(i, 0) + r), v(WR + i * 4 + r)))
        e("buffer_store_dwordx4 %s, %s, %s, %s offen offset:%d" % (v(acc(i, 0), 4), v(vP), s(sP, 4), (s(sSlab), "s40", "s41")[i >> 2], (i & 3) * 1024))
    e("s_cmp_eq_u32 %s, 3" % s(sKs)); e("s_cbranch_scc0 K2_END")
    e("s_cmp_eq_u32 %s, 0" % s(sJob)); e("s_cbranch_scc0 K2_END")
    e("s_mov_b32 %s, 1" % s(sJob))
    srd(sW, 48, 576 * 1152); srd(sA, 54, O_BYTES, O_OFF)
    for n in range(3):
        perm_pi(T, R8 + n, T + 1, T + 2)
        e("v_mul_u32_u24 %s, 1152, %s" % (v(T), v(T)))
        e("v_add_u32 %s, %s, %s" % (v(vD0 + n), v(T), v(R8 + 3 + n)))
    e("s_lshl_b32 s40, %s, 6" % s(sHh))
    e("v_lshlrev_b32 %s, 4, %s" % (v(T + 1), v(vG)))
    e("v_add_u32 %s, s40, %s" % (v(T + 1), v(T + 1)))
    for va, sm in ((vA0, 56), (vA1, 57)):
        e("s_lshl_b32 s41, s%d, 4" % sm)
        e("v_add_u32 %s, s41, %s" % (v(T), v(vM)))
        e("v_mul_u32_u24 %s, 1152, %s" % (v(T), v(T)))
        e("v_add_u32 %s, %s, %s" % (v(va), v(T), v(T + 1)))
    e("s_mov_b32 %s, 0" % s(sOffW)); e("s_mov_b32 %s, 0" % s(sOffA)); e("s_movk_i32 %s, 128" % s(sStepA))
    e("s_mov_b32 %s, 3" % s(sCnt)); e("s_mov_b32 %s, %d" % (s(sSlab), 4 * SLAB))
    e("s_waitcnt vmcnt(0)"); e("s_barrier")
    e("s_branch K2_JOB")
    lab("K2_END")
    e("s_endpgm")

def gen_k3():
    sX, sP, sOut = 8, 12, 16
    kstart("k3_kernel")
    e("s_cmp_ge_u32 s2, 384"); e("s_cbranch_scc1 K3_END")
    e("s_load_dwordx2 s[48:49], s[0:1], 0")
    e("s_load_dwordx2 s[50:51], s[0:1], 48")
    e("s_load_dwordx2 s[54:55], s[0:1], 64")
    e("v_and_b32 v1, 63, v0"); e("v_lshrrev_b32 v2, 6, v0")
    e("s_lshl_b32 s40, s2, 2")
    e("v_add_u32 v2, s40, v2")
    divc(3, 4, 2, 12, 5462, 16)
    e("v_mul_u32_u24 v5, 3072, v2")
    e("v_lshl_add_u32 v5, v1, 4, v5")
    e("v_and_b32 v6, 15, v1"); e("v_lshl_add_u32 v6, v3, 4, v6")
    e("v_mul_u32_u24 v6, 1152, v6")
    e("v_mul_u32_u24 v7, 96, v4")
    e("v_lshrrev_b32 v8, 4, v1")
    e("v_lshl_add_u32 v7, v8, 3, v7")
    e("v_add_u32 v6, v6, v7")
    e("s_waitcnt lgkmcnt(0)")
    srd(sX, 48, 2048 * 1152); srd(sOut, 50, 2048 * 1152); srd(sP, 54, 5 * SLAB, P_OFF)
    for k in range(5): e("s_mov_b32 s%d, %d" % (40 + k, k * SLAB))
    for t in range(3):
        for k in range(5):
            e("buffer_load_dwordx4 %s, v5, %s, s%d offen offset:%d" % (v(16 + (t * 5 + k) * 4, 4), s(sP, 4), 40 + k, t * 1024))
        e("buffer_load_dwordx2 %s, v6, %s, 0 offen offset:%d" % (v(80 + t * 2, 2), s(sX, 4), t * 32))
    e("s_mov_b32 s45, 0x%08x" % f2u(-1.4426950408889634))
    for t in range(3):
        e("s_waitcnt vmcnt(%d)" % (12 - 6 * t + (t > 0) * t))
        b = 16 + t * 20
        for r in range(4):
            e("v_add_f32 %s, %s, %s" % (v(b + r), v(b + r), v(b + 4 + r)))
            e("v_add_f32 %s, %s, %s" % (v(b + 8 + r), v(b + 8 + r), v(b + 12 + r)))
            e("v_add_f32 %s, %s, %s" % (v(b + r), v(b + r), v(b + 8 + r)))
            e("v_mul_f32 %s, s45, %s" % (v(b + 4 + r), v(b + r)))
            e("v_exp_f32 %s, %s" % (v(b + 4 + r), v(b + 4 + r)))
            e("v_mul_f32 %s, %s, %s" % (v(b + r), v(b + r), v(b + 16 + r)))
            e("v_add_f32 %s, 1.0, %s" % (v(b + 4 + r), v(b + 4 + r)))
            e("v_rcp_f32 %s, %s" % (v(b + 4 + r), v(b + 4 + r)))
        x0 = 80 + t * 2
        e("v_lshlrev_b32 %s, 16, %s" % (v(b + 8), v(x0)))
        e("v_and_b32 %s, 0xffff0000, %s" % (v(b + 9), v(x0)))
        e("v_lshlrev_b32 %s, 16, %s" % (v(b + 10), v(x0 + 1)))
        e("v_and_b32 %s, 0xffff0000, %s" % (v(b + 11), v(x0 + 1)))
        for r in range(4): e("v_fma_f32 %s, %s, %s, %s" % (v(b + r), v(b + r), v(b + 4 + r), v(b + 8 + r)))
        e("v_cvt_pk_bf16_f32 %s, %s, %s" % (v(b + 12), v(b), v(b + 1)))
        e("v_cvt_pk_bf16_f32 %s, %s, %s" % (v(b + 13), v(b + 2), v(b + 3)))
        e("buffer_store_dwordx2 %s, v6, %s, 0 offen offset:%d" % (v(b + 12, 2), s(sOut, 4), t * 32))
    lab("K3_END")
    e("s_endpgm")

def kd(name, vg):
    return [".amdhsa_kernel %s" % name, "  .amdhsa_next_free_vgpr %d" % vg, "  .amdhsa_next_free_sgpr 64",
            "  .amdhsa_accum_offset %d" % ((vg + 3) // 4 * 4), "  .amdhsa_group_segment_fixed_size 0", "  .amdhsa_kernarg_size 72",
            "  .amdhsa_user_sgpr_count 2", "  .amdhsa_user_sgpr_kernarg_segment_ptr 1",
            "  .amdhsa_system_sgpr_workgroup_id_x 1", "  .amdhsa_float_denorm_mode_32 3", ".end_amdhsa_kernel"]

hdr = ["; generated by gen.py : LN+QKV/FFN1+attention | FFN2 split-K + wo | reduce+epilogue",
       "; @launch kernel=k1_kernel grid=(256,1,1) block=(512,1,1) lds=%d" % K1_LDS,
       "; @launch kernel=k2_kernel grid=(256,1,1) block=(512,1,1) lds=%d" % K2_LDS,
       "; @launch kernel=k3_kernel grid=(384,1,1) block=(256,1,1) lds=0",
       '.amdgcn_target "amdgcn-amd-amdhsa--gfx950"', ".text"]
gen_k1(); gen_k2(); gen_k3()
tail = ['.section .rodata,"a"']
for n, vg in (("k1_kernel", 256), ("k2_kernel", 168), ("k3_kernel", 88)):
    tail += [".p2align 6"] + kd(n, vg)
open(sys.argv[1] if len(sys.argv) > 1 else OUT, "w").write("\n".join(hdr + L + tail) + "\n")
print("ok", len(L))
```

```python
import sys
NAME = "recurrent_scan__sliding_local_dilated__dense_activation_relu__prompt"
OUT = "cdna_kernels/%s.s" % NAME

import struct
def f2u(x): return struct.unpack("<I", struct.pack("<f", x))[0]
H_OFF = 0
H_BYTES = 128 * 144 * 1024
O_OFF = H_BYTES
O_BYTES = 2048 * 1152
XN_OFF = O_OFF + O_BYTES
WQ_OFF = XN_OFF + O_BYTES
WQ_BYTES = 32 * 576 * 128
WO_OFF = WQ_OFF + WQ_BYTES
WO_BYTES = 576 * 1152
P_OFF = WO_OFF + WO_BYTES
SLAB = 64 * 36 * 1024
L = []
def e(s): L.append("    " + s)
def lab(s): L.append(s + ":")
def v(i, n=1): return "v%d" % i if n == 1 else "v[%d:%d]" % (i, i + n - 1)
def s(i, n=1): return "s%d" % i if n == 1 else "s[%d:%d]" % (i, i + n - 1)
def nop(n): e("s_nop %d" % (n - 1))
def srd(d, lo, nbytes, add=0):
    if add:
        e("s_add_u32 %s, %s, 0x%x" % (s(d), s(lo), add))
        e("s_addc_u32 %s, %s, 0" % (s(d + 1), s(lo + 1)))
    else:
        e("s_mov_b32 %s, %s" % (s(d), s(lo)))
        e("s_mov_b32 %s, %s" % (s(d + 1), s(lo + 1)))
    e("s_mov_b32 %s, 0x%x" % (s(d + 2), nbytes))
    e("s_mov_b32 %s, 0x00020000" % s(d + 3))
def mfma(d, a, b): e("v_mfma_f32_16x16x32_bf16 %s, %s, %s, %s" % (v(d, 4), v(a, 4), v(b, 4), v(d, 4)))
def kstart(name):
    L.append(".globl %s" % name); L.append(".p2align 8"); L.append(".type %s,@function" % name); lab(name)
def perm_pi(dst, src, t0, t1):
    e("v_and_b32 %s, 35, %s" % (v(dst), v(src)))
    e("v_bfe_u32 %s, %s, 2, 2" % (v(t0), v(src)))
    e("v_lshl_add_u32 %s, %s, 3, %s" % (v(dst), v(t0), v(dst)))
    e("v_bfe_u32 %s, %s, 4, 1" % (v(t1), v(src)))
    e("v_lshl_add_u32 %s, %s, 2, %s" % (v(dst), v(t1), v(dst)))
def divc(q, r, x, c, magic, sh):
    e("v_mul_u32_u24 %s, %d, %s" % (v(q), magic, v(x)))
    e("v_lshrrev_b32 %s, %d, %s" % (v(q), sh, v(q)))
    e("v_mul_u32_u24 %s, %d, %s" % (v(r), c, v(q)))
    e("v_sub_u32 %s, %s, %s" % (v(r), v(x), v(r)))
def bf16r(d, src):
    e("v_cvt_pk_bf16_f32 %s, %s, %s" % (v(d), v(src), v(src)))
    e("v_and_b32 %s, 0xffff0000, %s" % (v(d), v(d)))
def xreduce(a, t):
    for p in ("v_permlane32_swap_b32", "v_permlane16_swap_b32"):
        e("v_mov_b32 %s, %s" % (v(t), v(a)))
        nop(2)
        e("%s %s, %s" % (p, v(a), v(t)))
        nop(2)
        e("v_add_f32 %s, %s, %s" % (v(a), v(a), v(t)))

class Loop:
    pass
def mainloop(P):
    NT = len(P.tiles); D = P.D
    def wread(q, kk):
        base, o16, okk = P.tiles[q]
        if kk == 0: e("v_add_u32 %s, %s, %s" % (v(base), s(P.sDelta), v(base)))
        e("ds_read_b64_tr_b16 %s, %s offset:%d" % (v(P.WR + q * 4, 2), v(base), kk * okk))
        e("ds_read_b64_tr_b16 %s, %s offset:%d" % (v(P.WR + q * 4 + 2, 2), v(base), kk * okk + o16))
    def nextdelta():
        e("s_add_u32 %s, %s, %d" % (s(P.sRd), s(P.sRd), P.STAGE))
        e("s_cmp_ge_u32 %s, %d" % (s(P.sRd), P.STAGE * P.NS))
        e("s_cselect_b32 %s, %d, 0" % (s(P.sDelta), P.STAGE * P.NS))
        e("s_sub_u32 %s, %s, %s" % (s(P.sRd), s(P.sRd), s(P.sDelta)))
        e("s_sub_u32 %s, %d, %s" % (s(P.sDelta), P.STAGE, s(P.sDelta)))
    def dma(n):
        vo, sr, so, sbase, ldsoff, lanes = P.dmas[n]
        e("s_add_u32 m0, %s, %s" % (s(P.sWr), s(sbase)) if not ldsoff else "s_add_u32 %s, %s, %d" % (s(P.sT), s(sbase), ldsoff))
        if ldsoff: e("s_add_u32 m0, %s, %s" % (s(P.sWr), s(P.sT)))
        if lanes < 64:
            e("s_mov_b32 exec_lo, 0x%x" % ((1 << min(lanes, 32)) - 1)); e("s_mov_b32 exec_hi, 0")
            assert lanes <= 32
        else: e("s_nop 0")
        e("buffer_load_dwordx4 %s, %s, %s offen lds" % (v(vo), s(sr, 4), s(so)))
        if lanes < 64: e("s_mov_b64 exec, -1")
        if n == len(P.dmas) - 1:
            for so2, st in P.dsteps: e("s_add_u32 %s, %s, %d" % (s(so2), s(so2), st))
            e("s_add_u32 %s, %s, %d" % (s(P.sWr), s(P.sWr), P.STAGE))
            e("s_cmp_ge_u32 %s, %d" % (s(P.sWr), P.STAGE * P.NS))
            e("s_cselect_b32 %s, 0, %s" % (s(P.sWr), s(P.sWr)))
    def aload(st, f, kk):
        e("buffer_load_dwordx4 %s, %s, %s, %s offen offset:%d" % (v(P.act(st, f), 4), v(P.vA[f]), s(P.sAct, 4), s(P.sOffA), kk * 1024))
    NA = len(P.vA); ND = len(P.dmas)
    e("s_mov_b32 %s, 0" % s(P.sWr)); e("s_mov_b32 %s, 0" % s(P.sRd)); e("s_mov_b32 %s, 0" % s(P.sDelta))
    for n in range(ND): dma(n)
    for st in range(2):
        for f in range(NA): aload(st, f, st)
    for k in range(P.NS - 2):
        for n in range(ND): dma(n)
    e("s_add_u32 %s, %s, 2048" % (s(P.sOffA), s(P.sOffA)))
    for r in range(P.nacc): e("v_mov_b32 %s, 0" % v(r))
    e("s_waitcnt vmcnt(%d)" % ((P.NS - 3) * ND)); e("s_barrier")
    for q in range(D): wread(q, 0)
    lab(P.name + "_LOOP")
    dd = [[], [], []]
    for n in range(ND): dd[n * 3 // ND].append(n)
    cnt = [NA + len(dd[k]) for k in range(3)]
    e("s_barrier")
    for kk in range(3):
        w = len(dd[(kk - 2) % 3]) + cnt[(kk - 1) % 3]
        e("s_waitcnt vmcnt(%d)" % w)
        if kk == 2: nextdelta()
        vm = [("a", f) for f in range(NA)] + [("d", n) for n in dd[kk]]
        pos = {}
        for i, x in enumerate(vm): pos.setdefault(P.vmpos[i], []).append(x)
        for q in range(NT):
            e("s_waitcnt lgkmcnt(%d)" % (2 * D - 2))
            qn = q + D
            if qn < NT: wread(qn, kk)
            else: wread(qn - NT, (kk + 1) % 3)
            mfma(P.acc(q, 0), P.WR + q * 4, P.act(kk, 0))
            mfma(P.acc(q, 1), P.WR + q * 4, P.act(kk, 1))
            P.extra(q, kk)
            for t, x in pos.get(q, []):
                if t == "a": aload((kk + 2) % 3, x, kk)
                else: dma(x)
    e("s_add_u32 %s, %s, 3072" % (s(P.sOffA), s(P.sOffA)))
    e("s_sub_u32 %s, %s, 1" % (s(P.sCnt), s(P.sCnt)))
    e("s_cmp_lg_u32 %s, 0" % s(P.sCnt)); e("s_cbranch_scc1 %s_LOOP" % P.name)
    e("s_waitcnt vmcnt(0) lgkmcnt(0)"); e("s_barrier")

def common_ids(vL, vG, vM, T, sWave):
    e("v_and_b32 %s, 63, v0" % v(vL))
    e("v_lshrrev_b32 %s, 6, v0" % v(T))
    e("v_lshrrev_b32 %s, 4, %s" % (v(vG), v(vL)))
    e("v_readfirstlane_b32 %s, %s" % (s(sWave), v(T)))
    e("v_and_b32 %s, 15, %s" % (v(vM), v(vL)))
def w_setup(vL, T, sWave, sCol, stride, vD, vDT, vMain, vTail, TAILB):
    e("s_mul_i32 s40, %s, 12" % s(sWave))
    e("s_mul_i32 s41, %s, 288" % s(sCol)); e("s_and_b32 s42, %s, 1" % s(sCol))
    e("s_lshl_b32 s43, s42, 5"); e("s_add_u32 s43, s43, s41")
    e("s_xor_b32 s42, s42, 1"); e("s_lshl_b32 s42, s42, 8"); e("s_add_u32 s42, s42, s41")
    e("s_mov_b32 s41, %d" % stride)
    for n in range(3):
        e("v_lshrrev_b32 %s, 4, %s" % (v(T), v(vL)))
        e("v_add3_u32 %s, %s, s40, %d" % (v(T), v(T), 4 * n))
        e("v_bfe_u32 %s, %s, 1, 3" % (v(T + 1), v(vL)))
        e("v_xor_b32 %s, %s, %s" % (v(T + 1), v(T + 1), v(T)))
        e("v_and_b32 %s, 7, %s" % (v(T + 1), v(T + 1)))
        e("v_mul_lo_u32 %s, %s, s41" % (v(T), v(T)))
        e("v_lshl_add_u32 %s, %s, 5, %s" % (v(T), v(T + 1), v(T)))
        e("v_and_b32 %s, 1, %s" % (v(T + 1), v(vL)))
        e("v_lshl_add_u32 %s, %s, 4, %s" % (v(T), v(T + 1), v(T)))
        e("v_add_u32 %s, s43, %s" % (v(vD + n), v(T)))
    e("v_lshrrev_b32 %s, 1, %s" % (v(T), v(vL)))
    e("v_add_u32 %s, s40, %s" % (v(T), v(T)))
    e("v_mul_lo_u32 %s, %s, s41" % (v(T), v(T)))
    e("v_lshl_add_u32 %s, %s, 4, %s" % (v(T), v(T + 1), v(T)))
    e("v_add_u32 %s, s42, %s" % (v(vDT), v(T)))
    e("v_lshrrev_b32 %s, 2, %s" % (v(T), v(vL)))
    e("v_and_b32 %s, 3, %s" % (v(T + 1), v(vL)))
    e("v_and_b32 %s, 7, %s" % (v(T + 2), v(T)))
    e("v_lshlrev_b32 %s, 8, %s" % (v(T + 3), v(T)))
    e("v_lshl_add_u32 %s, %s, 5, %s" % (v(T + 3), v(T + 2), v(T + 3)))
    e("v_lshl_add_u32 %s, %s, 3, %s" % (v(vMain), v(T + 1), v(T + 3)))
    for i in range(1, 8): e("v_xor_b32 %s, %d, %s" % (v(vMain + i), i << 5, v(vMain)))
    e("v_lshlrev_b32 %s, 3, %s" % (v(vTail), v(vL)))
    e("v_add_u32 %s, %d, %s" % (v(vTail), TAILB, v(vTail)))

def gen_k0():
    sX, sXN, sWQ, sWQP, sWO, sWOP = 8, 12, 16, 20, 24, 28
    kstart("k0_kernel")
    e("s_cmp_ge_u32 s2, 256"); e("s_cbranch_scc1 K0_END")
    e("s_load_dwordx4 s[48:51], s[0:1], 0"); e("s_load_dwordx2 s[52:53], s[0:1], 16"); e("s_load_dwordx2 s[54:55], s[0:1], 64")
    e("v_lshrrev_b32 v1, 7, v0"); e("v_and_b32 v2, 127, v0"); e("s_nop 0")
    e("v_readfirstlane_b32 s33, v1")
    e("s_waitcnt lgkmcnt(0)")
    srd(sX, 48, 2048 * 1152); srd(sWQ, 50, 576 * 3456); srd(sWO, 52, WO_BYTES)
    srd(sXN, 54, O_BYTES, XN_OFF); srd(sWQP, 54, WQ_BYTES, WQ_OFF); srd(sWOP, 54, WO_BYTES, WO_OFF)
    e("s_cmp_eq_u32 s33, 0"); e("s_cbranch_scc0 K0_PACK")
    e("s_lshl_b32 s40, s2, 3")
    e("v_lshrrev_b32 v3, 4, v2"); e("v_add_u32 v3, s40, v3"); e("v_and_b32 v4, 15, v2")
    e("v_mul_u32_u24 v5, 1152, v3"); e("v_lshl_add_u32 v5, v4, 3, v5")
    for i in range(9): e("buffer_load_dwordx2 %s, v5, %s, 0 offen offset:%d" % (v(10 + 2 * i, 2), s(sX, 4), i * 128))
    e("v_lshrrev_b32 v6, 4, v3"); e("v_mul_u32_u24 v6, 18, v6"); e("v_lshrrev_b32 v7, 3, v4"); e("v_add_u32 v6, v6, v7")
    e("v_lshlrev_b32 v6, 10, v6"); e("v_and_b32 v7, 3, v4"); e("v_lshl_add_u32 v6, v7, 8, v6")
    e("v_and_b32 v7, 15, v3"); e("v_lshl_add_u32 v6, v7, 4, v6"); e("v_bfe_u32 v7, v4, 2, 1"); e("v_lshl_add_u32 v6, v7, 3, v6")
    e("s_mov_b32 s40, 0x%08x" % f2u(1.0 / 576.0)); e("s_mov_b32 s41, 0x%08x" % f2u(1e-5))
    X = 32
    e("v_mov_b32 v8, 0")
    for i in range(18):
        if i % 2 == 0: e("s_waitcnt vmcnt(%d)" % (8 - i // 2))
        e("v_lshlrev_b32 %s, 16, %s" % (v(X + 2 * i), v(10 + i)))
        e("v_and_b32 %s, 0xffff0000, %s" % (v(X + 2 * i + 1), v(10 + i)))
        e("v_add_f32 v8, v8, %s" % v(X + 2 * i)); e("v_add_f32 v8, v8, %s" % v(X + 2 * i + 1))
    def rowred(r):
        for sh in (8, 4, 2, 1):
            nop(2); e("v_add_f32_dpp %s, %s, %s row_ror:%d row_mask:0xf bank_mask:0xf" % (v(r), v(r), v(r), sh))
    rowred(8)
    e("v_mul_f32 v8, s40, v8")
    bf16r(9, 8)
    e("v_mov_b32 v70, 0")
    for i in range(36):
        e("v_sub_f32 v71, %s, v8" % v(X + i)); e("v_fmac_f32 v70, v71, v71")
    rowred(70)
    e("v_mul_f32 v70, s40, v70"); bf16r(70, 70)
    e("v_add_f32 v70, s41, v70"); bf16r(70, 70)
    e("v_sqrt_f32 v70, v70"); nop(1); bf16r(70, 70)
    e("v_rcp_f32 v70, v70")
    for i in range(18):
        a = X + 2 * i
        e("v_sub_f32 %s, %s, v9" % (v(a), v(a))); e("v_sub_f32 %s, %s, v9" % (v(a + 1), v(a + 1)))
        e("v_cvt_pk_bf16_f32 %s, %s, %s" % (v(a), v(a), v(a + 1)))
        e("v_and_b32 %s, 0xffff0000, %s" % (v(a + 1), v(a))); e("v_lshlrev_b32 %s, 16, %s" % (v(a), v(a)))
        e("v_mul_f32 %s, %s, v70" % (v(a), v(a))); e("v_mul_f32 %s, %s, v70" % (v(a + 1), v(a + 1)))
        e("v_cvt_pk_bf16_f32 %s, %s, %s" % (v(10 + i), v(a), v(a + 1)))
        if i % 2 == 1:
            k = i // 2
            e("s_mov_b32 s42, %d" % (k * 2048))
            e("buffer_store_dwordx2 %s, v6, %s, s42 offen" % (v(10 + i - 1, 2), s(sXN, 4)))
    e("s_endpgm")
    lab("K0_PACK")
    e("s_lshr_b32 s40, s2, 3"); e("s_and_b32 s41, s2, 7"); e("s_mul_i32 s41, s41, 72"); e("s_mul_i32 s40, s40, 36")
    e("v_lshrrev_b32 v3, 5, v2"); e("v_add_u32 v3, s41, v3"); e("v_mul_u32_u24 v3, 3456, v3")
    e("v_and_b32 v4, 31, v2")
    e("v_lshrrev_b32 v5, 3, v4"); e("v_and_b32 v6, 7, v4")
    e("v_min_u32 v7, 2, v6")
    e("v_cmp_eq_u32 vcc, 3, v5"); nop(2)
    e("v_cndmask_b32 v5, v5, v7, vcc"); e("v_cndmask_b32 v6, v6, 8, vcc")
    e("v_mul_u32_u24 v5, 1152, v5"); e("v_lshl_add_u32 v5, v6, 2, v5"); e("v_add3_u32 v3, v3, v5, s40")
    e("s_mul_i32 s42, s2, 9216"); e("v_lshlrev_b32 v4, 2, v2"); e("v_add_u32 v4, s42, v4")
    for i in range(18):
        e("s_mov_b32 s43, %d" % (i * 4 * 3456))
        e("buffer_load_dword %s, v3, %s, s43 offen" % (v(10 + i), s(sWQ, 4)))
    e("s_mul_i32 s40, s2, 162")
    for n in range(2):
        b = 40 + n * 12
        e("v_add_u32 %s, s40, v2" % v(b))
        if n: e("v_add_u32 %s, 128, %s" % (v(b), v(b)))
        e("s_mov_b32 s41, 59652324"); e("v_mul_hi_u32 %s, %s, s41" % (v(b + 1), v(b)))
        e("v_mul_u32_u24 %s, 72, %s" % (v(b + 2), v(b + 1))); e("v_sub_u32 %s, %s, %s" % (v(b + 2), v(b), v(b + 2)))
        e("v_and_b32 %s, 31, %s" % (v(b + 3), v(b + 1)))
        perm_pi(b + 4, b + 3, b + 5, b + 6)
        e("v_and_b32 %s, 0xffe0, %s" % (v(b + 3), v(b + 1))); e("v_add_u32 %s, %s, %s" % (v(b + 4), v(b + 4), v(b + 3)))
        e("v_lshrrev_b32 %s, 4, %s" % (v(b + 5), v(b + 4))); e("v_mul_u32_u24 %s, 18, %s" % (v(b + 5), v(b + 5)))
        e("v_and_b32 %s, 15, %s" % (v(b + 6), v(b + 4))); e("v_add_u32 %s, %s, %s" % (v(b + 5), v(b + 5), v(b + 6)))
        e("v_bfe_u32 %s, %s, 1, 5" % (v(b + 6), v(b + 4))); e("v_mul_u32_u24 %s, 18, %s" % (v(b + 6), v(b + 6)))
        e("v_and_b32 %s, 1, %s" % (v(b + 7), v(b + 4))); e("v_add3_u32 %s, %s, %s, 16" % (v(b + 6), v(b + 6), v(b + 7)))
        e("v_cmp_gt_u32 vcc, 512, %s" % v(b + 4)); nop(2)
        e("v_cndmask_b32 %s, %s, %s, vcc" % (v(b + 5), v(b + 6), v(b + 5)))
        e("v_mul_u32_u24 %s, 1152, %s" % (v(b + 5), v(b + 5))); e("v_lshl_add_u32 %s, %s, 4, %s" % (v(b + 5), v(b + 2), v(b + 5)))
        e("v_lshlrev_b32 %s, 4, %s" % (v(b), v(b)))
        if n:
            e("v_mov_b32 %s, 0x80000000" % v(b + 7)); e("v_cmp_gt_u32 vcc, 34, v2"); nop(2)
            e("v_cndmask_b32 %s, %s, %s, vcc" % (v(b), v(b + 7), v(b))); e("v_cndmask_b32 %s, %s, %s, vcc" % (v(b + 5), v(b + 7), v(b + 5)))
        e("buffer_load_dwordx4 %s, %s, %s, 0 offen" % (v(b + 8, 4), v(b + 5), s(sWO, 4)))
    for i in range(18):
        e("s_waitcnt vmcnt(19)")
        e("buffer_store_dword %s, v4, %s, 0 offen offset:%d" % (v(10 + i), s(sWQP, 4), 0) if i == 0 else
          "buffer_store_dword %s, v4, %s, s43 offen" % (v(10 + i), s(sWQP, 4)))
        e("s_mov_b32 s43, %d" % ((i + 1) * 512))
    e("s_waitcnt vmcnt(18)")
    for n in range(2):
        b = 40 + n * 12
        e("buffer_store_dwordx4 %s, %s, %s, 0 offen" % (v(b + 8, 4), v(b), s(sWOP, 4)))
    lab("K0_END")
    e("s_endpgm")

K1_STAGE = 96 * 416; K1_NS = 4; K1_LDS = K1_STAGE * K1_NS
def gen_k1():
    P = Loop(); P.name = "K1"; P.STAGE = K1_STAGE; P.NS = K1_NS; P.D = 6
    EX = 104; ACT = 108; WR = 144; vMain = 196; vTail = 204; vQK = 205; vD = 209; vDT = 212; vDQ = 213
    vA0, vA1, vAH = 215, 216, 217; vL, vG, vM, vTid = 218, 219, 220, 221; T = 224
    acc = lambda i, u: (i * 2 + u) * 4
    P.acc = acc; P.act = lambda st, f: ACT + (st * 3 + f) * 4; P.WR = WR; P.nacc = 108
    sX, sW1, sWQ, sH, sO = 8, 12, 16, 20, 24
    sWave, sJ, sMt = 28, 29, 30
    P.sCnt, P.sDelta, P.sRd, P.sWr, P.sT, P.sOffA, P.sAct = 31, 32, 33, 34, 35, 36, sX
    sOffW1, sOffWQ, sBM, sBT, sBQ = 37, 38, 39, 44, 45
    TAILB = 96 * 256; QKB = TAILB + 96 * 32
    kstart("k1_kernel")
    e("s_cmp_ge_u32 s2, 256"); e("s_cbranch_scc1 K1_END")
    e("s_load_dwordx2 s[52:53], s[0:1], 32"); e("s_load_dwordx2 s[54:55], s[0:1], 64")
    common_ids(vL, vG, vM, T, sWave)
    e("v_mov_b32 %s, v0" % v(vTid))
    e("s_and_b32 s40, s2, 7"); e("s_lshr_b32 s41, s2, 3")
    e("s_lshr_b32 %s, s41, 2" % s(sMt)); e("s_and_b32 s41, s41, 3"); e("s_lshl_b32 s40, s40, 2"); e("s_add_u32 %s, s40, s41" % s(sJ))
    w_setup(vL, T, sWave, sJ, 9216, vD, vDT, vMain, vTail, TAILB)
    e("s_mul_i32 s41, %s, %d" % (s(sJ), 576 * 128))
    for n in range(2):
        e("v_lshrrev_b32 %s, 3, %s" % (v(T), v(vL)))
        e("v_add3_u32 %s, %s, s40, %d" % (v(T), v(T), 8 * n))
        e("v_lshrrev_b32 %s, 1, %s" % (v(T + 1), v(T)))
        e("v_bfe_u32 %s, %s, 1, 2" % (v(T + 2), v(vL)))
        e("v_xor_b32 %s, %s, %s" % (v(T + 1), v(T + 1), v(T + 2)))
        e("v_and_b32 %s, 3, %s" % (v(T + 1), v(T + 1)))
        e("v_lshlrev_b32 %s, 7, %s" % (v(T), v(T)))
        e("v_lshl_add_u32 %s, %s, 5, %s" % (v(T), v(T + 1), v(T)))
        e("v_and_b32 %s, 1, %s" % (v(T + 1), v(vL)))
        e("v_lshl_add_u32 %s, %s, 4, %s" % (v(T), v(T + 1), v(T)))
        e("v_add_u32 %s, s41, %s" % (v(vDQ + n), v(T)))
    e("v_lshrrev_b32 %s, 2, %s" % (v(T), v(vL)))
    e("v_bfe_u32 %s, %s, 3, 2" % (v(T + 1), v(vL)))
    e("v_lshlrev_b32 %s, 7, %s" % (v(T), v(T)))
    e("v_lshl_add_u32 %s, %s, 5, %s" % (v(T), v(T + 1), v(T)))
    e("v_and_b32 %s, 3, %s" % (v(T + 1), v(vL)))
    e("v_lshl_add_u32 %s, %s, 3, %s" % (v(T), v(T + 1), v(T)))
    for i in range(4):
        e("v_xor_b32 %s, %d, %s" % (v(vQK + i), i << 5, v(T)))
        e("v_add_u32 %s, %d, %s" % (v(vQK + i), QKB, v(vQK + i)))
    e("s_lshl_b32 s40, %s, 4" % s(sMt)); e("s_lshl_b32 s41, %s, 1" % s(sWave)); e("s_add_u32 s41, s41, s40")
    e("s_mul_i32 s41, s41, 18432")
    e("v_lshlrev_b32 %s, 4, %s" % (v(T), v(vL)))
    e("v_add_u32 %s, s41, %s" % (v(vA0), v(T))); e("v_add_u32 %s, 18432, %s" % (v(vA1), v(vA0)))
    e("s_sub_u32 s41, s40, 1"); e("s_mul_i32 s41, s41, 18432")
    e("s_cmp_eq_u32 %s, 0" % s(sMt)); e("s_cselect_b32 s41, 0x80000000, s41")
    e("s_cmp_gt_u32 %s, 2" % s(sWave)); e("s_cselect_b32 s41, 0x80000000, s41")
    e("v_add_u32 %s, s41, %s" % (v(vAH), v(T)))
    e("s_mul_i32 %s, %s, 3072" % (s(sBM), s(sWave)))
    e("s_mul_i32 %s, %s, 384" % (s(sBT), s(sWave))); e("s_add_u32 %s, %s, %d" % (s(sBT), s(sBT), TAILB))
    e("s_mul_i32 %s, %s, 1536" % (s(sBQ), s(sWave))); e("s_add_u32 %s, %s, %d" % (s(sBQ), s(sBQ), QKB))
    e("s_mov_b32 %s, 0" % s(sOffW1)); e("s_mov_b32 %s, 0" % s(sOffWQ)); e("s_mov_b32 %s, 0" % s(P.sOffA)); e("s_mov_b32 %s, 6" % s(P.sCnt))
    e("s_waitcnt lgkmcnt(0)")
    srd(sX, 54, O_BYTES, XN_OFF); srd(sW1, 52, 576 * 9216); srd(sH, 54, H_BYTES, H_OFF); srd(sO, 54, O_BYTES, O_OFF)
    srd(sWQ, 54, WQ_BYTES, WQ_OFF)
    e("s_add_u32 s40, %s, 1" % s(sJ)); e("s_mul_i32 %s, s40, %d" % (s(sWQ + 2), 576 * 128))
    P.tiles = [(vMain + i, 4096, 8192) for i in range(8)] + [(vTail, 512, 1024)] + [(vQK + i, 2048, 4096) for i in range(4)]
    P.dmas = [(vD, sW1, sOffW1, sBM, 0, 64), (vD + 1, sW1, sOffW1, sBM, 1024, 64), (vD + 2, sW1, sOffW1, sBM, 2048, 64),
              (vDT, sW1, sOffW1, sBT, 0, 24), (vDQ, sWQ, sOffWQ, sBQ, 0, 64), (vDQ + 1, sWQ, sOffWQ, sBQ, 1024, 32)]
    P.dsteps = [(sOffW1, 96 * 9216), (sOffWQ, 96 * 128)]
    P.vA = [vA0, vA1, vAH]; P.vmpos = [0, 2, 4, 7, 10]
    def extra(q, kk):
        if q >= 10:
            e("s_cmp_eq_u32 %s, %d" % (s(sWave), q - 10)); e("s_cbranch_scc0 K1_X%d_%d" % (q, kk))
            mfma(EX, WR + q * 4, P.act(kk, 2))
            lab("K1_X%d_%d" % (q, kk))
    P.extra = extra
    mainloop(P)
    QB, KB, VB = 0, 20480, 20480 + 21760
    e("s_lshl_b32 s44, %s, 5" % s(sWave))
    e("v_add_u32 %s, s44, %s" % (v(T + 9), v(vM)))
    e("v_mul_u32_u24 %s, 80, %s" % (v(T + 9), v(T + 9)))
    e("v_lshl_add_u32 %s, %s, 4, %s" % (v(T + 8), v(vG), v(T + 9)))
    e("v_mul_u32_u24 %s, %d, %s" % (v(T + 10), VB + 1280 - QB, v(vG)))
    e("v_add_u32 %s, %s, %s" % (v(T + 10), v(T + 10), v(T + 9)))
    for u in range(2):
        e("ds_write_b128 %s, %s offset:%d" % (v(T + 8), v(acc(9, u), 4), QB + u * 1280))
        e("ds_write_b128 %s, %s offset:%d" % (v(T + 8), v(acc(10, u), 4), KB + 1280 + u * 1280))
        e("ds_write_b128 %s, %s offset:%d" % (v(T + 8), v(acc(11, u), 4), VB + 1280 + u * 1280))
        e("s_mov_b32 exec_hi, 0")
        e("ds_write_b64 %s, %s offset:%d" % (v(T + 10), v(acc(12, u), 2), QB + 64 + u * 1280))
        e("s_mov_b32 exec_lo, 0xffff")
        e("ds_write_b64 %s, %s offset:%d" % (v(T + 9), v(acc(12, u) + 2, 2), KB + 1280 + 64 + u * 1280))
        e("s_mov_b64 exec, -1")
    e("v_mul_u32_u24 %s, 80, %s" % (v(T + 9), v(vM)))
    e("v_lshl_add_u32 %s, %s, 4, %s" % (v(T + 10), v(vG), v(T + 9)))
    e("s_cmp_gt_u32 %s, 1" % s(sWave)); e("s_cbranch_scc1 K1_H2")
    e("s_mul_i32 s44, %s, %d" % (s(sWave), VB - KB))
    e("v_add_u32 %s, s44, %s" % (v(T + 10), v(T + 10)))
    e("ds_write_b128 %s, %s offset:%d" % (v(T + 10), v(EX, 4), KB))
    e("s_branch K1_HD")
    lab("K1_H2")
    e("s_cmp_eq_u32 %s, 2" % s(sWave)); e("s_cbranch_scc0 K1_HD")
    e("s_mov_b64 exec, 0xffff")
    e("ds_write_b64 %s, %s offset:%d" % (v(T + 9), v(EX + 2, 2), KB + 64))
    e("s_mov_b32 exec_lo, 0xffff0000")
    e("ds_write_b64 %s, %s offset:%d" % (v(T + 9), v(EX, 2), VB + 64))
    e("s_mov_b64 exec, -1")
    lab("K1_HD")
    e("s_mul_i32 s40, %s, 9" % s(sJ)); e("s_and_b32 s41, %s, 1" % s(sJ))
    e("s_add_u32 s42, s40, s41"); e("s_lshr_b32 s42, s42, 1"); e("s_lshl_b32 s42, s42, 10")
    e("s_xor_b32 s43, s41, 1"); e("s_lshl_b32 s43, s43, 3"); e("s_add_u32 s43, s43, s40"); e("s_lshr_b32 s43, s43, 1"); e("s_lshl_b32 s43, s43, 10")
    e("s_lshl_b32 s41, s41, 3"); e("s_add_u32 s43, s43, s41")
    e("s_lshl_b32 s40, %s, 4" % s(sMt)); e("s_lshl_b32 s41, %s, 1" % s(sWave)); e("s_add_u32 s40, s40, s41"); e("s_mul_i32 s40, s40, %d" % (144 * 1024))
    e("v_lshlrev_b32 %s, 4, %s" % (v(T + 7), v(vL))); e("v_add_u32 %s, s40, %s" % (v(T + 7), v(T + 7)))
    e("s_add_u32 s40, s42, %d" % (144 * 1024)); e("s_add_u32 s41, s43, %d" % (144 * 1024))
    for u in range(2):
        for i in range(9):
            a0 = acc(i, u); dst = WR + (u * 9 + i) * 2 if i < 8 else WR + 40 + u * 2
            dst = WR + u * 16 + i * 2 if i < 8 else WR + 32 + u * 2
            for r in range(4): e("v_max_f32 %s, 0, %s" % (v(a0 + r), v(a0 + r)))
            e("v_cvt_pk_bf16_f32 %s, %s, %s" % (v(dst), v(a0), v(a0 + 1)))
            e("v_cvt_pk_bf16_f32 %s, %s, %s" % (v(dst + 1), v(a0 + 2), v(a0 + 3)))
            if i == 8: e("buffer_store_dwordx2 %s, %s, %s, %s offen" % (v(dst, 2), v(T + 7), s(sH, 4), ("s43", "s41")[u]))
            elif i & 1: e("buffer_store_dwordx4 %s, %s, %s, %s offen offset:%d" % (v(dst - 2, 4), v(T + 7), s(sH, 4), ("s42", "s40")[u], (i >> 1) * 1024))
    e("s_waitcnt lgkmcnt(0)"); e("s_barrier")
    Qr = 0; Kr = 12; LG = 112; Or = 124; vB, vBt, vRow = T + 12, T + 13, T + 14
    e("v_lshrrev_b32 %s, 5, %s" % (v(T + 15), v(vTid)))
    e("v_lshl_add_u32 %s, %s, 4, %s" % (v(vRow), v(T + 15), v(vM)))
    e("v_and_b32 %s, 1, %s" % (v(T), v(vG)))
    e("v_mul_u32_u24 %s, 80, %s" % (v(T + 1), v(vRow)))
    e("v_lshl_add_u32 %s, %s, 5, %s" % (v(vB), v(T), v(T + 1)))
    e("v_lshl_add_u32 %s, %s, 2, %s" % (v(vBt), v(T), v(T + 1)))
    def rec(dst, base_off):
        e("ds_read_b128 %s, %s offset:%d" % (v(dst, 4), v(vB), base_off))
        e("ds_read_b128 %s, %s offset:%d" % (v(dst + 4, 4), v(vB), base_off + 16))
        e("ds_read_b32 %s, %s offset:%d" % (v(dst + 8), v(vBt), base_off + 64))
    rec(Qr, QB)
    for w in range(4): rec(Kr + w * 12, KB + 1280 - 160 * w)
    e("s_lshl_b32 s40, %s, 8" % s(sMt))
    e("v_add_u32 %s, s40, %s" % (v(vRow), v(vRow)))
    e("s_mov_b32 s41, 0x%08x" % f2u(18 ** -0.5 * 1.4426950408889634))
    e("v_mov_b32 %s, 0x%08x" % (v(T + 2), f2u(-1e9 * 1.4426950408889634)))
    for w in range(8):
        e("s_waitcnt lgkmcnt(%d)" % (9 if w < 5 else 9 - 3 * (w - 4)))
        kr = Kr + w * 12
        e("v_mul_f32 %s, %s, %s" % (v(LG + w), v(Qr), v(kr)))
        for d in range(1, 9): e("v_fmac_f32 %s, %s, %s" % (v(LG + w), v(Qr + d), v(kr + d)))
        if w < 4: rec(Kr + (w + 4) * 12, KB + 1280 - 160 * (w + 4))
    for w in range(5): rec(Kr + w * 12, VB + 1280 - 160 * w)
    for w in range(8): e("v_mov_b32 %s, %s" % (v(Or + w), v(LG + w)))
    nop(2)
    for w in range(8): e("v_permlane16_swap_b32 %s, %s" % (v(LG + w), v(Or + w)))
    nop(2)
    for w in range(8):
        e("v_add_f32 %s, %s, %s" % (v(LG + w), v(LG + w), v(Or + w)))
        e("v_cmp_le_u32 vcc, %d, %s" % (2 * w, v(vRow)))
        e("v_mul_f32 %s, s41, %s" % (v(LG + w), v(LG + w)))
        nop(1)
        e("v_cndmask_b32 %s, %s, %s, vcc" % (v(LG + w), v(T + 2), v(LG + w)))
    e("v_max3_f32 %s, %s, %s, %s" % (v(T + 3), v(LG), v(LG + 1), v(LG + 2)))
    e("v_max3_f32 %s, %s, %s, %s" % (v(T + 3), v(T + 3), v(LG + 3), v(LG + 4)))
    e("v_max3_f32 %s, %s, %s, %s" % (v(T + 3), v(T + 3), v(LG + 5), v(LG + 6)))
    e("v_max_f32 %s, %s, %s" % (v(T + 3), v(T + 3), v(LG + 7)))
    for w in range(8):
        e("v_sub_f32 %s, %s, %s" % (v(LG + w), v(LG + w), v(T + 3)))
        e("v_exp_f32 %s, %s" % (v(LG + w), v(LG + w)))
    nop(1)
    e("v_add_f32 %s, %s, %s" % (v(T + 4), v(LG), v(LG + 1)))
    for w in range(2, 8): e("v_add_f32 %s, %s, %s" % (v(T + 4), v(T + 4), v(LG + w)))
    e("v_rcp_f32 %s, %s" % (v(T + 4), v(T + 4)))
    for w in range(8):
        e("s_waitcnt lgkmcnt(%d)" % (3 * (min(w + 4, 7) - w)))
        kr = Kr + w * 12
        for d in range(9):
            if w == 0: e("v_mul_f32 %s, %s, %s" % (v(Or + d), v(LG), v(kr + d)))
            else: e("v_fmac_f32 %s, %s, %s" % (v(Or + d), v(LG + w), v(kr + d)))
        if w + 5 < 8: rec(Kr + (w + 5) * 12, VB + 1280 - 160 * (w + 5))
    for d in range(9): e("v_mul_f32 %s, %s, %s" % (v(Or + d), v(T + 4), v(Or + d)))
    for d in range(4): e("v_cvt_pk_bf16_f32 %s, %s, %s" % (v(Qr + d), v(Or + 2 * d), v(Or + 2 * d + 1)))
    e("v_cvt_pk_bf16_f32 %s, %s, %s" % (v(Qr + 4), v(Or + 8), v(Or + 8)))
    e("s_lshl_b32 s40, %s, 4" % s(sMt))
    e("v_add_u32 %s, s40, %s" % (v(T + 5), v(T + 15)))
    e("v_mul_u32_u24 %s, 18432, %s" % (v(T + 5), v(T + 5)))
    e("v_lshl_add_u32 %s, %s, 4, %s" % (v(T + 5), v(vM), v(T + 5)))
    e("v_lshl_add_u32 %s, %s, 8, %s" % (v(T + 6), v(T), v(T + 5)))
    e("v_lshl_add_u32 %s, %s, 1, %s" % (v(T + 7), v(T), v(T + 5)))
    e("s_lshl_b32 s42, %s, 9" % s(sJ))
    e("s_lshr_b32 s43, %s, 2" % s(sJ)); e("s_lshl_b32 s43, s43, 8"); e("s_and_b32 s41, %s, 3" % s(sJ)); e("s_lshl_b32 s41, s41, 2")
    e("s_add_u32 s43, s43, s41"); e("s_add_u32 s43, s43, 16384")
    e("buffer_store_dwordx4 %s, %s, %s, s42 offen" % (v(Qr, 4), v(T + 6), s(sO, 4)))
    e("buffer_store_short %s, %s, %s, s43 offen" % (v(Qr + 4), v(T + 7), s(sO, 4)))
    lab("K1_END")
    e("s_endpgm")

K2_STAGE = 96 * 288; K2_NS = 4; K2_LDS = K2_STAGE * K2_NS
def gen_k2():
    P = Loop(); P.name = "K2"; P.STAGE = K2_STAGE; P.NS = K2_NS; P.D = 6
    ACT = 72; WR = 96; vMain = 132; vTail = 140; vD = 141; vDT = 144; vA0, vA1 = 145, 146; vL, vG, vM = 147, 148, 149; T = 152
    acc = lambda i, u: (i * 2 + u) * 4
    P.acc = acc; P.act = lambda st, f: ACT + (st * 2 + f) * 4; P.WR = WR; P.nacc = 72
    sW, sA, sP = 8, 12, 16
    sWave, sKs, sMt, sNt = 28, 29, 30, 46
    P.sCnt, P.sDelta, P.sRd, P.sWr, P.sT, P.sOffA, P.sAct = 31, 32, 33, 34, 35, 36, sA
    sOffW, sBM, sBT = 37, 39, 44
    TAILB = 96 * 256
    kstart("k2_kernel")
    e("s_cmp_ge_u32 s2, 256"); e("s_cbranch_scc1 K2_END")
    e("s_load_dwordx2 s[50:51], s[0:1], 40"); e("s_load_dwordx2 s[54:55], s[0:1], 64")
    common_ids(vL, vG, vM, T, sWave)
    e("s_and_b32 %s, s2, 7" % s(sKs)); e("s_lshr_b32 s41, s2, 3")
    e("s_lshr_b32 %s, s41, 2" % s(sMt)); e("s_and_b32 %s, s41, 3" % s(sNt))
    w_setup(vL, T, sWave, sNt, 1152, vD, vDT, vMain, vTail, TAILB)
    e("s_cmp_eq_u32 %s, 7" % s(sKs)); e("s_cselect_b32 s42, 18, 144"); e("s_lshl_b32 s42, s42, 10")
    e("s_lshl_b32 s40, %s, 4" % s(sMt)); e("s_lshl_b32 s41, %s, 1" % s(sWave)); e("s_add_u32 s41, s41, s40")
    e("s_mul_i32 s41, s41, s42")
    e("v_lshlrev_b32 %s, 4, %s" % (v(T), v(vL)))
    e("v_add_u32 %s, s41, %s" % (v(vA0), v(T))); e("v_add_u32 %s, s42, %s" % (v(vA1), v(vA0)))
    e("s_mul_i32 %s, %s, 3072" % (s(sBM), s(sWave)))
    e("s_mul_i32 %s, %s, 384" % (s(sBT), s(sWave))); e("s_add_u32 %s, %s, %d" % (s(sBT), s(sBT), TAILB))
    e("s_cmp_ge_u32 %s, 6" % s(sKs)); e("s_cselect_b32 %s, 6, 7" % s(P.sCnt))
    e("s_waitcnt lgkmcnt(0)")
    srd(sP, 54, 8 * SLAB, P_OFF)
    e("s_cmp_eq_u32 %s, 7" % s(sKs)); e("s_cbranch_scc1 K2_SJOB")
    srd(sW, 50, 4608 * 1152); srd(sA, 54, H_BYTES, H_OFF)
    e("s_mul_i32 %s, %s, %d" % (s(sOffW), s(sKs), 21 * 32 * 1152)); e("s_mul_i32 %s, %s, %d" % (s(P.sOffA), s(sKs), 21 * 1024))
    e("s_mul_i32 s40, %s, %d" % (s(P.sCnt), 96 * 1152)); e("s_add_u32 %s, s40, %s" % (s(sW + 2), s(sOffW)))
    e("s_branch K2_GO")
    lab("K2_SJOB")
    srd(sW, 54, WO_BYTES, WO_OFF); srd(sA, 54, O_BYTES, O_OFF)
    e("s_mov_b32 %s, 0" % s(sOffW)); e("s_mov_b32 %s, 0" % s(P.sOffA))
    lab("K2_GO")
    P.tiles = [(vMain + i, 4096, 8192) for i in range(8)] + [(vTail, 512, 1024)]
    P.dmas = [(vD, sW, sOffW, sBM, 0, 64), (vDT, sW, sOffW, sBT, 0, 24), (vD + 1, sW, sOffW, sBM, 1024, 64), (vD + 2, sW, sOffW, sBM, 2048, 64)]
    P.dsteps = [(sOffW, 96 * 1152)]
    P.vA = [vA0, vA1]; P.vmpos = [0, 2, 4, 6]
    P.extra = lambda q, kk: None
    mainloop(P)
    e("s_lshl_b32 s40, %s, 3" % s(sMt)); e("s_add_u32 s40, s40, %s" % s(sWave)); e("s_mul_i32 s40, s40, 36")
    e("s_mul_i32 s41, %s, 9" % s(sNt)); e("s_add_u32 s40, s40, s41"); e("s_lshl_b32 s40, s40, 10")
    e("s_mul_i32 s41, %s, %d" % (s(sKs), SLAB)); e("s_add_u32 s40, s40, s41")
    e("s_and_b32 s41, %s, 1" % s(sNt)); e("s_lshl_b32 s42, s41, 10"); e("s_add_u32 s42, s42, s40"); e("s_add_u32 s43, s42, 4096")
    e("s_xor_b32 s41, s41, 1"); e("s_lshl_b32 s41, s41, 13"); e("s_add_u32 s41, s41, s40")
    e("v_lshlrev_b32 %s, 4, %s" % (v(T), v(vL)))
    for i in range(9):
        a0 = acc(i, 0); d = WR + i * 4
        for r in range(4): e("v_cvt_pk_bf16_f32 %s, %s, %s" % (v(d + r), v(a0 + 2 * r), v(a0 + 2 * r + 1)))
        e("buffer_store_dwordx4 %s, %s, %s, %s offen offset:%d" % (v(d, 4), v(T), s(sP, 4), ("s42", "s43", "s41")[i >> 2], (i & 3) * 1024))
    lab("K2_END")
    e("s_endpgm")

def gen_k3():
    sX, sP, sOut = 8, 12, 16
    kstart("k3_kernel")
    e("s_cmp_ge_u32 s2, 192"); e("s_cbranch_scc1 K3_END")
    e("s_load_dwordx2 s[48:49], s[0:1], 0"); e("s_load_dwordx2 s[50:51], s[0:1], 48"); e("s_load_dwordx2 s[54:55], s[0:1], 64")
    e("v_and_b32 v1, 63, v0"); e("v_lshrrev_b32 v2, 6, v0")
    e("s_mul_i32 s40, s2, 12288")
    e("v_mul_u32_u24 v5, 3072, v2"); e("v_lshl_add_u32 v5, v1, 4, v5"); e("v_add_u32 v5, s40, v5")
    e("v_and_b32 v6, 15, v1"); e("v_mul_u32_u24 v6, 400, v6"); e("v_mul_u32_u24 v7, 96, v2"); e("v_lshrrev_b32 v8, 4, v1")
    e("v_lshl_add_u32 v7, v8, 3, v7"); e("v_add_u32 v6, v6, v7")
    e("s_mul_hi_u32 s41, s2, 1431655766"); e("s_mul_i32 s42, s41, 3"); e("s_sub_u32 s42, s2, s42")
    e("s_mul_i32 s41, s41, %d" % (32 * 1152)); e("s_mul_i32 s42, s42, 384"); e("s_add_u32 s41, s41, s42")
    for n in range(3):
        e("v_add_u32 v9, %d, v0" % (256 * n))
        divc(10, 11, 9, 24, 2731, 16)
        e("v_mul_u32_u24 v9, 1152, v10"); e("v_lshl_add_u32 v9, v11, 4, v9"); e("v_add_u32 %s, s41, v9" % v(12 + n))
        e("v_mul_u32_u24 v9, 400, v10"); e("v_lshl_add_u32 %s, v11, 4, v9" % v(15 + n))
    e("s_waitcnt lgkmcnt(0)")
    srd(sX, 48, 2048 * 1152); srd(sOut, 50, 2048 * 1152); srd(sP, 54, 8 * SLAB, P_OFF)
    for k in range(8): e("s_mov_b32 s%d, %d" % (32 + k, k * SLAB))
    B = 32
    for t in range(3):
        for k in range(8):
            e("buffer_load_dwordx4 %s, v5, %s, s%d offen offset:%d" % (v(B + (t * 8 + k) * 4, 4), s(sP, 4), 32 + k, t * 1024))
    XR = 128
    for n in range(3): e("buffer_load_dwordx4 %s, %s, %s, 0 offen" % (v(XR + 4 * n, 4), v(12 + n), s(sX, 4)))
    e("s_mov_b32 s45, 0x%08x" % f2u(-1.4426950408889634)); e("s_mov_b32 s46, 0xffff0000")
    F = 140
    for t in range(3):
        b = B + t * 32
        for k in range(8):
            e("s_waitcnt vmcnt(%d)" % (26 - (t * 8 + k)))
            for r in range(4):
                src = b + k * 4 + r
                if k == 0:
                    e("v_lshlrev_b32 %s, 16, %s" % (v(F + 2 * r), v(src))); e("v_and_b32 %s, s46, %s" % (v(F + 2 * r + 1), v(src)))
                elif k < 7:
                    e("v_lshlrev_b32 v20, 16, %s" % v(src)); e("v_and_b32 v21, s46, %s" % v(src))
                    e("v_add_f32 %s, %s, v20" % (v(F + 2 * r), v(F + 2 * r))); e("v_add_f32 %s, %s, v21" % (v(F + 2 * r + 1), v(F + 2 * r + 1)))
                else:
                    e("v_lshlrev_b32 %s, 16, %s" % (v(F + 8 + 2 * r), v(src))); e("v_and_b32 %s, s46, %s" % (v(F + 8 + 2 * r + 1), v(src)))
        for r in range(8):
            e("v_mul_f32 %s, s45, %s" % (v(F + 16 + r), v(F + r)))
            e("v_exp_f32 %s, %s" % (v(F + 16 + r), v(F + 16 + r)))
            e("v_mul_f32 %s, %s, %s" % (v(F + r), v(F + r), v(F + 8 + r)))
            e("v_add_f32 %s, 1.0, %s" % (v(F + 16 + r), v(F + 16 + r)))
            e("v_rcp_f32 %s, %s" % (v(F + 16 + r), v(F + 16 + r)))
        nop(1)
        for r in range(8): e("v_mul_f32 %s, %s, %s" % (v(F + r), v(F + r), v(F + 16 + r)))
        for r in range(4): e("v_cvt_pk_bf16_f32 %s, %s, %s" % (v(b + r), v(F + 2 * r), v(F + 2 * r + 1)))
        e("ds_write_b64 v6, %s offset:%d" % (v(b, 2), t * 32))
        e("ds_write_b64 v6, %s offset:%d" % (v(b + 2, 2), t * 32 + 6400))
    e("s_waitcnt lgkmcnt(0)"); e("s_barrier")
    for n in range(3): e("ds_read_b128 %s, %s" % (v(B + 4 * n, 4), v(15 + n)))
    e("s_waitcnt vmcnt(0)")
    for n in range(3):
        e("s_waitcnt lgkmcnt(%d)" % (2 - n))
        for r in range(4):
            p = B + 4 * n + r; x = XR + 4 * n + r
            e("v_lshlrev_b32 v20, 16, %s" % v(p)); e("v_and_b32 v21, s46, %s" % v(p))
            e("v_lshlrev_b32 v22, 16, %s" % v(x)); e("v_and_b32 v23, s46, %s" % v(x))
            e("v_add_f32 v20, v20, v22"); e("v_add_f32 v21, v21, v23")
            e("v_cvt_pk_bf16_f32 %s, v20, v21" % v(p))
        e("buffer_store_dwordx4 %s, %s, %s, 0 offen" % (v(B + 4 * n, 4), v(12 + n), s(sOut, 4)))
    lab("K3_END")
    e("s_endpgm")

def kd(name, vg):
    return [".amdhsa_kernel %s" % name, "  .amdhsa_next_free_vgpr %d" % vg, "  .amdhsa_next_free_sgpr 64",
            "  .amdhsa_accum_offset %d" % ((vg + 3) // 4 * 4), "  .amdhsa_group_segment_fixed_size 0", "  .amdhsa_kernarg_size 72",
            "  .amdhsa_user_sgpr_count 2", "  .amdhsa_user_sgpr_kernarg_segment_ptr 1",
            "  .amdhsa_system_sgpr_workgroup_id_x 1", "  .amdhsa_float_denorm_mode_32 3", ".end_amdhsa_kernel"]
hdr = ["; generated: LN+repack | QKV/FFN1+attention | FFN2 split-K + wo | reduce+epilogue",
       "; @launch kernel=k0_kernel grid=(256,1,1) block=(256,1,1) lds=0",
       "; @launch kernel=k1_kernel grid=(256,1,1) block=(512,1,1) lds=%d" % K1_LDS,
       "; @launch kernel=k2_kernel grid=(256,1,1) block=(512,1,1) lds=%d" % K2_LDS,
       "; @launch kernel=k3_kernel grid=(192,1,1) block=(256,1,1) lds=12800",
       '.amdgcn_target "amdgcn-amd-amdhsa--gfx950"', ".text"]
gen_k0(); gen_k1(); gen_k2(); gen_k3()
tail = ['.section .rodata,"a"']
for n, vg in (("k0_kernel", 80), ("k1_kernel", 256), ("k2_kernel", 168), ("k3_kernel", 168)):
    tail += [".p2align 6"] + kd(n, vg)
open(sys.argv[1] if len(sys.argv) > 1 else OUT, "w").write("\n".join(hdr + L + tail) + "\n")
print("ok", len(L))
```

```python
import sys
NAME = "recurrent_scan__sliding_local_dilated__dense_activation_relu__prompt"
OUT = "cdna_kernels/%s.s" % NAME

import struct
def f2u(x): return struct.unpack("<I", struct.pack("<f", x))[0]
H_OFF = 0
H_BYTES = 128 * 144 * 1024
O_OFF = H_BYTES
O_BYTES = 2048 * 1152
XN_OFF = O_OFF + O_BYTES
WQ_OFF = XN_OFF + O_BYTES
WQ_BYTES = 32 * 576 * 128
WO_OFF = WQ_OFF + WQ_BYTES
WO_BYTES = 576 * 1152
P_OFF = WO_OFF + WO_BYTES
SLAB = 64 * 36 * 1024
L = []
def e(s): L.append("    " + s)
def lab(s): L.append(s + ":")
def v(i, n=1): return "v%d" % i if n == 1 else "v[%d:%d]" % (i, i + n - 1)
def s(i, n=1): return "s%d" % i if n == 1 else "s[%d:%d]" % (i, i + n - 1)
def nop(n): e("s_nop %d" % (n - 1))
def srd(d, lo, nbytes, add=0):
    if add:
        e("s_add_u32 %s, %s, 0x%x" % (s(d), s(lo), add))
        e("s_addc_u32 %s, %s, 0" % (s(d + 1), s(lo + 1)))
    else:
        e("s_mov_b32 %s, %s" % (s(d), s(lo)))
        e("s_mov_b32 %s, %s" % (s(d + 1), s(lo + 1)))
    e("s_mov_b32 %s, 0x%x" % (s(d + 2), nbytes))
    e("s_mov_b32 %s, 0x00020000" % s(d + 3))
def mfma(d, a, b): e("v_mfma_f32_16x16x32_bf16 %s, %s, %s, %s" % (v(d, 4), v(a, 4), v(b, 4), v(d, 4)))
def kstart(name):
    L.append(".globl %s" % name); L.append(".p2align 8"); L.append(".type %s,@function" % name); lab(name)
def perm_pi(dst, src, t0, t1):
    e("v_and_b32 %s, 35, %s" % (v(dst), v(src)))
    e("v_bfe_u32 %s, %s, 2, 2" % (v(t0), v(src)))
    e("v_lshl_add_u32 %s, %s, 3, %s" % (v(dst), v(t0), v(dst)))
    e("v_bfe_u32 %s, %s, 4, 1" % (v(t1), v(src)))
    e("v_lshl_add_u32 %s, %s, 2, %s" % (v(dst), v(t1), v(dst)))
def divc(q, r, x, c, magic, sh):
    e("v_mul_u32_u24 %s, %d, %s" % (v(q), magic, v(x)))
    e("v_lshrrev_b32 %s, %d, %s" % (v(q), sh, v(q)))
    e("v_mul_u32_u24 %s, %d, %s" % (v(r), c, v(q)))
    e("v_sub_u32 %s, %s, %s" % (v(r), v(x), v(r)))
def bf16r(d, src):
    e("v_cvt_pk_bf16_f32 %s, %s, %s" % (v(d), v(src), v(src)))
    e("v_and_b32 %s, 0xffff0000, %s" % (v(d), v(d)))
def xreduce(a, t):
    for p in ("v_permlane32_swap_b32", "v_permlane16_swap_b32"):
        e("v_mov_b32 %s, %s" % (v(t), v(a)))
        nop(2)
        e("%s %s, %s" % (p, v(a), v(t)))
        nop(2)
        e("v_add_f32 %s, %s, %s" % (v(a), v(a), v(t)))


import os
INSTR = int(os.environ.get("INSTR", "0"))
DBG_OFF = 60 << 20
def stamp(i):
    if not INSTR: return
    e("s_memrealtime s[62:63]"); e("s_waitcnt lgkmcnt(0)"); e("s_mov_b32 s%d, s62" % (64 + i))
    if INSTR == 2 and i in (2, 3):
        e("s_memtime s[62:63]"); e("s_waitcnt lgkmcnt(0)"); e("s_mov_b32 s%d, s62" % (64 + i - 2))
def stamp_out(kern, n, vt):
    if not INSTR: return
    stamp(n - 1)
    srd(80, 54, 1 << 20, DBG_OFF + kern * 65536 * 4)
    e("s_lshl_b32 s62, s2, 3"); e("s_add_u32 s62, s62, s79"); e("s_lshl_b32 s62, s62, 5")
    e("s_mov_b64 exec, 1")
    e("v_mov_b32 %s, s62" % v(vt))
    for i in range(n):
        e("v_mov_b32 %s, s%d" % (v(vt + 1), 64 + i))
        e("buffer_store_dword %s, %s, s[80:83], 0 offen offset:%d" % (v(vt + 1), v(vt), 4 * i))
        e("s_nop 1")
def stamp_init():
    if not INSTR: return
    e("v_lshrrev_b32 v1, 6, v0"); e("s_nop 1"); e("v_readfirstlane_b32 s79, v1")
    stamp(0)

HSC = os.environ.get("HSC", "")
PSC = os.environ.get("PSC", "")
K2_AR = int(os.environ.get("K2_AR", "6"))
PF = int(os.environ.get("PF", "1"))
FUSE3 = int(os.environ.get("FUSE3", "1"))
FLAG_OFF = P_OFF + 8 * SLAB
class Loop:
    pass
def mainloop(P):
    NT = len(P.tiles); D = P.D; AR = P.AR; LA = AR - 1; RW = P.RW; U = AR // 3
    assert (NT * 3 * U) % RW == 0 and D < RW + 0 and AR % 3 == 0
    def wreg(gq): return P.WR + (gq % RW) * 4
    def wread(gq, q=None, kk=None):
        if q is None:
            gq %= NT * 3 * U
            q = gq % NT; kk = (gq // NT) % 3
        base, o16, okk = P.tiles[q]
        if kk == 0: e("v_add_u32 %s, %s, %s" % (v(base), s(P.sDelta), v(base)))
        e("ds_read_b64_tr_b16 %s, %s offset:%d" % (v(wreg(gq), 2), v(base), kk * okk))
        e("ds_read_b64_tr_b16 %s, %s offset:%d" % (v(wreg(gq) + 2, 2), v(base), kk * okk + o16))
    def nextdelta():
        e("s_add_u32 %s, %s, %d" % (s(P.sRd), s(P.sRd), P.STAGE))
        e("s_cmp_ge_u32 %s, %d" % (s(P.sRd), P.STAGE * P.NS))
        e("s_cselect_b32 %s, %d, 0" % (s(P.sDelta), P.STAGE * P.NS))
        e("s_sub_u32 %s, %s, %s" % (s(P.sRd), s(P.sRd), s(P.sDelta)))
        e("s_sub_u32 %s, %d, %s" % (s(P.sDelta), P.STAGE, s(P.sDelta)))
    def dma(n):
        vo, sr, so, sbase, ldsoff, lanes = P.dmas[n]
        e("s_add_u32 m0, %s, %s" % (s(P.sWr), s(sbase)))
        if lanes < 64:
            e("s_mov_b32 exec_lo, 0x%x" % ((1 << min(lanes, 32)) - 1)); e("s_mov_b32 exec_hi, 0")
            assert lanes <= 32
        else: e("s_nop 0")
        e("buffer_load_dwordx4 %s, %s, %s offen offset:%d lds" % (v(vo), s(sr, 4), s(so), ldsoff))
        if lanes < 64: e("s_mov_b64 exec, -1")
        if n == len(P.dmas) - 1:
            for so2, st in P.dsteps: e("s_add_u32 %s, %s, %d" % (s(so2), s(so2), st))
            e("s_add_u32 %s, %s, %d" % (s(P.sWr), s(P.sWr), P.STAGE))
            e("s_cmp_ge_u32 %s, %d" % (s(P.sWr), P.STAGE * P.NS))
            e("s_cselect_b32 %s, 0, %s" % (s(P.sWr), s(P.sWr)))
    def aload(st, f, off):
        e("buffer_load_dwordx4 %s, %s, %s, %s offen offset:%d" % (v(P.act(st, f), 4), v(P.vA[f][0]), s(P.sAct, 4), s(P.sOffA), P.vA[f][1]))
        if f == len(P.vA) - 1: e("s_add_u32 %s, %s, 0x20000" % (s(P.sOffA), s(P.sOffA)))
    NA = len(P.vA); ND = len(P.dmas); dd = P.dd
    cnt = [NA + len(dd[k]) for k in range(3)]
    assert AR == 6 and P.NS == 4
    Q = []
    def A(k): return [("a", k, f) for f in range(NA)]
    def S(st): return [("d", st, n) for n in range(ND)]
    def issue(op):
        Q.append(op)
        if op[0] == "a": aload(op[1] % AR, op[2], 0)
        else: dma(op[2])
    def after(ops): return len(Q) - 1 - max(Q.index(o) for o in ops)
    def wcount(kk): return len(dd[(kk - LA) % 3]) + sum(cnt[(kk - i) % 3] for i in range(1, LA))
    def kstep(k, vm, vpos, tag, emit=True, steady=False):
        ks = k % AR; kk = k % 3
        need = A(k) + (S(k // 3 + 1) if kk == 2 else [])
        w = after(need)
        if steady:
            assert wcount(kk) <= w, (k, wcount(kk), w)
            w = wcount(kk)
        if not emit:
            Q.extend(vm); return
        e("s_waitcnt vmcnt(%d)" % w)
        if kk == 2: nextdelta()
        pos = {}
        for i, x in enumerate(vm): pos.setdefault(vpos[i], []).append(x)
        for q in range(NT):
            gq = ks * NT + q
            e("s_waitcnt lgkmcnt(%d)" % (2 * D - 2))
            if kk == 2 and q == NT - D: e("s_barrier")
            wread(gq + D)
            mfma(P.acc(q, 0), wreg(gq), P.act(ks, 0))
            mfma(P.acc(q, 1), wreg(gq), P.act(ks, 1))
            P.extra(q, ks, wreg(gq), tag)
            for x in pos.get(q, []): issue(x)
    def svm(k): return A(k + LA) + [("d", k // 3 + 3, n) for n in dd[k % 3]]
    e("s_mov_b32 %s, 0" % s(P.sWr)); e("s_mov_b32 %s, 0" % s(P.sRd)); e("s_mov_b32 %s, 0" % s(P.sDelta))
    for op in S(0): issue(op)
    P.late_setup()
    for op in A(0) + A(1): issue(op)
    for r in range(P.nacc): e("v_mov_b32 %s, 0" % v(r))
    stamp(1)
    e("s_waitcnt vmcnt(%d)" % after(S(0))); e("s_barrier")
    stamp(2)
    for q in range(D): wread(q)
    ramp = [A(2) + S(1) + A(3), A(4) + S(2) + A(5), A(6) + A(7) + S(3)]
    for k in range(3): kstep(k, ramp[k], list(range(NT)), "P")
    e("s_mov_b32 %s, %d" % (s(P.sCnt), P.K // 3 - 3))
    e("s_branch %s_MID" % P.name)
    Q0 = list(Q)
    for k in range(3, 12): kstep(k, svm(k), None, "", emit=False, steady=True)
    lab(P.name + "_LOOP")
    for u in range(U):
        if u == 1: lab(P.name + "_MID")
        for kk in range(3):
            k = 12 + u * 3 + kk
            kstep(k, svm(k), P.vmpos, "L", steady=True)
        e("s_sub_u32 %s, %s, 1" % (s(P.sCnt), s(P.sCnt)))
        e("s_cmp_lg_u32 %s, 0" % s(P.sCnt))
        if u == U - 1: e("s_cbranch_scc1 %s_LOOP" % P.name)
        else: e("s_cbranch_scc0 %s_DONE" % P.name)
    lab(P.name + "_DONE")
    stamp(3)
    K0 = P.K - 6
    Q[:] = Q0
    for k in range(3, K0): Q.extend(svm(k))
    seq = [(K0, q) for q in range(NT)]; fins = {}
    for g in P.groups:
        seq += [(k, q) for k in range(K0 + 1, P.K) for q in g]
        fins[len(seq) - 1 + 2] = g
    g0 = (K0 % AR) * NT; seen = set(); first = True
    vm = A(P.K - 1)
    def store(txt): Q.append(("s", len(Q))); e(txt)
    for i, (k, q) in enumerate(seq):
        if k not in seen:
            seen.add(k); e("s_waitcnt vmcnt(%d)" % after(A(k)))
        e("s_waitcnt lgkmcnt(%d)" % (2 * min(D - 1, len(seq) - 1 - i)))
        if i + D < len(seq):
            k2, q2 = seq[i + D]
            if k2 == P.K - 3 and first:
                first = False
                nextdelta(); e("s_waitcnt vmcnt(%d)" % after(S(P.K // 3 - 1))); e("s_barrier")
            wread(g0 + i + D, q2, k2 % 3)
        mfma(P.acc(q, 0), wreg(g0 + i), P.act(k % AR, 0))
        mfma(P.acc(q, 1), wreg(g0 + i), P.act(k % AR, 1))
        P.extra(q, k % AR, wreg(g0 + i), "T")
        if i < len(vm): issue(vm[i])
        if i == len(vm): P.tail_pre(store)
        if i in fins: P.fin(fins.pop(i), store)
    e("s_nop 7"); e("s_nop 7")
    for i in sorted(fins): P.fin(fins[i], store)
    P.after = after; P.S = S

def common_ids(vL, vG, vM, T, sWave):
    e("v_and_b32 %s, 63, v0" % v(vL))
    e("v_lshrrev_b32 %s, 6, v0" % v(T))
    e("v_lshrrev_b32 %s, 4, %s" % (v(vG), v(vL)))
    e("v_readfirstlane_b32 %s, %s" % (s(sWave), v(T)))
    e("v_and_b32 %s, 15, %s" % (v(vM), v(vL)))
def w_setup(vL, T, sWave, sCol, stride, vD, vDT, vMain, vTail, TAILB):
    e("s_mul_i32 s40, %s, 12" % s(sWave))
    e("s_mul_i32 s41, %s, 288" % s(sCol)); e("s_and_b32 s42, %s, 1" % s(sCol))
    e("s_lshl_b32 s43, s42, 5"); e("s_add_u32 s43, s43, s41")
    e("s_xor_b32 s42, s42, 1"); e("s_lshl_b32 s42, s42, 8"); e("s_add_u32 s42, s42, s41")
    e("s_mov_b32 s41, %d" % stride)
    for n in range(3):
        e("v_lshrrev_b32 %s, 4, %s" % (v(T), v(vL)))
        e("v_add3_u32 %s, %s, s40, %d" % (v(T), v(T), 4 * n))
        e("v_bfe_u32 %s, %s, 1, 3" % (v(T + 1), v(vL)))
        e("v_xor_b32 %s, %s, %s" % (v(T + 1), v(T + 1), v(T)))
        e("v_and_b32 %s, 7, %s" % (v(T + 1), v(T + 1)))
        e("v_mul_lo_u32 %s, %s, s41" % (v(T), v(T)))
        e("v_lshl_add_u32 %s, %s, 5, %s" % (v(T), v(T + 1), v(T)))
        e("v_and_b32 %s, 1, %s" % (v(T + 1), v(vL)))
        e("v_lshl_add_u32 %s, %s, 4, %s" % (v(T), v(T + 1), v(T)))
        e("v_add_u32 %s, s43, %s" % (v(vD + n), v(T)))
        e("s_sub_u32 s43, s43, 1024")
    e("v_lshrrev_b32 %s, 1, %s" % (v(T), v(vL)))
    e("v_add_u32 %s, s40, %s" % (v(T), v(T)))
    e("v_mul_lo_u32 %s, %s, s41" % (v(T), v(T)))
    e("v_lshl_add_u32 %s, %s, 4, %s" % (v(T), v(T + 1), v(T)))
    e("v_add_u32 %s, s42, %s" % (v(vDT), v(T)))
def w_setup_rd(vL, T, vMain, vTail, TAILB):
    e("v_lshrrev_b32 %s, 2, %s" % (v(T), v(vL)))
    e("v_and_b32 %s, 3, %s" % (v(T + 1), v(vL)))
    e("v_and_b32 %s, 7, %s" % (v(T + 2), v(T)))
    e("v_lshlrev_b32 %s, 8, %s" % (v(T + 3), v(T)))
    e("v_lshl_add_u32 %s, %s, 5, %s" % (v(T + 3), v(T + 2), v(T + 3)))
    e("v_lshl_add_u32 %s, %s, 3, %s" % (v(vMain), v(T + 1), v(T + 3)))
    for i in range(1, 8): e("v_xor_b32 %s, %d, %s" % (v(vMain + i), i << 5, v(vMain)))
    e("v_lshlrev_b32 %s, 3, %s" % (v(vTail), v(vL)))
    e("v_add_u32 %s, %d, %s" % (v(vTail), TAILB, v(vTail)))

def gen_k0():
    sX, sXN, sWQ, sWQP, sWO, sWOP = 8, 12, 16, 20, 24, 28
    kstart("k0_kernel")
    e("s_cmp_ge_u32 s2, 256"); e("s_cbranch_scc1 K0_END"); stamp_init()
    e("s_load_dwordx4 s[48:51], s[0:1], 0"); e("s_load_dwordx2 s[52:53], s[0:1], 16"); e("s_load_dwordx2 s[54:55], s[0:1], 64")
    e("s_load_dwordx2 s[34:35], s[0:1], 32")
    e("v_lshrrev_b32 v1, 7, v0"); e("v_and_b32 v2, 127, v0"); e("s_nop 0")
    e("v_readfirstlane_b32 s33, v1")
    e("s_waitcnt lgkmcnt(0)")
    srd(sX, 48, 2048 * 1152); srd(sWQ, 50, 576 * 3456); srd(sWO, 52, WO_BYTES)
    srd(sXN, 54, O_BYTES, XN_OFF); srd(sWQP, 54, WQ_BYTES, WQ_OFF); srd(sWOP, 54, WO_BYTES, WO_OFF)
    def pf():
        if not PF: return
        srd(36, 34, 576 * 9216)
        e("s_lshr_b32 s44, s2, 3"); e("s_mul_i32 s44, s44, %d" % (18 * 9216)); e("s_and_b32 s45, s2, 7"); e("s_mul_i32 s45, s45, 1152"); e("s_add_u32 s44, s44, s45")
        for n in range(2):
            e("v_add_u32 v72, %d, v0" % (256 * n)); e("v_min_u32 v72, 323, v72")
            divc(73, 74, 72, 18, 3641, 16)
            e("v_mul_u32_u24 v73, 9216, v73"); e("v_lshl_add_u32 v73, v74, 6, v73")
            e("buffer_load_dword v75, v73, s[36:39], s44 offen")
    e("s_cmp_eq_u32 s33, 0"); e("s_cbranch_scc0 K0_PACK")
    e("s_lshl_b32 s40, s2, 3")
    e("v_lshrrev_b32 v3, 4, v2"); e("v_add_u32 v3, s40, v3"); e("v_and_b32 v4, 15, v2")
    e("v_mul_u32_u24 v5, 1152, v3"); e("v_lshl_add_u32 v5, v4, 3, v5")
    for i in range(9): e("buffer_load_dwordx2 %s, v5, %s, 0 offen offset:%d" % (v(10 + 2 * i, 2), s(sX, 4), i * 128))
    pf()
    e("v_lshrrev_b32 v6, 4, v3"); e("v_lshrrev_b32 v7, 3, v4"); e("v_lshl_add_u32 v6, v7, 7, v6")
    e("v_lshlrev_b32 v6, 10, v6"); e("v_and_b32 v7, 3, v4"); e("v_lshl_add_u32 v6, v7, 8, v6")
    e("v_and_b32 v7, 15, v3"); e("v_lshl_add_u32 v6, v7, 4, v6"); e("v_bfe_u32 v7, v4, 2, 1"); e("v_lshl_add_u32 v6, v7, 3, v6")
    e("s_mov_b32 s40, 0x%08x" % f2u(1.0 / 576.0)); e("s_mov_b32 s41, 0x%08x" % f2u(1e-5))
    X = 32
    e("v_mov_b32 v8, 0")
    for i in range(18):
        if i % 2 == 0: e("s_waitcnt vmcnt(%d)" % (8 - i // 2 + 2 * PF))
        e("v_lshlrev_b32 %s, 16, %s" % (v(X + 2 * i), v(10 + i)))
        e("v_and_b32 %s, 0xffff0000, %s" % (v(X + 2 * i + 1), v(10 + i)))
        e("v_add_f32 v8, v8, %s" % v(X + 2 * i)); e("v_add_f32 v8, v8, %s" % v(X + 2 * i + 1))
    def rowred(r):
        for sh in (8, 4, 2, 1):
            nop(2); e("v_add_f32_dpp %s, %s, %s row_ror:%d row_mask:0xf bank_mask:0xf" % (v(r), v(r), v(r), sh))
    rowred(8)
    e("v_mul_f32 v8, s40, v8")
    bf16r(9, 8)
    e("v_mov_b32 v70, 0")
    for i in range(36):
        e("v_sub_f32 v71, %s, v8" % v(X + i)); e("v_fmac_f32 v70, v71, v71")
    rowred(70)
    e("v_mul_f32 v70, s40, v70"); bf16r(70, 70)
    e("v_add_f32 v70, s41, v70"); bf16r(70, 70)
    e("v_sqrt_f32 v70, v70"); nop(1); bf16r(70, 70)
    e("v_rcp_f32 v70, v70")
    for i in range(18):
        a = X + 2 * i
        e("v_sub_f32 %s, %s, v9" % (v(a), v(a))); e("v_sub_f32 %s, %s, v9" % (v(a + 1), v(a + 1)))
        e("v_cvt_pk_bf16_f32 %s, %s, %s" % (v(a), v(a), v(a + 1)))
        e("v_and_b32 %s, 0xffff0000, %s" % (v(a + 1), v(a))); e("v_lshlrev_b32 %s, 16, %s" % (v(a), v(a)))
        e("v_mul_f32 %s, %s, v70" % (v(a), v(a))); e("v_mul_f32 %s, %s, v70" % (v(a + 1), v(a + 1)))
        e("v_cvt_pk_bf16_f32 %s, %s, %s" % (v(10 + i), v(a), v(a + 1)))
        if i % 2 == 1:
            k = i // 2
            e("s_mov_b32 s42, %d" % (k * 262144))
            e("buffer_store_dwordx2 %s, v6, %s, s42 offen" % (v(10 + i - 1, 2), s(sXN, 4)))
    stamp_out(0, 2, 2)
    e("s_endpgm")
    lab("K0_PACK")
    e("s_lshr_b32 s40, s2, 3"); e("s_and_b32 s41, s2, 7"); e("s_mul_i32 s41, s41, 72"); e("s_mul_i32 s40, s40, 36")
    e("v_lshrrev_b32 v3, 5, v2"); e("v_add_u32 v3, s41, v3"); e("v_mul_u32_u24 v3, 3456, v3")
    e("v_and_b32 v4, 31, v2")
    e("v_lshrrev_b32 v5, 3, v4"); e("v_and_b32 v6, 7, v4")
    e("v_min_u32 v7, 2, v6")
    e("v_cmp_eq_u32 vcc, 3, v5"); nop(2)
    e("v_cndmask_b32 v5, v5, v7, vcc"); e("v_cndmask_b32 v6, v6, 8, vcc")
    e("v_mul_u32_u24 v5, 1152, v5"); e("v_lshl_add_u32 v5, v6, 2, v5"); e("v_add3_u32 v3, v3, v5, s40")
    e("s_mul_i32 s42, s2, 9216"); e("v_lshlrev_b32 v4, 2, v2"); e("v_add_u32 v4, s42, v4")
    for i in range(18):
        e("s_mov_b32 s43, %d" % (i * 4 * 3456))
        e("buffer_load_dword %s, v3, %s, s43 offen" % (v(10 + i), s(sWQ, 4)))
    e("s_mul_i32 s40, s2, 162")
    for n in range(2):
        b = 40 + n * 12
        e("v_add_u32 %s, s40, v2" % v(b))
        if n: e("v_add_u32 %s, 128, %s" % (v(b), v(b)))
        e("s_mov_b32 s41, 59652324"); e("v_mul_hi_u32 %s, %s, s41" % (v(b + 1), v(b)))
        e("v_mul_u32_u24 %s, 72, %s" % (v(b + 2), v(b + 1))); e("v_sub_u32 %s, %s, %s" % (v(b + 2), v(b), v(b + 2)))
        e("v_and_b32 %s, 31, %s" % (v(b + 3), v(b + 1)))
        perm_pi(b + 4, b + 3, b + 5, b + 6)
        e("v_and_b32 %s, 0xffe0, %s" % (v(b + 3), v(b + 1))); e("v_add_u32 %s, %s, %s" % (v(b + 4), v(b + 4), v(b + 3)))
        e("v_lshrrev_b32 %s, 4, %s" % (v(b + 5), v(b + 4))); e("v_mul_u32_u24 %s, 18, %s" % (v(b + 5), v(b + 5)))
        e("v_and_b32 %s, 15, %s" % (v(b + 6), v(b + 4))); e("v_add_u32 %s, %s, %s" % (v(b + 5), v(b + 5), v(b + 6)))
        e("v_bfe_u32 %s, %s, 1, 5" % (v(b + 6), v(b + 4))); e("v_mul_u32_u24 %s, 18, %s" % (v(b + 6), v(b + 6)))
        e("v_and_b32 %s, 1, %s" % (v(b + 7), v(b + 4))); e("v_add3_u32 %s, %s, %s, 16" % (v(b + 6), v(b + 6), v(b + 7)))
        e("v_cmp_gt_u32 vcc, 512, %s" % v(b + 4)); nop(2)
        e("v_cndmask_b32 %s, %s, %s, vcc" % (v(b + 5), v(b + 6), v(b + 5)))
        e("v_mul_u32_u24 %s, 1152, %s" % (v(b + 5), v(b + 5))); e("v_lshl_add_u32 %s, %s, 4, %s" % (v(b + 5), v(b + 2), v(b + 5)))
        e("v_lshlrev_b32 %s, 4, %s" % (v(b), v(b)))
        if n:
            e("v_mov_b32 %s, 0x80000000" % v(b + 7)); e("v_cmp_gt_u32 vcc, 34, v2"); nop(2)
            e("v_cndmask_b32 %s, %s, %s, vcc" % (v(b), v(b + 7), v(b))); e("v_cndmask_b32 %s, %s, %s, vcc" % (v(b + 5), v(b + 7), v(b + 5)))
        e("buffer_load_dwordx4 %s, %s, %s, 0 offen" % (v(b + 8, 4), v(b + 5), s(sWO, 4)))
    pf()
    for i in range(18):
        e("s_waitcnt vmcnt(%d)" % (19 + 2 * PF))
        e("buffer_store_dword %s, v4, %s, 0 offen offset:%d" % (v(10 + i), s(sWQP, 4), 0) if i == 0 else
          "buffer_store_dword %s, v4, %s, s43 offen" % (v(10 + i), s(sWQP, 4)))
        e("s_mov_b32 s43, %d" % ((i + 1) * 512))
    e("s_waitcnt vmcnt(%d)" % (18 + 2 * PF))
    for n in range(2):
        b = 40 + n * 12
        e("buffer_store_dwordx4 %s, %s, %s, 0 offen" % (v(b + 8, 4), v(b), s(sWOP, 4)))
    if FUSE3:
        e("s_cmp_lg_u32 s2, 0"); e("s_cbranch_scc1 K0_NOFLAG")
        srd(36, 54, 4096, FLAG_OFF)
        for r in range(4): e("v_mov_b32 v%d, 0" % (76 + r))
        e("v_lshlrev_b32 v72, 4, v2")
        e("buffer_store_dwordx4 v[76:79], v72, s[36:39], 0 offen")
        e("buffer_store_dwordx4 v[76:79], v72, s[36:39], 0 offen offset:2048")
        lab("K0_NOFLAG")
    stamp_out(0, 2, 2)
    lab("K0_END")
    e("s_endpgm")

K1_STAGE = 96 * 416; K1_NS = 4; K1_LDS = K1_STAGE * K1_NS
def gen_k1():
    P = Loop(); P.name = "K1"; P.STAGE = K1_STAGE; P.NS = K1_NS; P.D = 5; P.AR = 6; P.RW = 6
    EX = 104; ACT = 108; WR = 180; vMain = 204; vTail = 212; vQK = 213; vD = 217; vDT = 220; vDQ = 221; ST = 136
    vA0, vA1, vAH = 223, 224, 225; vL, vG, vM, vTid = 226, 227, 228, 229; T = 232
    acc = lambda i, u: (i * 2 + u) * 4
    P.acc = acc; P.act = lambda st, f: ACT + (st * 3 + f) * 4; P.WR = WR; P.nacc = 108
    sX, sW1, sWQ, sH, sO = 8, 12, 16, 20, 24
    sWave, sJ, sMt = 28, 29, 30
    P.sCnt, P.sDelta, P.sRd, P.sWr, P.sT, P.sOffA, P.sAct = 31, 32, 33, 34, 35, 36, sX
    sOffW1, sOffWQ, sBM, sBT, sBQ = 37, 38, 39, 44, 45
    TAILB = 96 * 256; QKB = TAILB + 96 * 32
    kstart("k1_kernel")
    e("s_cmp_ge_u32 s2, 256"); e("s_cbranch_scc1 K1_END"); stamp_init()
    e("s_load_dwordx4 s[56:59], s[0:1], 32"); e("s_load_dwordx2 s[54:55], s[0:1], 64")
    common_ids(vL, vG, vM, T, sWave)
    e("v_mov_b32 %s, v0" % v(vTid))
    e("s_and_b32 s40, s2, 7"); e("s_lshr_b32 s41, s2, 3")
    e("s_lshr_b32 %s, s41, 2" % s(sMt)); e("s_and_b32 s41, s41, 3"); e("s_lshl_b32 s40, s40, 2"); e("s_add_u32 %s, s40, s41" % s(sJ))
    w_setup(vL, T, sWave, sJ, 9216, vD, vDT, vMain, vTail, TAILB)
    e("s_mul_i32 s41, %s, %d" % (s(sJ), 576 * 128))
    for n in range(2):
        e("v_lshrrev_b32 %s, 3, %s" % (v(T), v(vL)))
        e("v_add3_u32 %s, %s, s40, %d" % (v(T), v(T), 8 * n))
        e("v_lshrrev_b32 %s, 1, %s" % (v(T + 1), v(T)))
        e("v_bfe_u32 %s, %s, 1, 2" % (v(T + 2), v(vL)))
        e("v_xor_b32 %s, %s, %s" % (v(T + 1), v(T + 1), v(T + 2)))
        e("v_and_b32 %s, 3, %s" % (v(T + 1), v(T + 1)))
        e("v_lshlrev_b32 %s, 7, %s" % (v(T), v(T)))
        e("v_lshl_add_u32 %s, %s, 5, %s" % (v(T), v(T + 1), v(T)))
        e("v_and_b32 %s, 1, %s" % (v(T + 1), v(vL)))
        e("v_lshl_add_u32 %s, %s, 4, %s" % (v(T), v(T + 1), v(T)))
        e("v_add_u32 %s, s41, %s" % (v(vDQ + n), v(T)))
        e("s_sub_u32 s41, s41, 1024")
    Lsave = len(L)
    w_setup_rd(vL, T, vMain, vTail, TAILB)
    e("v_lshrrev_b32 %s, 2, %s" % (v(T), v(vL)))
    e("v_bfe_u32 %s, %s, 3, 2" % (v(T + 1), v(vL)))
    e("v_lshlrev_b32 %s, 7, %s" % (v(T), v(T)))
    e("v_lshl_add_u32 %s, %s, 5, %s" % (v(T), v(T + 1), v(T)))
    e("v_and_b32 %s, 3, %s" % (v(T + 1), v(vL)))
    e("v_lshl_add_u32 %s, %s, 3, %s" % (v(T), v(T + 1), v(T)))
    for i in range(4):
        e("v_xor_b32 %s, %d, %s" % (v(vQK + i), i << 5, v(T)))
        e("v_add_u32 %s, %d, %s" % (v(vQK + i), QKB, v(vQK + i)))
    e("s_lshl_b32 s40, %s, 4" % s(sMt)); e("s_lshl_b32 s41, %s, 1" % s(sWave)); e("s_add_u32 s41, s41, s40")
    e("s_lshl_b32 s41, s41, 10")
    e("v_lshlrev_b32 %s, 4, %s" % (v(T), v(vL)))
    e("v_add_u32 %s, s41, %s" % (v(vA0), v(T)))
    e("s_sub_u32 s41, s40, 1"); e("s_lshl_b32 s41, s41, 10")
    e("s_cmp_eq_u32 %s, 0" % s(sMt)); e("s_cselect_b32 s41, 0x80000000, s41")
    e("s_cmp_gt_u32 %s, 2" % s(sWave)); e("s_cselect_b32 s41, 0x80000000, s41")
    e("v_add_u32 %s, s41, %s" % (v(vAH), v(T)))
    late = L[Lsave:]; del L[Lsave:]
    P.late_setup = lambda: L.extend(late)
    e("s_mul_i32 %s, %s, 3072" % (s(sBM), s(sWave)))
    e("s_mul_i32 %s, %s, 384" % (s(sBT), s(sWave))); e("s_add_u32 %s, %s, %d" % (s(sBT), s(sBT), TAILB))
    e("s_mul_i32 %s, %s, 1536" % (s(sBQ), s(sWave))); e("s_add_u32 %s, %s, %d" % (s(sBQ), s(sBQ), QKB))
    e("s_mov_b32 %s, 0" % s(sOffW1)); e("s_mov_b32 %s, 0" % s(sOffWQ)); e("s_mov_b32 %s, 0" % s(P.sOffA))
    e("s_waitcnt lgkmcnt(0)")
    srd(sX, 54, O_BYTES, XN_OFF); srd(sW1, 56, 576 * 9216); srd(sH, 54, H_BYTES, H_OFF); srd(sO, 54, O_BYTES, O_OFF)
    srd(sWQ, 54, WQ_BYTES, WQ_OFF)
    e("s_add_u32 s40, %s, 1" % s(sJ)); e("s_mul_i32 %s, s40, %d" % (s(sWQ + 2), 576 * 128))
    P.tiles = [(vMain + i, 4096, 8192) for i in range(8)] + [(vTail, 512, 1024)] + [(vQK + i, 2048, 4096) for i in range(4)]
    P.dmas = [(vD, sW1, sOffW1, sBM, 0, 64), (vD + 1, sW1, sOffW1, sBM, 1024, 64), (vD + 2, sW1, sOffW1, sBM, 2048, 64),
              (vDT, sW1, sOffW1, sBT, 0, 24), (vDQ, sWQ, sOffWQ, sBQ, 0, 64), (vDQ + 1, sWQ, sOffWQ, sBQ, 1024, 32)]
    P.dsteps = [(sOffW1, 96 * 9216), (sOffWQ, 96 * 128)]
    P.vA = [(vA0, 0), (vA0, 1024), (vAH, 0)]; P.vmpos = [0, 2, 4, 7, 10]; P.dd = [[0, 1], [2, 3], [4, 5]]
    def extra(q, kk, wr, tag):
        if q >= 10:
            e("s_cmp_eq_u32 %s, %d" % (s(sWave), q - 10)); e("s_cbranch_scc0 K1_X%s%d_%d" % (tag, q, kk))
            mfma(EX, wr, P.act(kk, 2))
            lab("K1_X%s%d_%d" % (tag, q, kk))
    P.extra = extra
    P.K = 18; P.groups = [[0, 1, 2, 3], [4, 5], [6, 7], [8, 9], [10, 11, 12]]
    def tail_pre(store):
        e("s_mul_i32 s40, %s, 9" % s(sJ)); e("s_and_b32 s41, %s, 1" % s(sJ))
        e("s_add_u32 s42, s40, s41"); e("s_lshr_b32 s42, s42, 1"); e("s_lshl_b32 s47, s42, 17")
        e("s_xor_b32 s43, s41, 1"); e("s_lshl_b32 s43, s43, 3"); e("s_add_u32 s43, s43, s40"); e("s_lshr_b32 s43, s43, 1"); e("s_lshl_b32 s43, s43, 17")
        e("s_lshl_b32 s41, s41, 3"); e("s_add_u32 s43, s43, s41")
        for i in range(1, 4): e("s_add_u32 s%d, s47, %d" % (47 + i, i << 17))
        if PF:
            srd(sW1, 58, 4608 * 1152)
            e("s_and_b32 s40, s2, 7"); e("s_mul_i32 s40, s40, %d" % (672 * 1152)); e("s_lshr_b32 s41, s2, 3"); e("s_mul_i32 s41, s41, %d" % (378 * 64))
            e("s_add_u32 s40, s40, s41")
            e("v_min_u32 v248, 377, %s" % v(vTid)); e("v_lshlrev_b32 v248, 6, v248")
            store("buffer_load_dword v249, v248, %s, s40 offen" % s(sW1, 4))
    def fin(g, store):
        for i in g:
            if i > 8 or i & 1: continue
            for u in range(2):
                d = acc(i, u); srcs = [d, d + 2] + ([d + 8, d + 10] if i < 8 else [])
                for n, sr in enumerate(srcs): e("v_cvt_pk_bf16_f32 %s, %s, %s" % (v(d + n), v(sr), v(sr + 1)))
                for n in range(len(srcs)): e("v_pk_max_i16 %s, %s, 0" % (v(d + n), v(d + n)))
                if i == 8: store("buffer_store_dwordx2 %s, %s, %s, s43 offen offset:%d%s" % (v(d, 2), v(vA0), s(sH, 4), u * 1024, HSC))
                else: store("buffer_store_dwordx4 %s, %s, %s, %s offen offset:%d%s" % (v(d, 4), v(vA0), s(sH, 4), s(47 + (i >> 1)), u * 1024, HSC))
    P.tail_pre = tail_pre; P.fin = fin
    mainloop(P)
    e("s_waitcnt vmcnt(%d)" % P.after(P.S(6))); e("s_barrier")
    stamp(4)
    QB, KB, VB = 0, 20480, 20480 + 21760
    e("s_lshl_b32 s44, %s, 5" % s(sWave))
    e("v_add_u32 %s, s44, %s" % (v(T + 9), v(vM)))
    e("v_mul_u32_u24 %s, 80, %s" % (v(T + 9), v(T + 9)))
    e("v_lshl_add_u32 %s, %s, 4, %s" % (v(T + 8), v(vG), v(T + 9)))
    e("v_mul_u32_u24 %s, %d, %s" % (v(T + 10), VB + 1280 - QB, v(vG)))
    e("v_add_u32 %s, %s, %s" % (v(T + 10), v(T + 10), v(T + 9)))
    for u in range(2):
        e("ds_write_b128 %s, %s offset:%d" % (v(T + 8), v(acc(9, u), 4), QB + u * 1280))
        e("ds_write_b128 %s, %s offset:%d" % (v(T + 8), v(acc(10, u), 4), KB + 1280 + u * 1280))
        e("ds_write_b128 %s, %s offset:%d" % (v(T + 8), v(acc(11, u), 4), VB + 1280 + u * 1280))
        e("s_mov_b32 exec_hi, 0")
        e("ds_write_b64 %s, %s offset:%d" % (v(T + 10), v(acc(12, u), 2), QB + 64 + u * 1280))
        e("s_mov_b32 exec_lo, 0xffff")
        e("ds_write_b64 %s, %s offset:%d" % (v(T + 9), v(acc(12, u) + 2, 2), KB + 1280 + 64 + u * 1280))
        e("s_mov_b64 exec, -1")
    e("v_mul_u32_u24 %s, 80, %s" % (v(T + 9), v(vM)))
    e("v_lshl_add_u32 %s, %s, 4, %s" % (v(T + 10), v(vG), v(T + 9)))
    e("s_cmp_gt_u32 %s, 1" % s(sWave)); e("s_cbranch_scc1 K1_H2")
    e("s_mul_i32 s44, %s, %d" % (s(sWave), VB - KB))
    e("v_add_u32 %s, s44, %s" % (v(T + 10), v(T + 10)))
    e("ds_write_b128 %s, %s offset:%d" % (v(T + 10), v(EX, 4), KB))
    e("s_branch K1_HD")
    lab("K1_H2")
    e("s_cmp_eq_u32 %s, 2" % s(sWave)); e("s_cbranch_scc0 K1_HD")
    e("s_mov_b64 exec, 0xffff")
    e("ds_write_b64 %s, %s offset:%d" % (v(T + 9), v(EX + 2, 2), KB + 64))
    e("s_mov_b32 exec_lo, 0xffff0000")
    e("ds_write_b64 %s, %s offset:%d" % (v(T + 9), v(EX, 2), VB + 64))
    e("s_mov_b64 exec, -1")
    lab("K1_HD")
    stamp(5)
    e("s_waitcnt lgkmcnt(0)"); e("s_barrier")
    stamp(6)
    Qr = 0; Kr = 12; LG = 112; Or = 124; vB, vBt, vRow = T + 12, T + 13, T + 14
    e("v_lshrrev_b32 %s, 5, %s" % (v(T + 15), v(vTid)))
    e("v_lshl_add_u32 %s, %s, 4, %s" % (v(vRow), v(T + 15), v(vM)))
    e("v_and_b32 %s, 1, %s" % (v(T), v(vG)))
    e("v_mul_u32_u24 %s, 80, %s" % (v(T + 1), v(vRow)))
    e("v_lshl_add_u32 %s, %s, 5, %s" % (v(vB), v(T), v(T + 1)))
    e("v_lshl_add_u32 %s, %s, 2, %s" % (v(vBt), v(T), v(T + 1)))
    def rec(dst, base_off):
        e("ds_read_b128 %s, %s offset:%d" % (v(dst, 4), v(vB), base_off))
        e("ds_read_b128 %s, %s offset:%d" % (v(dst + 4, 4), v(vB), base_off + 16))
        e("ds_read_b32 %s, %s offset:%d" % (v(dst + 8), v(vBt), base_off + 64))
    rec(Qr, QB)
    for w in range(4): rec(Kr + w * 12, KB + 1280 - 160 * w)
    e("s_lshl_b32 s40, %s, 8" % s(sMt))
    e("v_add_u32 %s, s40, %s" % (v(vRow), v(vRow)))
    e("s_mov_b32 s41, 0x%08x" % f2u(18 ** -0.5 * 1.4426950408889634))
    e("v_mov_b32 %s, 0x%08x" % (v(T + 2), f2u(-1e9 * 1.4426950408889634)))
    for w in range(8):
        e("s_waitcnt lgkmcnt(%d)" % (9 if w < 5 else 9 - 3 * (w - 4)))
        kr = Kr + w * 12
        e("v_mul_f32 %s, %s, %s" % (v(LG + w), v(Qr), v(kr)))
        for d in range(1, 9): e("v_fmac_f32 %s, %s, %s" % (v(LG + w), v(Qr + d), v(kr + d)))
        if w < 4: rec(Kr + (w + 4) * 12, KB + 1280 - 160 * (w + 4))
    for w in range(5): rec(Kr + w * 12, VB + 1280 - 160 * w)
    for w in range(8): e("v_mov_b32 %s, %s" % (v(Or + w), v(LG + w)))
    nop(2)
    for w in range(8): e("v_permlane16_swap_b32 %s, %s" % (v(LG + w), v(Or + w)))
    nop(2)
    for w in range(8):
        e("v_add_f32 %s, %s, %s" % (v(LG + w), v(LG + w), v(Or + w)))
        e("v_cmp_le_u32 vcc, %d, %s" % (2 * w, v(vRow)))
        e("v_mul_f32 %s, s41, %s" % (v(LG + w), v(LG + w)))
        nop(1)
        e("v_cndmask_b32 %s, %s, %s, vcc" % (v(LG + w), v(T + 2), v(LG + w)))
    e("v_max3_f32 %s, %s, %s, %s" % (v(T + 3), v(LG), v(LG + 1), v(LG + 2)))
    e("v_max3_f32 %s, %s, %s, %s" % (v(T + 3), v(T + 3), v(LG + 3), v(LG + 4)))
    e("v_max3_f32 %s, %s, %s, %s" % (v(T + 3), v(T + 3), v(LG + 5), v(LG + 6)))
    e("v_max_f32 %s, %s, %s" % (v(T + 3), v(T + 3), v(LG + 7)))
    for w in range(8):
        e("v_sub_f32 %s, %s, %s" % (v(LG + w), v(LG + w), v(T + 3)))
        e("v_exp_f32 %s, %s" % (v(LG + w), v(LG + w)))
    nop(1)
    e("v_add_f32 %s, %s, %s" % (v(T + 4), v(LG), v(LG + 1)))
    for w in range(2, 8): e("v_add_f32 %s, %s, %s" % (v(T + 4), v(T + 4), v(LG + w)))
    e("v_rcp_f32 %s, %s" % (v(T + 4), v(T + 4)))
    for w in range(8):
        e("s_waitcnt lgkmcnt(%d)" % (3 * (min(w + 4, 7) - w)))
        kr = Kr + w * 12
        for d in range(9):
            if w == 0: e("v_mul_f32 %s, %s, %s" % (v(Or + d), v(LG), v(kr + d)))
            else: e("v_fmac_f32 %s, %s, %s" % (v(Or + d), v(LG + w), v(kr + d)))
        if w + 5 < 8: rec(Kr + (w + 5) * 12, VB + 1280 - 160 * (w + 5))
    for d in range(9): e("v_mul_f32 %s, %s, %s" % (v(Or + d), v(T + 4), v(Or + d)))
    for d in range(4): e("v_cvt_pk_bf16_f32 %s, %s, %s" % (v(Qr + d), v(Or + 2 * d), v(Or + 2 * d + 1)))
    e("v_cvt_pk_bf16_f32 %s, %s, %s" % (v(Qr + 4), v(Or + 8), v(Or + 8)))
    e("s_lshl_b32 s40, %s, 4" % s(sMt))
    e("v_add_u32 %s, s40, %s" % (v(T + 5), v(T + 15)))
    e("v_lshlrev_b32 %s, 10, %s" % (v(T + 5), v(T + 5)))
    e("v_lshl_add_u32 %s, %s, 4, %s" % (v(T + 5), v(vM), v(T + 5)))
    e("v_lshl_add_u32 %s, %s, 8, %s" % (v(T + 6), v(T), v(T + 5)))
    e("v_lshl_add_u32 %s, %s, 1, %s" % (v(T + 7), v(T), v(T + 5)))
    e("s_lshr_b32 s42, %s, 1" % s(sJ)); e("s_lshl_b32 s42, s42, 17"); e("s_and_b32 s41, %s, 1" % s(sJ)); e("s_lshl_b32 s41, s41, 9"); e("s_add_u32 s42, s42, s41")
    e("s_bfe_u32 s43, %s, 0x20002" % s(sJ)); e("s_lshl_b32 s43, s43, 8"); e("s_and_b32 s41, %s, 3" % s(sJ)); e("s_lshl_b32 s41, s41, 2")
    e("s_add_u32 s43, s43, s41"); e("s_lshr_b32 s41, %s, 4" % s(sJ)); e("s_add_u32 s41, s41, 16"); e("s_lshl_b32 s41, s41, 17"); e("s_add_u32 s43, s43, s41")
    e("buffer_store_dwordx4 %s, %s, %s, s42 offen" % (v(Qr, 4), v(T + 6), s(sO, 4)))
    e("buffer_store_short %s, %s, %s, s43 offen" % (v(Qr + 4), v(T + 7), s(sO, 4)))
    stamp_out(1, 8, 150)
    lab("K1_END")
    e("s_endpgm")

K2_STAGE = 96 * 288; K2_NS = 4; K2_LDS = K2_STAGE * K2_NS
def reduce_vals(src, nd, F):
    for k in range(8):
        for r in range(nd):
            x = src(k, r)
            if k == 0 or k == 7:
                o = F + (8 if k else 0) + 2 * r
                e("v_lshlrev_b32 %s, 16, %s" % (v(o), v(x))); e("v_and_b32 %s, s46, %s" % (v(o + 1), v(x)))
            else:
                tp = F + 16 + 2 * (r & 1)
                e("v_lshlrev_b32 %s, 16, %s" % (v(tp), v(x))); e("v_and_b32 %s, s46, %s" % (v(tp + 1), v(x)))
                e("v_pk_add_f32 %s, %s, %s" % (v(F + 2 * r, 2), v(F + 2 * r, 2), v(tp, 2)))
    for r in range(2 * nd):
        e("v_mul_f32 %s, s45, %s" % (v(F + 16 + r), v(F + r)))
        e("v_exp_f32 %s, %s" % (v(F + 16 + r), v(F + 16 + r)))
        e("v_mul_f32 %s, %s, %s" % (v(F + r), v(F + r), v(F + 8 + r)))
        e("v_add_f32 %s, 1.0, %s" % (v(F + 16 + r), v(F + 16 + r)))
        e("v_rcp_f32 %s, %s" % (v(F + 16 + r), v(F + 16 + r)))
    nop(1)
    for r in range(2 * nd): e("v_mul_f32 %s, %s, %s" % (v(F + r), v(F + r), v(F + 16 + r)))
    for r in range(nd): e("v_cvt_pk_bf16_f32 %s, %s, %s" % (v(F + 24 + r), v(F + 2 * r), v(F + 2 * r + 1)))
def k2_tail(sP, sX, sFl, sWave, sKs, sMt, sNt, vL, vG, vM, vTid, T):
    sOut = 20; YS = 304
    srd(sX, 52, 2048 * 1152); srd(sOut, 50, 2048 * 1152); srd(sFl, 54, 4096, FLAG_OFF)
    e("s_lshl_b32 s40, %s, 3" % s(sMt)); e("s_add_u32 s40, s40, %s" % s(sKs))
    e("s_mul_i32 s41, s40, %d" % (32 * 1152)); e("s_mul_i32 s42, %s, 288" % s(sNt)); e("s_add_u32 s41, s41, s42")
    vXA, vYA, XR = 72, 74, 76
    for n in range(2):
        e("v_add_u32 %s, %d, %s" % (v(T + 1), 512 * n, v(vTid)))
        divc(T + 2, T + 3, T + 1, 18, 3641, 16)
        e("v_mul_u32_u24 %s, 1152, %s" % (v(T + 4), v(T + 2))); e("v_lshl_add_u32 %s, %s, 4, %s" % (v(T + 4), v(T + 3), v(T + 4)))
        e("v_add_u32 %s, s41, %s" % (v(vXA + n), v(T + 4)))
        e("v_mul_u32_u24 %s, %d, %s" % (v(T + 4), YS, v(T + 2))); e("v_lshl_add_u32 %s, %s, 4, %s" % (v(vYA + n), v(T + 3), v(T + 4)))
    e("s_cmp_eq_u32 %s, 0" % s(sWave)); e("s_cselect_b32 s47, 0, 0x40000000")
    e("buffer_load_dwordx4 %s, %s, %s, 0 offen" % (v(XR, 4), v(vXA), s(sX, 4)))
    e("buffer_load_dwordx4 %s, %s, %s, s47 offen" % (v(XR + 4, 4), v(vXA + 1), s(sX, 4)))
    e("s_mul_i32 s40, s40, 36"); e("s_mul_i32 s41, %s, 9" % s(sNt)); e("s_add_u32 s40, s40, s41")
    e("s_add_u32 s41, s40, %s" % s(sWave)); e("s_lshl_b32 s41, s41, 10"); e("s_add_u32 s40, s40, 8"); e("s_lshl_b32 s40, s40, 10")
    e("s_lshl_b32 s42, %s, 2" % s(sWave)); e("s_add_u32 s40, s40, s42")
    e("v_add_u32 %s, s41, %s" % (v(T + 1), v(T)))
    e("v_add_u32 %s, s40, %s" % (v(T + 2), v(T)))
    e("v_mul_u32_u24 %s, %d, %s" % (v(T + 3), YS, v(vM))); e("v_lshl_add_u32 %s, %s, 3, %s" % (v(T + 3), v(vG), v(T + 3)))
    e("s_lshr_b32 s40, %s, 1" % s(sWave)); e("s_mul_i32 s40, s40, %d" % (16 * YS)); e("s_and_b32 s41, %s, 1" % s(sWave)); e("s_lshl_b32 s41, s41, 2")
    e("s_add_u32 s40, s40, s41"); e("v_add_u32 %s, s40, %s" % (v(T + 4), v(T + 3)))
    e("s_lshl_b32 s40, %s, 5" % s(sWave)); e("v_add_u32 %s, s40, %s" % (v(T + 3), v(T + 3)))
    for k in range(8): e("s_mov_b32 s%d, %d" % (32 + k, k * SLAB))
    e("s_mov_b32 s45, 0x%08x" % f2u(-1.4426950408889634)); e("s_mov_b32 s46, 0xffff0000")
    e("s_lshr_b32 s40, s2, 3"); e("s_lshl_b32 s40, s40, 7")
    e("v_lshlrev_b32 %s, 2, %s" % (v(T + 5), v(vL))); e("v_mov_b32 %s, 1" % v(T + 6))
    e("s_lshl_b32 s41, %s, 2" % s(sKs)); e("s_add_u32 s41, s41, s40")
    e("s_waitcnt vmcnt(0)"); e("s_barrier")
    stamp(5)
    e("s_cmp_lg_u32 %s, 0" % s(sWave)); e("s_cbranch_scc1 K2_WAITB")
    e("s_mov_b64 exec, 1")
    e("buffer_store_dword %s, %s, %s, s41 offen sc1" % (v(T + 6), v(T + 5), s(sFl, 4)))
    e("s_mov_b64 exec, 0xff"); e("s_mov_b32 s42, 0")
    lab("K2_POLL")
    e("buffer_load_dword %s, %s, %s, s40 offen sc1" % (v(T + 7), v(T + 5), s(sFl, 4)))
    e("s_add_u32 s42, s42, 1"); e("s_cmp_gt_u32 s42, 40000"); e("s_cbranch_scc1 K2_POLLX")
    e("s_waitcnt vmcnt(0)")
    e("v_cmp_eq_u32 vcc, 1, %s" % v(T + 7)); e("s_nop 3")
    e("s_cmp_eq_u32 vcc_lo, 0xff"); e("s_cbranch_scc0 K2_POLL")
    lab("K2_POLLX")
    e("s_mov_b64 exec, -1")
    lab("K2_WAITB")
    e("s_barrier")
    stamp(6)
    for k in range(8): e("buffer_load_dwordx4 %s, %s, %s, s%d offen sc1" % (v(4 * k, 4), v(T + 1), s(sP, 4), 32 + k))
    e("s_cmp_gt_u32 %s, 3" % s(sWave)); e("s_cbranch_scc1 K2_NOQ")
    for k in range(8): e("buffer_load_dword %s, %s, %s, s%d offen sc1" % (v(32 + k), v(T + 2), s(sP, 4), 32 + k))
    e("s_waitcnt vmcnt(0)")
    reduce_vals(lambda k, r: 32 + k, 1, 88)
    e("ds_write_b32 %s, %s offset:256" % (v(T + 4), v(88 + 24)))
    lab("K2_NOQ")
    e("s_waitcnt vmcnt(0)")
    reduce_vals(lambda k, r: 4 * k + r, 4, 40)
    e("ds_write_b64 %s, %s" % (v(T + 3), v(64, 2)))
    e("ds_write_b64 %s, %s offset:%d" % (v(T + 3), v(66, 2), 16 * YS))
    e("s_waitcnt lgkmcnt(0)"); e("s_barrier")
    def fin(n):
        e("ds_read_b128 %s, %s" % (v(0, 4), v(vYA + n)))
        e("s_waitcnt lgkmcnt(0)")
        for r in range(4):
            x = XR + 4 * n + r
            e("v_lshlrev_b32 v8, 16, %s" % v(r)); e("v_and_b32 v9, s46, %s" % v(r))
            e("v_lshlrev_b32 v10, 16, %s" % v(x)); e("v_and_b32 v11, s46, %s" % v(x))
            e("v_pk_add_f32 v[8:9], v[8:9], v[10:11]")
            e("v_cvt_pk_bf16_f32 %s, v8, v9" % v(12 + 4 * n + r))
        e("buffer_store_dwordx4 %s, %s, %s, 0 offen" % (v(12 + 4 * n, 4), v(vXA + n), s(sOut, 4)))
    fin(0)
    e("s_cmp_lg_u32 %s, 0" % s(sWave)); e("s_cbranch_scc1 K2_FIN")
    fin(1)
    lab("K2_FIN")
def gen_k2():
    P = Loop(); P.name = "K2"; P.STAGE = K2_STAGE; P.NS = K2_NS; P.D = 6; P.AR = K2_AR; P.RW = 9
    ACT = 72; WR = 144; vMain = 180; vTail = 188; vD = 189; vDT = 192; vA0, vA1 = 193, 194; vL, vG, vM, vTid = 195, 196, 197, 198; T = 200
    acc = lambda i, u: (i * 2 + u) * 4
    P.acc = acc; P.act = lambda st, f: ACT + (st * 2 + f) * 4; P.WR = WR; P.nacc = 72
    sW, sA, sP = 8, 12, 16
    sWave, sKs, sMt, sNt = 28, 29, 30, 46
    P.sCnt, P.sDelta, P.sRd, P.sWr, P.sT, P.sOffA, P.sAct = 31, 32, 33, 34, 35, 36, sA
    sOffW, sBM, sBT = 37, 39, 44
    TAILB = 96 * 256
    kstart("k2_kernel")
    e("s_cmp_ge_u32 s2, 256"); e("s_cbranch_scc1 K2_END"); stamp_init()
    e("s_load_dwordx4 s[48:51], s[0:1], 40"); e("s_load_dwordx2 s[54:55], s[0:1], 64"); e("s_load_dwordx2 s[52:53], s[0:1], 0")
    e("v_mov_b32 %s, v0" % v(vTid))
    common_ids(vL, vG, vM, T, sWave)
    e("s_and_b32 %s, s2, 7" % s(sKs)); e("s_lshr_b32 s41, s2, 3")
    e("s_lshr_b32 %s, s41, 2" % s(sMt)); e("s_and_b32 %s, s41, 3" % s(sNt))
    w_setup(vL, T, sWave, sNt, 1152, vD, vDT, vMain, vTail, TAILB)
    Lsave = len(L)
    w_setup_rd(vL, T, vMain, vTail, TAILB)
    e("s_lshl_b32 s40, %s, 4" % s(sMt)); e("s_lshl_b32 s41, %s, 1" % s(sWave)); e("s_add_u32 s41, s41, s40")
    e("s_lshl_b32 s41, s41, 10")
    e("v_lshlrev_b32 %s, 4, %s" % (v(T), v(vL)))
    e("v_add_u32 %s, s41, %s" % (v(vA0), v(T)))
    late = L[Lsave:]; del L[Lsave:]
    P.late_setup = lambda: L.extend(late)
    e("s_mul_i32 %s, %s, 3072" % (s(sBM), s(sWave)))
    e("s_mul_i32 %s, %s, 384" % (s(sBT), s(sWave))); e("s_add_u32 %s, %s, %d" % (s(sBT), s(sBT), TAILB))
    e("s_waitcnt lgkmcnt(0)")
    srd(sP, 54, 8 * SLAB, P_OFF)
    e("s_cmp_eq_u32 %s, 7" % s(sKs)); e("s_cbranch_scc1 K2_SJOB")
    srd(sW, 48, 4608 * 1152); srd(sA, 54, H_BYTES, H_OFF)
    e("s_mul_i32 %s, %s, %d" % (s(sOffW), s(sKs), 21 * 32 * 1152)); e("s_mul_i32 %s, %s, %d" % (s(P.sOffA), s(sKs), 21 * 131072))
    e("s_add_u32 s40, %s, %d" % (s(sOffW), 7 * 96 * 1152)); e("s_min_u32 %s, s40, %s" % (s(sW + 2), s(sW + 2)))
    e("s_branch K2_GO")
    lab("K2_SJOB")
    srd(sW, 54, WO_BYTES, WO_OFF); srd(sA, 54, O_BYTES, O_OFF)
    e("s_mov_b32 %s, 0" % s(sOffW)); e("s_mov_b32 %s, 0" % s(P.sOffA))
    lab("K2_GO")
    P.tiles = [(vMain + i, 4096, 8192) for i in range(8)] + [(vTail, 512, 1024)]
    P.dmas = [(vD, sW, sOffW, sBM, 0, 64), (vDT, sW, sOffW, sBT, 0, 24), (vD + 1, sW, sOffW, sBM, 1024, 64), (vD + 2, sW, sOffW, sBM, 2048, 64)]
    P.dsteps = [(sOffW, 96 * 1152)]
    P.vA = [(vA0, 0), (vA0, 1024)]; P.vmpos = [0, 2, 4, 6]; P.dd = [[0, 1], [2], [3]]
    P.extra = lambda q, kk, wr, tag: None
    P.K = 21; P.groups = [[0, 1, 2], [3, 4], [5, 6], [7, 8]]
    def tail_pre(store):
        e("s_lshl_b32 s40, %s, 3" % s(sMt)); e("s_add_u32 s40, s40, %s" % s(sWave)); e("s_mul_i32 s40, s40, 36")
        e("s_mul_i32 s41, %s, 9" % s(sNt)); e("s_add_u32 s40, s40, s41"); e("s_lshl_b32 s40, s40, 10")
        e("s_mul_i32 s41, %s, %d" % (s(sKs), SLAB)); e("s_add_u32 s40, s40, s41")
        e("s_and_b32 s41, %s, 1" % s(sNt)); e("s_lshl_b32 s42, s41, 10"); e("s_add_u32 s42, s42, s40"); e("s_add_u32 s43, s42, 4096")
        e("s_xor_b32 s41, s41, 1"); e("s_lshl_b32 s41, s41, 13"); e("s_add_u32 s41, s41, s40")
        e("v_lshlrev_b32 %s, 4, %s" % (v(T), v(vL)))
    def fin(g, store):
        for i in g:
            a0 = acc(i, 0)
            for r in range(4): e("v_cvt_pk_bf16_f32 %s, %s, %s" % (v(a0 + r), v(a0 + 2 * r), v(a0 + 2 * r + 1)))
            store("buffer_store_dwordx4 %s, %s, %s, %s offen offset:%d" % (v(a0, 4), v(T), s(sP, 4), ("s42", "s43", "s41")[i >> 2], (i & 3) * 1024) + (" sc1" if FUSE3 else PSC))
    P.tail_pre = tail_pre; P.fin = fin
    mainloop(P)
    stamp(4)
    if FUSE3: k2_tail(sP, sW, sA, sWave, sKs, sMt, sNt, vL, vG, vM, vTid, T)
    stamp_out(2, 8 if FUSE3 else 6, 30)
    lab("K2_END")
    e("s_endpgm")

def gen_k3():
    sX, sP, sOut = 8, 12, 16
    kstart("k3_kernel")
    e("s_cmp_ge_u32 s2, 192"); e("s_cbranch_scc1 K3_END"); stamp_init()
    e("s_load_dwordx2 s[48:49], s[0:1], 0"); e("s_load_dwordx2 s[50:51], s[0:1], 48"); e("s_load_dwordx2 s[54:55], s[0:1], 64")
    e("v_and_b32 v1, 63, v0"); e("v_lshrrev_b32 v2, 6, v0")
    e("s_mul_i32 s40, s2, 12288")
    e("v_mul_u32_u24 v5, 3072, v2"); e("v_lshl_add_u32 v5, v1, 4, v5"); e("v_add_u32 v5, s40, v5")
    e("v_and_b32 v6, 15, v1"); e("v_mul_u32_u24 v6, 400, v6"); e("v_mul_u32_u24 v7, 96, v2"); e("v_lshrrev_b32 v8, 4, v1")
    e("v_lshl_add_u32 v7, v8, 3, v7"); e("v_add_u32 v6, v6, v7")
    e("s_mul_hi_u32 s41, s2, 1431655766"); e("s_mul_i32 s42, s41, 3"); e("s_sub_u32 s42, s2, s42")
    e("s_mul_i32 s41, s41, %d" % (32 * 1152)); e("s_mul_i32 s42, s42, 384"); e("s_add_u32 s41, s41, s42")
    for n in range(3):
        e("v_add_u32 v9, %d, v0" % (256 * n))
        divc(10, 11, 9, 24, 2731, 16)
        e("v_mul_u32_u24 v9, 1152, v10"); e("v_lshl_add_u32 v9, v11, 4, v9"); e("v_add_u32 %s, s41, v9" % v(12 + n))
        e("v_mul_u32_u24 v9, 400, v10"); e("v_lshl_add_u32 %s, v11, 4, v9" % v(15 + n))
    e("s_waitcnt lgkmcnt(0)")
    srd(sX, 48, 2048 * 1152); srd(sOut, 50, 2048 * 1152); srd(sP, 54, 8 * SLAB, P_OFF)
    for k in range(8): e("s_mov_b32 s%d, %d" % (32 + k, k * SLAB))
    B = 32
    for t in range(3):
        for k in range(8):
            e("buffer_load_dwordx4 %s, v5, %s, s%d offen offset:%d" % (v(B + (t * 8 + k) * 4, 4), s(sP, 4), 32 + k, t * 1024))
    XR = 128
    for n in range(3): e("buffer_load_dwordx4 %s, %s, %s, 0 offen" % (v(XR + 4 * n, 4), v(12 + n), s(sX, 4)))
    e("s_mov_b32 s45, 0x%08x" % f2u(-1.4426950408889634)); e("s_mov_b32 s46, 0xffff0000")
    F = 140
    for t in range(3):
        b = B + t * 32
        for k in range(8):
            e("s_waitcnt vmcnt(%d)" % (26 - (t * 8 + k)))
            for r in range(4):
                src = b + k * 4 + r
                if k == 0:
                    e("v_lshlrev_b32 %s, 16, %s" % (v(F + 2 * r), v(src))); e("v_and_b32 %s, s46, %s" % (v(F + 2 * r + 1), v(src)))
                elif k < 7:
                    e("v_lshlrev_b32 v20, 16, %s" % v(src)); e("v_and_b32 v21, s46, %s" % v(src))
                    e("v_add_f32 %s, %s, v20" % (v(F + 2 * r), v(F + 2 * r))); e("v_add_f32 %s, %s, v21" % (v(F + 2 * r + 1), v(F + 2 * r + 1)))
                else:
                    e("v_lshlrev_b32 %s, 16, %s" % (v(F + 8 + 2 * r), v(src))); e("v_and_b32 %s, s46, %s" % (v(F + 8 + 2 * r + 1), v(src)))
        for r in range(8):
            e("v_mul_f32 %s, s45, %s" % (v(F + 16 + r), v(F + r)))
            e("v_exp_f32 %s, %s" % (v(F + 16 + r), v(F + 16 + r)))
            e("v_mul_f32 %s, %s, %s" % (v(F + r), v(F + r), v(F + 8 + r)))
            e("v_add_f32 %s, 1.0, %s" % (v(F + 16 + r), v(F + 16 + r)))
            e("v_rcp_f32 %s, %s" % (v(F + 16 + r), v(F + 16 + r)))
        nop(1)
        for r in range(8): e("v_mul_f32 %s, %s, %s" % (v(F + r), v(F + r), v(F + 16 + r)))
        for r in range(4): e("v_cvt_pk_bf16_f32 %s, %s, %s" % (v(b + r), v(F + 2 * r), v(F + 2 * r + 1)))
        e("ds_write_b64 v6, %s offset:%d" % (v(b, 2), t * 32))
        e("ds_write_b64 v6, %s offset:%d" % (v(b + 2, 2), t * 32 + 6400))
    e("s_waitcnt lgkmcnt(0)"); e("s_barrier")
    for n in range(3): e("ds_read_b128 %s, %s" % (v(B + 4 * n, 4), v(15 + n)))
    e("s_waitcnt vmcnt(0)")
    for n in range(3):
        e("s_waitcnt lgkmcnt(%d)" % (2 - n))
        for r in range(4):
            p = B + 4 * n + r; x = XR + 4 * n + r
            e("v_lshlrev_b32 v20, 16, %s" % v(p)); e("v_and_b32 v21, s46, %s" % v(p))
            e("v_lshlrev_b32 v22, 16, %s" % v(x)); e("v_and_b32 v23, s46, %s" % v(x))
            e("v_add_f32 v20, v20, v22"); e("v_add_f32 v21, v21, v23")
            e("v_cvt_pk_bf16_f32 %s, v20, v21" % v(p))
        e("buffer_store_dwordx4 %s, %s, %s, 0 offen" % (v(B + 4 * n, 4), v(12 + n), s(sOut, 4)))
    stamp_out(3, 2, 2)
    lab("K3_END")
    e("s_endpgm")

def kd(name, vg):
    return [".amdhsa_kernel %s" % name, "  .amdhsa_next_free_vgpr %d" % vg, "  .amdhsa_next_free_sgpr %d" % (96 if INSTR else 64),
            "  .amdhsa_accum_offset %d" % ((vg + 3) // 4 * 4), "  .amdhsa_group_segment_fixed_size 0", "  .amdhsa_kernarg_size 72",
            "  .amdhsa_user_sgpr_count 2", "  .amdhsa_user_sgpr_kernarg_segment_ptr 1",
            "  .amdhsa_system_sgpr_workgroup_id_x 1", "  .amdhsa_float_denorm_mode_32 3", ".end_amdhsa_kernel"]
hdr = ["; generated: LN+repack | QKV/FFN1+attention | FFN2 split-K + wo | reduce+epilogue",
       "; @launch kernel=k0_kernel grid=(256,1,1) block=(256,1,1) lds=0",
       "; @launch kernel=k1_kernel grid=(256,1,1) block=(512,1,1) lds=%d" % K1_LDS,
       "; @launch kernel=k2_kernel grid=(256,1,1) block=(512,1,1) lds=%d" % K2_LDS,
       ] + ([] if FUSE3 else ["; @launch kernel=k3_kernel grid=(192,1,1) block=(256,1,1) lds=12800"]) + [
       '.amdgcn_target "amdgcn-amd-amdhsa--gfx950"', ".text"]
gen_k0(); gen_k1(); gen_k2()
if not FUSE3: gen_k3()
tail = ['.section .rodata,"a"']
for n, vg in (("k0_kernel", 80), ("k1_kernel", 256), ("k2_kernel", 216), ("k3_kernel", 168))[:3 if FUSE3 else 4]:
    tail += [".p2align 6"] + kd(n, vg)
open(sys.argv[1] if len(sys.argv) > 1 else OUT, "w").write("\n".join(hdr + L + tail) + "\n")
print("ok", len(L))
```

```python
import sys
NAME = "recurrent_scan__sliding_local_dilated__dense_activation_relu__prompt"
OUT = "cdna_kernels/%s.s" % NAME

import struct
def f2u(x): return struct.unpack("<I", struct.pack("<f", x))[0]
H_OFF = 0
H_BYTES = 128 * 144 * 1024
O_OFF = H_BYTES
O_BYTES = 2048 * 1152
XN_OFF = O_OFF + O_BYTES
WQ_OFF = XN_OFF + O_BYTES
WQ_BYTES = 32 * 576 * 128
WO_OFF = WQ_OFF + WQ_BYTES
WO_BYTES = 576 * 1152
P_OFF = WO_OFF + WO_BYTES
SLAB = 64 * 36 * 1024
L = []
def e(s): L.append("    " + s)
def lab(s): L.append(s + ":")
def v(i, n=1): return "v%d" % i if n == 1 else "v[%d:%d]" % (i, i + n - 1)
def s(i, n=1): return "s%d" % i if n == 1 else "s[%d:%d]" % (i, i + n - 1)
def nop(n): e("s_nop %d" % (n - 1))
def srd(d, lo, nbytes, add=0):
    if add:
        e("s_add_u32 %s, %s, 0x%x" % (s(d), s(lo), add))
        e("s_addc_u32 %s, %s, 0" % (s(d + 1), s(lo + 1)))
    else:
        e("s_mov_b32 %s, %s" % (s(d), s(lo)))
        e("s_mov_b32 %s, %s" % (s(d + 1), s(lo + 1)))
    e("s_mov_b32 %s, 0x%x" % (s(d + 2), nbytes))
    e("s_mov_b32 %s, 0x00020000" % s(d + 3))
def mfma(d, a, b): e("v_mfma_f32_16x16x32_bf16 %s, %s, %s, %s" % (v(d, 4), v(a, 4), v(b, 4), v(d, 4)))
def kstart(name):
    L.append(".globl %s" % name); L.append(".p2align 8"); L.append(".type %s,@function" % name); lab(name)
def perm_pi(dst, src, t0, t1):
    e("v_and_b32 %s, 35, %s" % (v(dst), v(src)))
    e("v_bfe_u32 %s, %s, 2, 2" % (v(t0), v(src)))
    e("v_lshl_add_u32 %s, %s, 3, %s" % (v(dst), v(t0), v(dst)))
    e("v_bfe_u32 %s, %s, 4, 1" % (v(t1), v(src)))
    e("v_lshl_add_u32 %s, %s, 2, %s" % (v(dst), v(t1), v(dst)))
def divc(q, r, x, c, magic, sh):
    e("v_mul_u32_u24 %s, %d, %s" % (v(q), magic, v(x)))
    e("v_lshrrev_b32 %s, %d, %s" % (v(q), sh, v(q)))
    e("v_mul_u32_u24 %s, %d, %s" % (v(r), c, v(q)))
    e("v_sub_u32 %s, %s, %s" % (v(r), v(x), v(r)))
def bf16r(d, src):
    e("v_cvt_pk_bf16_f32 %s, %s, %s" % (v(d), v(src), v(src)))
    e("v_and_b32 %s, 0xffff0000, %s" % (v(d), v(d)))
def xreduce(a, t):
    for p in ("v_permlane32_swap_b32", "v_permlane16_swap_b32"):
        e("v_mov_b32 %s, %s" % (v(t), v(a)))
        nop(2)
        e("%s %s, %s" % (p, v(a), v(t)))
        nop(2)
        e("v_add_f32 %s, %s, %s" % (v(a), v(a), v(t)))


import os
INSTR = int(os.environ.get("INSTR", "0"))
DBG_OFF = 60 << 20
SOFF = [0]
def stamp(i):
    if not INSTR: return
    i += SOFF[0]
    e("s_memrealtime s[62:63]"); e("s_waitcnt lgkmcnt(0)"); e("s_mov_b32 s%d, s62" % (64 + i))
    if INSTR == 2 and i in (2, 3):
        e("s_memtime s[62:63]"); e("s_waitcnt lgkmcnt(0)"); e("s_mov_b32 s%d, s62" % (64 + i - 2))
def stamp_out(kern, n, vt):
    if not INSTR: return
    SOFF[0] = 0
    stamp(n - 1)
    srd(80, 54, 1 << 20, DBG_OFF + kern * 65536 * 4)
    e("s_lshl_b32 s62, s2, 3"); e("s_add_u32 s62, s62, s84"); e("s_lshl_b32 s62, s62, 6")
    e("s_mov_b64 exec, 1")
    e("v_mov_b32 %s, s62" % v(vt))
    for i in range(n):
        e("v_mov_b32 %s, s%d" % (v(vt + 1), 64 + i))
        e("buffer_store_dword %s, %s, s[80:83], 0 offen offset:%d" % (v(vt + 1), v(vt), 4 * i))
        e("s_nop 1")
def stamp_init():
    if not INSTR: return
    e("v_lshrrev_b32 v1, 6, v0"); e("s_nop 1"); e("v_readfirstlane_b32 s84, v1")
    stamp(0)

HSC = " sc1"
PSC = os.environ.get("PSC", "")
K2_AR = int(os.environ.get("K2_AR", "6"))
PF = int(os.environ.get("PF", "1"))
FUSE3 = int(os.environ.get("FUSE3", "1"))
FLAG_OFF = P_OFF + 8 * SLAB
class Loop:
    pass
def mainloop(P):
    NT = len(P.tiles); D = P.D; AR = P.AR; LA = AR - 1; RW = P.RW; U = AR // 3
    assert (NT * 3 * U) % RW == 0 and D < RW + 0 and AR % 3 == 0
    def wreg(gq): return P.WR + (gq % RW) * 4
    def wread(gq, q=None, kk=None):
        if q is None:
            gq %= NT * 3 * U
            q = gq % NT; kk = (gq // NT) % 3
        base, o16, okk = P.tiles[q]
        if kk == 0: e("v_add_u32 %s, %s, %s" % (v(base), s(P.sDelta), v(base)))
        e("ds_read_b64_tr_b16 %s, %s offset:%d" % (v(wreg(gq), 2), v(base), kk * okk))
        e("ds_read_b64_tr_b16 %s, %s offset:%d" % (v(wreg(gq) + 2, 2), v(base), kk * okk + o16))
    def nextdelta():
        e("s_add_u32 %s, %s, %d" % (s(P.sRd), s(P.sRd), P.STAGE))
        e("s_cmp_ge_u32 %s, %d" % (s(P.sRd), P.STAGE * P.NS))
        e("s_cselect_b32 %s, %d, 0" % (s(P.sDelta), P.STAGE * P.NS))
        e("s_sub_u32 %s, %s, %s" % (s(P.sRd), s(P.sRd), s(P.sDelta)))
        e("s_sub_u32 %s, %d, %s" % (s(P.sDelta), P.STAGE, s(P.sDelta)))
    def dma(n):
        vo, sr, so, sbase, ldsoff, lanes = P.dmas[n]
        e("s_add_u32 m0, %s, %s" % (s(P.sWr), s(sbase)))
        if lanes < 64:
            e("s_mov_b32 exec_lo, 0x%x" % ((1 << min(lanes, 32)) - 1)); e("s_mov_b32 exec_hi, 0")
            assert lanes <= 32
        else: e("s_nop 0")
        e("buffer_load_dwordx4 %s, %s, %s offen offset:%d lds" % (v(vo), s(sr, 4), s(so), ldsoff))
        if lanes < 64: e("s_mov_b64 exec, -1")
        if n == len(P.dmas) - 1:
            for so2, st in P.dsteps: e("s_add_u32 %s, %s, %d" % (s(so2), s(so2), st))
            e("s_add_u32 %s, %s, %d" % (s(P.sWr), s(P.sWr), P.STAGE))
            e("s_cmp_ge_u32 %s, %d" % (s(P.sWr), P.STAGE * P.NS))
            e("s_cselect_b32 %s, 0, %s" % (s(P.sWr), s(P.sWr)))
    def aload(st, f, off):
        e("buffer_load_dwordx4 %s, %s, %s, %s offen offset:%d" % (v(P.act(st, f), 4), v(P.vA[f][0]), s(P.sAct, 4), s(P.sOffA), P.vA[f][1]) + P.asc)
        if f == len(P.vA) - 1: e("s_add_u32 %s, %s, 0x20000" % (s(P.sOffA), s(P.sOffA)))
    NA = len(P.vA); ND = len(P.dmas); dd = P.dd
    cnt = [NA + len(dd[k]) for k in range(3)]
    assert AR == 6 and P.NS == 4
    Q = []
    def A(k): return [("a", k, f) for f in range(NA)]
    def S(st): return [("d", st, n) for n in range(ND)]
    def issue(op):
        Q.append(op)
        if op[0] == "a": aload(op[1] % AR, op[2], 0)
        else: dma(op[2])
    def after(ops): return len(Q) - 1 - max(Q.index(o) for o in ops)
    def wcount(kk): return len(dd[(kk - LA) % 3]) + sum(cnt[(kk - i) % 3] for i in range(1, LA))
    def kstep(k, vm, vpos, tag, emit=True, steady=False):
        ks = k % AR; kk = k % 3
        need = [o for o in A(k) + (S(k // 3 + 1) if kk == 2 else []) if o not in Done]
        w = after(need) if need else 63
        if steady:
            assert wcount(kk) <= w, (k, wcount(kk), w)
            w = wcount(kk)
        if not emit:
            Q.extend(vm); return
        e("s_waitcnt vmcnt(%d)" % w)
        if kk == 2: nextdelta()
        pos = {}
        for i, x in enumerate(vm): pos.setdefault(vpos[i], []).append(x)
        for q in range(NT):
            gq = ks * NT + q
            e("s_waitcnt lgkmcnt(%d)" % (2 * D - 2))
            if kk == 2 and q == NT - D: e("s_barrier")
            wread(gq + D)
            mfma(P.acc(q, 0), wreg(gq), P.act(ks, 0))
            mfma(P.acc(q, 1), wreg(gq), P.act(ks, 1))
            P.extra(q, ks, wreg(gq), tag)
            for x in pos.get(q, []): issue(x)
    def svm(k): return A(k + LA) + [("d", k // 3 + 3, n) for n in dd[k % 3]]
    Done = set()
    e("s_mov_b32 %s, %d" % (s(P.sWr), P.STAGE * P.slot0)); e("s_mov_b32 %s, %d" % (s(P.sRd), P.STAGE * P.slot0))
    e("s_mov_b32 %s, %d" % (s(P.sDelta), P.RB + P.STAGE * P.slot0))
    if P.early:
        for op in S(0) + S(1) + S(2): issue(op)
        P.late_setup()
        yield
        Done = set(Q)
        for op in A(0) + A(1) + A(2): issue(op)
        for q in range(D): wread(q)
        for r in range(P.nacc): e("v_mov_b32 %s, 0" % v(r))
        stamp(1)
        ramp = [A(3) + A(4), A(5) + A(6), A(7) + S(3)]
    else:
        for op in S(0): issue(op)
        P.late_setup()
        for op in A(0) + A(1): issue(op)
        for r in range(P.nacc): e("v_mov_b32 %s, 0" % v(r))
        stamp(1)
        e("s_waitcnt vmcnt(%d)" % after(S(0))); e("s_barrier")
        stamp(2)
        for q in range(D): wread(q)
        ramp = [A(2) + S(1) + A(3), A(4) + S(2) + A(5), A(6) + A(7) + S(3)]
    for k in range(3):
        kstep(k, ramp[k], list(range(NT)), "P")
        if k == 0 and P.early: stamp(2)
    if P.early:
        e("s_waitcnt vmcnt(%d)" % after(A(4))); Done = set(Q[:Q.index(A(4)[-1]) + 1])
    e("s_mov_b32 %s, %d" % (s(P.sCnt), P.K // 3 - 3))
    e("s_branch %s_MID" % P.name)
    Q0 = list(Q)
    for k in range(3, 12): kstep(k, svm(k), None, "", emit=False, steady=True)
    lab(P.name + "_LOOP")
    for u in range(U):
        if u == 1: lab(P.name + "_MID")
        for kk in range(3):
            k = 12 + u * 3 + kk
            kstep(k, svm(k), P.vmpos, "L", steady=True)
        e("s_sub_u32 %s, %s, 1" % (s(P.sCnt), s(P.sCnt)))
        e("s_cmp_lg_u32 %s, 0" % s(P.sCnt))
        if u == U - 1: e("s_cbranch_scc1 %s_LOOP" % P.name)
        else: e("s_cbranch_scc0 %s_DONE" % P.name)
    lab(P.name + "_DONE")
    stamp(3)
    K0 = P.K - 6
    Q[:] = Q0
    for k in range(3, K0): Q.extend(svm(k))
    seq = [(K0, q) for q in range(NT)]; fins = {}
    for g in P.groups:
        seq += [(k, q) for k in range(K0 + 1, P.K) for q in g]
        fins[len(seq) - 1 + 2] = g
    g0 = (K0 % AR) * NT; seen = set(); first = True
    vm = A(P.K - 1)
    def store(txt): Q.append(("s", len(Q))); e(txt)
    for i, (k, q) in enumerate(seq):
        if k not in seen:
            seen.add(k); e("s_waitcnt vmcnt(%d)" % after(A(k)))
        e("s_waitcnt lgkmcnt(%d)" % (2 * min(D - 1, len(seq) - 1 - i)))
        if i + D < len(seq):
            k2, q2 = seq[i + D]
            if k2 == P.K - 3 and first:
                first = False
                nextdelta(); e("s_waitcnt vmcnt(%d)" % after(S(P.K // 3 - 1))); e("s_barrier")
            wread(g0 + i + D, q2, k2 % 3)
        mfma(P.acc(q, 0), wreg(g0 + i), P.act(k % AR, 0))
        mfma(P.acc(q, 1), wreg(g0 + i), P.act(k % AR, 1))
        P.extra(q, k % AR, wreg(g0 + i), "T")
        if i < len(vm): issue(vm[i])
        if i == len(vm): P.tail_pre(store)
        if i in fins: P.fin(fins.pop(i), store)
    e("s_nop 7"); e("s_nop 7")
    for i in sorted(fins): P.fin(fins[i], store)
    P.after = after; P.S = S
    yield

def common_ids(vL, vG, vM, T, sWave):
    e("v_and_b32 %s, 63, v0" % v(vL))
    e("v_lshrrev_b32 %s, 6, v0" % v(T))
    e("v_lshrrev_b32 %s, 4, %s" % (v(vG), v(vL)))
    e("v_readfirstlane_b32 %s, %s" % (s(sWave), v(T)))
    e("v_and_b32 %s, 15, %s" % (v(vM), v(vL)))
def w_setup(vL, T, sWave, sCol, stride, vD, vDT, vMain, vTail, TAILB):
    e("s_mul_i32 s40, %s, 12" % s(sWave))
    e("s_mul_i32 s41, %s, 288" % s(sCol)); e("s_and_b32 s42, %s, 1" % s(sCol))
    e("s_lshl_b32 s43, s42, 5"); e("s_add_u32 s43, s43, s41")
    e("s_xor_b32 s42, s42, 1"); e("s_lshl_b32 s42, s42, 8"); e("s_add_u32 s42, s42, s41")
    e("s_mov_b32 s41, %d" % stride)
    for n in range(3):
        e("v_lshrrev_b32 %s, 4, %s" % (v(T), v(vL)))
        e("v_add3_u32 %s, %s, s40, %d" % (v(T), v(T), 4 * n))
        e("v_bfe_u32 %s, %s, 1, 3" % (v(T + 1), v(vL)))
        e("v_xor_b32 %s, %s, %s" % (v(T + 1), v(T + 1), v(T)))
        e("v_and_b32 %s, 7, %s" % (v(T + 1), v(T + 1)))
        e("v_mul_lo_u32 %s, %s, s41" % (v(T), v(T)))
        e("v_lshl_add_u32 %s, %s, 5, %s" % (v(T), v(T + 1), v(T)))
        e("v_and_b32 %s, 1, %s" % (v(T + 1), v(vL)))
        e("v_lshl_add_u32 %s, %s, 4, %s" % (v(T), v(T + 1), v(T)))
        e("v_add_u32 %s, s43, %s" % (v(vD + n), v(T)))
        e("s_sub_u32 s43, s43, 1024")
    e("v_lshrrev_b32 %s, 1, %s" % (v(T), v(vL)))
    e("v_add_u32 %s, s40, %s" % (v(T), v(T)))
    e("v_mul_lo_u32 %s, %s, s41" % (v(T), v(T)))
    e("v_lshl_add_u32 %s, %s, 4, %s" % (v(T), v(T + 1), v(T)))
    e("v_add_u32 %s, s42, %s" % (v(vDT), v(T)))
def w_setup_rd(vL, T, vMain, vTail, TAILB):
    e("v_lshrrev_b32 %s, 2, %s" % (v(T), v(vL)))
    e("v_and_b32 %s, 3, %s" % (v(T + 1), v(vL)))
    e("v_and_b32 %s, 7, %s" % (v(T + 2), v(T)))
    e("v_lshlrev_b32 %s, 8, %s" % (v(T + 3), v(T)))
    e("v_lshl_add_u32 %s, %s, 5, %s" % (v(T + 3), v(T + 2), v(T + 3)))
    e("v_lshl_add_u32 %s, %s, 3, %s" % (v(vMain), v(T + 1), v(T + 3)))
    for i in range(1, 8): e("v_xor_b32 %s, %d, %s" % (v(vMain + i), i << 5, v(vMain)))
    e("v_lshlrev_b32 %s, 3, %s" % (v(vTail), v(vL)))
    e("v_add_u32 %s, %d, %s" % (v(vTail), TAILB, v(vTail)))

def gen_k0():
    sX, sXN, sWQ, sWQP, sWO, sWOP = 8, 12, 16, 20, 24, 28
    kstart("k0_kernel")
    e("s_cmp_ge_u32 s2, 256"); e("s_cbranch_scc1 K0_END"); stamp_init()
    e("s_load_dwordx4 s[48:51], s[0:1], 0"); e("s_load_dwordx2 s[52:53], s[0:1], 16"); e("s_load_dwordx2 s[54:55], s[0:1], 64")
    e("s_load_dwordx2 s[34:35], s[0:1], 32")
    e("v_lshrrev_b32 v1, 7, v0"); e("v_and_b32 v2, 127, v0"); e("s_nop 0")
    e("v_readfirstlane_b32 s33, v1")
    e("s_waitcnt lgkmcnt(0)")
    srd(sX, 48, 2048 * 1152); srd(sWQ, 50, 576 * 3456); srd(sWO, 52, WO_BYTES)
    srd(sXN, 54, O_BYTES, XN_OFF); srd(sWQP, 54, WQ_BYTES, WQ_OFF); srd(sWOP, 54, WO_BYTES, WO_OFF)
    def pf():
        if not PF: return
        srd(36, 34, 576 * 9216)
        e("s_lshr_b32 s44, s2, 3"); e("s_mul_i32 s44, s44, %d" % (18 * 9216)); e("s_and_b32 s45, s2, 7"); e("s_mul_i32 s45, s45, 1152"); e("s_add_u32 s44, s44, s45")
        for n in range(2):
            e("v_add_u32 v72, %d, v0" % (256 * n)); e("v_min_u32 v72, 323, v72")
            divc(73, 74, 72, 18, 3641, 16)
            e("v_mul_u32_u24 v73, 9216, v73"); e("v_lshl_add_u32 v73, v74, 6, v73")
            e("buffer_load_dword v75, v73, s[36:39], s44 offen")
    e("s_cmp_eq_u32 s33, 0"); e("s_cbranch_scc0 K0_PACK")
    e("s_lshl_b32 s40, s2, 3")
    e("v_lshrrev_b32 v3, 4, v2"); e("v_add_u32 v3, s40, v3"); e("v_and_b32 v4, 15, v2")
    e("v_mul_u32_u24 v5, 1152, v3"); e("v_lshl_add_u32 v5, v4, 3, v5")
    for i in range(9): e("buffer_load_dwordx2 %s, v5, %s, 0 offen offset:%d" % (v(10 + 2 * i, 2), s(sX, 4), i * 128))
    pf()
    e("v_lshrrev_b32 v6, 4, v3"); e("v_lshrrev_b32 v7, 3, v4"); e("v_lshl_add_u32 v6, v7, 7, v6")
    e("v_lshlrev_b32 v6, 10, v6"); e("v_and_b32 v7, 3, v4"); e("v_lshl_add_u32 v6, v7, 8, v6")
    e("v_and_b32 v7, 15, v3"); e("v_lshl_add_u32 v6, v7, 4, v6"); e("v_bfe_u32 v7, v4, 2, 1"); e("v_lshl_add_u32 v6, v7, 3, v6")
    e("s_mov_b32 s40, 0x%08x" % f2u(1.0 / 576.0)); e("s_mov_b32 s41, 0x%08x" % f2u(1e-5))
    X = 32
    e("v_mov_b32 v8, 0")
    for i in range(18):
        if i % 2 == 0: e("s_waitcnt vmcnt(%d)" % (8 - i // 2 + 2 * PF))
        e("v_lshlrev_b32 %s, 16, %s" % (v(X + 2 * i), v(10 + i)))
        e("v_and_b32 %s, 0xffff0000, %s" % (v(X + 2 * i + 1), v(10 + i)))
        e("v_add_f32 v8, v8, %s" % v(X + 2 * i)); e("v_add_f32 v8, v8, %s" % v(X + 2 * i + 1))
    def rowred(r):
        for sh in (8, 4, 2, 1):
            nop(2); e("v_add_f32_dpp %s, %s, %s row_ror:%d row_mask:0xf bank_mask:0xf" % (v(r), v(r), v(r), sh))
    rowred(8)
    e("v_mul_f32 v8, s40, v8")
    bf16r(9, 8)
    e("v_mov_b32 v70, 0")
    for i in range(36):
        e("v_sub_f32 v71, %s, v8" % v(X + i)); e("v_fmac_f32 v70, v71, v71")
    rowred(70)
    e("v_mul_f32 v70, s40, v70"); bf16r(70, 70)
    e("v_add_f32 v70, s41, v70"); bf16r(70, 70)
    e("v_sqrt_f32 v70, v70"); nop(1); bf16r(70, 70)
    e("v_rcp_f32 v70, v70")
    for i in range(18):
        a = X + 2 * i
        e("v_sub_f32 %s, %s, v9" % (v(a), v(a))); e("v_sub_f32 %s, %s, v9" % (v(a + 1), v(a + 1)))
        e("v_cvt_pk_bf16_f32 %s, %s, %s" % (v(a), v(a), v(a + 1)))
        e("v_and_b32 %s, 0xffff0000, %s" % (v(a + 1), v(a))); e("v_lshlrev_b32 %s, 16, %s" % (v(a), v(a)))
        e("v_mul_f32 %s, %s, v70" % (v(a), v(a))); e("v_mul_f32 %s, %s, v70" % (v(a + 1), v(a + 1)))
        e("v_cvt_pk_bf16_f32 %s, %s, %s" % (v(10 + i), v(a), v(a + 1)))
        if i % 2 == 1:
            k = i // 2
            e("s_mov_b32 s42, %d" % (k * 262144))
            e("buffer_store_dwordx2 %s, v6, %s, s42 offen" % (v(10 + i - 1, 2), s(sXN, 4)))
    stamp_out(0, 2, 2)
    e("s_endpgm")
    lab("K0_PACK")
    e("s_lshr_b32 s40, s2, 3"); e("s_and_b32 s41, s2, 7"); e("s_mul_i32 s41, s41, 72"); e("s_mul_i32 s40, s40, 36")
    e("v_lshrrev_b32 v3, 5, v2"); e("v_add_u32 v3, s41, v3"); e("v_mul_u32_u24 v3, 3456, v3")
    e("v_and_b32 v4, 31, v2")
    e("v_lshrrev_b32 v5, 3, v4"); e("v_and_b32 v6, 7, v4")
    e("v_min_u32 v7, 2, v6")
    e("v_cmp_eq_u32 vcc, 3, v5"); nop(2)
    e("v_cndmask_b32 v5, v5, v7, vcc"); e("v_cndmask_b32 v6, v6, 8, vcc")
    e("v_mul_u32_u24 v5, 1152, v5"); e("v_lshl_add_u32 v5, v6, 2, v5"); e("v_add3_u32 v3, v3, v5, s40")
    e("s_mul_i32 s42, s2, 9216"); e("v_lshlrev_b32 v4, 2, v2"); e("v_add_u32 v4, s42, v4")
    for i in range(18):
        e("s_mov_b32 s43, %d" % (i * 4 * 3456))
        e("buffer_load_dword %s, v3, %s, s43 offen" % (v(10 + i), s(sWQ, 4)))
    e("s_mul_i32 s40, s2, 162")
    for n in range(2):
        b = 40 + n * 12
        e("v_add_u32 %s, s40, v2" % v(b))
        if n: e("v_add_u32 %s, 128, %s" % (v(b), v(b)))
        e("s_mov_b32 s41, 59652324"); e("v_mul_hi_u32 %s, %s, s41" % (v(b + 1), v(b)))
        e("v_mul_u32_u24 %s, 72, %s" % (v(b + 2), v(b + 1))); e("v_sub_u32 %s, %s, %s" % (v(b + 2), v(b), v(b + 2)))
        e("v_and_b32 %s, 31, %s" % (v(b + 3), v(b + 1)))
        perm_pi(b + 4, b + 3, b + 5, b + 6)
        e("v_and_b32 %s, 0xffe0, %s" % (v(b + 3), v(b + 1))); e("v_add_u32 %s, %s, %s" % (v(b + 4), v(b + 4), v(b + 3)))
        e("v_lshrrev_b32 %s, 4, %s" % (v(b + 5), v(b + 4))); e("v_mul_u32_u24 %s, 18, %s" % (v(b + 5), v(b + 5)))
        e("v_and_b32 %s, 15, %s" % (v(b + 6), v(b + 4))); e("v_add_u32 %s, %s, %s" % (v(b + 5), v(b + 5), v(b + 6)))
        e("v_bfe_u32 %s, %s, 1, 5" % (v(b + 6), v(b + 4))); e("v_mul_u32_u24 %s, 18, %s" % (v(b + 6), v(b + 6)))
        e("v_and_b32 %s, 1, %s" % (v(b + 7), v(b + 4))); e("v_add3_u32 %s, %s, %s, 16" % (v(b + 6), v(b + 6), v(b + 7)))
        e("v_cmp_gt_u32 vcc, 512, %s" % v(b + 4)); nop(2)
        e("v_cndmask_b32 %s, %s, %s, vcc" % (v(b + 5), v(b + 6), v(b + 5)))
        e("v_mul_u32_u24 %s, 1152, %s" % (v(b + 5), v(b + 5))); e("v_lshl_add_u32 %s, %s, 4, %s" % (v(b + 5), v(b + 2), v(b + 5)))
        e("v_lshlrev_b32 %s, 4, %s" % (v(b), v(b)))
        if n:
            e("v_mov_b32 %s, 0x80000000" % v(b + 7)); e("v_cmp_gt_u32 vcc, 34, v2"); nop(2)
            e("v_cndmask_b32 %s, %s, %s, vcc" % (v(b), v(b + 7), v(b))); e("v_cndmask_b32 %s, %s, %s, vcc" % (v(b + 5), v(b + 7), v(b + 5)))
        e("buffer_load_dwordx4 %s, %s, %s, 0 offen" % (v(b + 8, 4), v(b + 5), s(sWO, 4)))
    pf()
    for i in range(18):
        e("s_waitcnt vmcnt(%d)" % (19 + 2 * PF))
        e("buffer_store_dword %s, v4, %s, 0 offen offset:%d" % (v(10 + i), s(sWQP, 4), 0) if i == 0 else
          "buffer_store_dword %s, v4, %s, s43 offen" % (v(10 + i), s(sWQP, 4)))
        e("s_mov_b32 s43, %d" % ((i + 1) * 512))
    e("s_waitcnt vmcnt(%d)" % (18 + 2 * PF))
    for n in range(2):
        b = 40 + n * 12
        e("buffer_store_dwordx4 %s, %s, %s, 0 offen" % (v(b + 8, 4), v(b), s(sWOP, 4)))
    if FUSE3:
        e("s_cmp_lg_u32 s2, 0"); e("s_cbranch_scc1 K0_NOFLAG")
        srd(36, 54, 8192, FLAG_OFF)
        for r in range(4): e("v_mov_b32 v%d, 0" % (76 + r))
        e("v_lshlrev_b32 v72, 4, v2")
        e("buffer_store_dwordx4 v[76:79], v72, s[36:39], 0 offen")
        e("buffer_store_dwordx4 v[76:79], v72, s[36:39], 0 offen offset:2048")
        e("s_movk_i32 s44, 4096")
        e("buffer_store_dwordx4 v[76:79], v72, s[36:39], s44 offen")
        lab("K0_NOFLAG")
    stamp_out(0, 2, 2)
    lab("K0_END")
    e("s_endpgm")

K1_STAGE = 96 * 416; K1_NS = 4; K1_LDS = K1_STAGE * K1_NS
def gen_k1():
    P = Loop(); P.name = "K1"; P.STAGE = K1_STAGE; P.NS = K1_NS; P.D = 5; P.AR = 6; P.RW = 6; P.asc = ""; P.early = 0; P.slot0 = 0; P.RB = 0
    EX = 104; ACT = 108; WR = 180; vMain = 204; vTail = 212; vQK = 213; vD = 217; vDT = 220; vDQ = 221; ST = 136
    vA0, vA1, vAH = 223, 224, 225; vL, vG, vM, vTid = 226, 227, 228, 229; T = 232
    acc = lambda i, u: (i * 2 + u) * 4
    P.acc = acc; P.act = lambda st, f: ACT + (st * 3 + f) * 4; P.WR = WR; P.nacc = 108
    sX, sW1, sWQ, sH, sO = 8, 12, 16, 20, 24
    sWave, sJ, sMt = 28, 29, 30
    P.sCnt, P.sDelta, P.sRd, P.sWr, P.sT, P.sOffA, P.sAct = 31, 32, 33, 34, 35, 36, sX
    sOffW1, sOffWQ, sBM, sBT, sBQ = 37, 38, 39, 44, 45
    TAILB = 96 * 256; QKB = TAILB + 96 * 32
    kstart("k1_kernel")
    e("s_cmp_ge_u32 s2, 256"); e("s_cbranch_scc1 K1_END"); stamp_init()
    e("s_load_dwordx4 s[56:59], s[0:1], 32"); e("s_load_dwordx2 s[54:55], s[0:1], 64")
    e("s_load_dwordx2 s[60:61], s[0:1], 48"); e("s_load_dwordx2 s[52:53], s[0:1], 0")
    common_ids(vL, vG, vM, T, sWave)
    e("v_mov_b32 %s, v0" % v(vTid))
    e("s_and_b32 s40, s2, 7"); e("s_lshr_b32 s41, s2, 3")
    e("s_lshr_b32 %s, s41, 2" % s(sMt)); e("s_and_b32 s41, s41, 3"); e("s_lshl_b32 s40, s40, 2"); e("s_add_u32 %s, s40, s41" % s(sJ))
    w_setup(vL, T, sWave, sJ, 9216, vD, vDT, vMain, vTail, TAILB)
    e("s_mul_i32 s41, %s, %d" % (s(sJ), 576 * 128))
    for n in range(2):
        e("v_lshrrev_b32 %s, 3, %s" % (v(T), v(vL)))
        e("v_add3_u32 %s, %s, s40, %d" % (v(T), v(T), 8 * n))
        e("v_lshrrev_b32 %s, 1, %s" % (v(T + 1), v(T)))
        e("v_bfe_u32 %s, %s, 1, 2" % (v(T + 2), v(vL)))
        e("v_xor_b32 %s, %s, %s" % (v(T + 1), v(T + 1), v(T + 2)))
        e("v_and_b32 %s, 3, %s" % (v(T + 1), v(T + 1)))
        e("v_lshlrev_b32 %s, 7, %s" % (v(T), v(T)))
        e("v_lshl_add_u32 %s, %s, 5, %s" % (v(T), v(T + 1), v(T)))
        e("v_and_b32 %s, 1, %s" % (v(T + 1), v(vL)))
        e("v_lshl_add_u32 %s, %s, 4, %s" % (v(T), v(T + 1), v(T)))
        e("v_add_u32 %s, s41, %s" % (v(vDQ + n), v(T)))
        e("s_sub_u32 s41, s41, 1024")
    Lsave = len(L)
    w_setup_rd(vL, T, vMain, vTail, TAILB)
    e("v_lshrrev_b32 %s, 2, %s" % (v(T), v(vL)))
    e("v_bfe_u32 %s, %s, 3, 2" % (v(T + 1), v(vL)))
    e("v_lshlrev_b32 %s, 7, %s" % (v(T), v(T)))
    e("v_lshl_add_u32 %s, %s, 5, %s" % (v(T), v(T + 1), v(T)))
    e("v_and_b32 %s, 3, %s" % (v(T + 1), v(vL)))
    e("v_lshl_add_u32 %s, %s, 3, %s" % (v(T), v(T + 1), v(T)))
    for i in range(4):
        e("v_xor_b32 %s, %d, %s" % (v(vQK + i), i << 5, v(T)))
        e("v_add_u32 %s, %d, %s" % (v(vQK + i), QKB, v(vQK + i)))
    e("s_lshl_b32 s40, %s, 4" % s(sMt)); e("s_lshl_b32 s41, %s, 1" % s(sWave)); e("s_add_u32 s41, s41, s40")
    e("s_lshl_b32 s41, s41, 10")
    e("v_lshlrev_b32 %s, 4, %s" % (v(T), v(vL)))
    e("v_add_u32 %s, s41, %s" % (v(vA0), v(T)))
    e("s_sub_u32 s41, s40, 1"); e("s_lshl_b32 s41, s41, 10")
    e("s_cmp_eq_u32 %s, 0" % s(sMt)); e("s_cselect_b32 s41, 0x80000000, s41")
    e("s_cmp_gt_u32 %s, 2" % s(sWave)); e("s_cselect_b32 s41, 0x80000000, s41")
    e("v_add_u32 %s, s41, %s" % (v(vAH), v(T)))
    late = L[Lsave:]; del L[Lsave:]
    P.late_setup = lambda: L.extend(late)
    e("s_mul_i32 %s, %s, 3072" % (s(sBM), s(sWave)))
    e("s_mul_i32 %s, %s, 384" % (s(sBT), s(sWave))); e("s_add_u32 %s, %s, %d" % (s(sBT), s(sBT), TAILB))
    e("s_mul_i32 %s, %s, 1536" % (s(sBQ), s(sWave))); e("s_add_u32 %s, %s, %d" % (s(sBQ), s(sBQ), QKB))
    e("s_mov_b32 %s, 0" % s(sOffW1)); e("s_mov_b32 %s, 0" % s(sOffWQ)); e("s_mov_b32 %s, 0" % s(P.sOffA))
    e("s_waitcnt lgkmcnt(0)")
    srd(sX, 54, O_BYTES, XN_OFF); srd(sW1, 56, 576 * 9216); srd(sH, 54, H_BYTES, H_OFF); srd(sO, 54, O_BYTES, O_OFF)
    srd(sWQ, 54, WQ_BYTES, WQ_OFF)
    e("s_add_u32 s40, %s, 1" % s(sJ)); e("s_mul_i32 %s, s40, %d" % (s(sWQ + 2), 576 * 128))
    P.tiles = [(vMain + i, 4096, 8192) for i in range(8)] + [(vTail, 512, 1024)] + [(vQK + i, 2048, 4096) for i in range(4)]
    P.dmas = [(vD, sW1, sOffW1, sBM, 0, 64), (vD + 1, sW1, sOffW1, sBM, 1024, 64), (vD + 2, sW1, sOffW1, sBM, 2048, 64),
              (vDT, sW1, sOffW1, sBT, 0, 24), (vDQ, sWQ, sOffWQ, sBQ, 0, 64), (vDQ + 1, sWQ, sOffWQ, sBQ, 1024, 32)]
    P.dsteps = [(sOffW1, 96 * 9216), (sOffWQ, 96 * 128)]
    P.vA = [(vA0, 0), (vA0, 1024), (vAH, 0)]; P.vmpos = [0, 2, 4, 7, 10]; P.dd = [[0, 1], [2, 3], [4, 5]]
    def extra(q, kk, wr, tag):
        if q >= 10:
            e("s_cmp_eq_u32 %s, %d" % (s(sWave), q - 10)); e("s_cbranch_scc0 K1_X%s%d_%d" % (tag, q, kk))
            mfma(EX, wr, P.act(kk, 2))
            lab("K1_X%s%d_%d" % (tag, q, kk))
    P.extra = extra
    P.K = 18; P.groups = [[0, 1, 2, 3], [4, 5], [6, 7], [8, 9], [10, 11, 12]]
    def tail_pre(store):
        e("s_mul_i32 s40, %s, 9" % s(sJ)); e("s_and_b32 s41, %s, 1" % s(sJ))
        e("s_add_u32 s42, s40, s41"); e("s_lshr_b32 s42, s42, 1"); e("s_lshl_b32 s47, s42, 17")
        e("s_xor_b32 s43, s41, 1"); e("s_lshl_b32 s43, s43, 3"); e("s_add_u32 s43, s43, s40"); e("s_lshr_b32 s43, s43, 1"); e("s_lshl_b32 s43, s43, 17")
        e("s_lshl_b32 s41, s41, 3"); e("s_add_u32 s43, s43, s41")
        for i in range(1, 4): e("s_add_u32 s%d, s47, %d" % (47 + i, i << 17))
        if PF:
            srd(sW1, 58, 4608 * 1152)
            e("s_and_b32 s40, s2, 7"); e("s_mul_i32 s40, s40, %d" % (672 * 1152)); e("s_lshr_b32 s41, s2, 3"); e("s_mul_i32 s41, s41, %d" % (378 * 64))
            e("s_add_u32 s40, s40, s41")
            e("v_min_u32 v248, 377, %s" % v(vTid)); e("v_lshlrev_b32 v248, 6, v248")
            store("buffer_load_dword v249, v248, %s, s40 offen" % s(sW1, 4))
    def fin(g, store):
        for i in g:
            if i > 8 or i & 1: continue
            for u in range(2):
                d = acc(i, u); srcs = [d, d + 2] + ([d + 8, d + 10] if i < 8 else [])
                for n, sr in enumerate(srcs): e("v_cvt_pk_bf16_f32 %s, %s, %s" % (v(d + n), v(sr), v(sr + 1)))
                for n in range(len(srcs)): e("v_pk_max_i16 %s, %s, 0" % (v(d + n), v(d + n)))
                if i == 8: store("buffer_store_dwordx2 %s, %s, %s, s43 offen offset:%d%s" % (v(d, 2), v(vA0), s(sH, 4), u * 1024, HSC))
                else: store("buffer_store_dwordx4 %s, %s, %s, %s offen offset:%d%s" % (v(d, 4), v(vA0), s(sH, 4), s(47 + (i >> 1)), u * 1024, HSC))
    P.tail_pre = tail_pre; P.fin = fin
    next(mainloop(P))
    e("s_waitcnt vmcnt(0)"); e("s_barrier")
    stamp(4)
    sFl = 20
    srd(sFl, 54, 8192, FLAG_OFF)
    e("v_lshlrev_b32 v250, 2, %s" % v(vL)); e("v_mov_b32 v251, 1")
    e("s_lshl_b32 s47, %s, 7" % s(sMt)); e("s_add_u32 s47, s47, 4096")
    e("s_lshl_b32 s48, %s, 2" % s(sJ)); e("s_add_u32 s48, s48, s47")
    e("s_cmp_lg_u32 %s, 7" % s(sWave)); e("s_cbranch_scc1 K1_NF")
    e("s_mov_b64 exec, 1")
    e("buffer_store_dword v251, v250, %s, s48 offen sc1" % s(sFl, 4))
    e("s_mov_b64 exec, -1")
    lab("K1_NF")
    k2 = gen_k2(vL, vG, vM, vTid)
    next(k2)
    QB, KB, VB = 0, 20480, 20480 + 21760
    e("s_lshl_b32 s44, %s, 5" % s(sWave))
    e("v_add_u32 %s, s44, %s" % (v(T + 9), v(vM)))
    e("v_mul_u32_u24 %s, 80, %s" % (v(T + 9), v(T + 9)))
    e("v_lshl_add_u32 %s, %s, 4, %s" % (v(T + 8), v(vG), v(T + 9)))
    e("v_mul_u32_u24 %s, %d, %s" % (v(T + 10), VB + 1280 - QB, v(vG)))
    e("v_add_u32 %s, %s, %s" % (v(T + 10), v(T + 10), v(T + 9)))
    for u in range(2):
        e("ds_write_b128 %s, %s offset:%d" % (v(T + 8), v(acc(9, u), 4), QB + u * 1280))
        e("ds_write_b128 %s, %s offset:%d" % (v(T + 8), v(acc(10, u), 4), KB + 1280 + u * 1280))
        e("ds_write_b128 %s, %s offset:%d" % (v(T + 8), v(acc(11, u), 4), VB + 1280 + u * 1280))
        e("s_mov_b32 exec_hi, 0")
        e("ds_write_b64 %s, %s offset:%d" % (v(T + 10), v(acc(12, u), 2), QB + 64 + u * 1280))
        e("s_mov_b32 exec_lo, 0xffff")
        e("ds_write_b64 %s, %s offset:%d" % (v(T + 9), v(acc(12, u) + 2, 2), KB + 1280 + 64 + u * 1280))
        e("s_mov_b64 exec, -1")
    e("v_mul_u32_u24 %s, 80, %s" % (v(T + 9), v(vM)))
    e("v_lshl_add_u32 %s, %s, 4, %s" % (v(T + 10), v(vG), v(T + 9)))
    e("s_cmp_gt_u32 %s, 1" % s(sWave)); e("s_cbranch_scc1 K1_H2")
    e("s_mul_i32 s44, %s, %d" % (s(sWave), VB - KB))
    e("v_add_u32 %s, s44, %s" % (v(T + 10), v(T + 10)))
    e("ds_write_b128 %s, %s offset:%d" % (v(T + 10), v(EX, 4), KB))
    e("s_branch K1_HD")
    lab("K1_H2")
    e("s_cmp_eq_u32 %s, 2" % s(sWave)); e("s_cbranch_scc0 K1_HD")
    e("s_mov_b64 exec, 0xffff")
    e("ds_write_b64 %s, %s offset:%d" % (v(T + 9), v(EX + 2, 2), KB + 64))
    e("s_mov_b32 exec_lo, 0xffff0000")
    e("ds_write_b64 %s, %s offset:%d" % (v(T + 9), v(EX, 2), VB + 64))
    e("s_mov_b64 exec, -1")
    lab("K1_HD")
    stamp(5)
    e("s_waitcnt lgkmcnt(0)"); e("s_barrier")
    stamp(6)
    Qr = 0; Kr = 12; LG = 112; Or = 124; vB, vBt, vRow = T + 12, T + 13, T + 14
    e("v_lshrrev_b32 %s, 5, %s" % (v(T + 15), v(vTid)))
    e("v_lshl_add_u32 %s, %s, 4, %s" % (v(vRow), v(T + 15), v(vM)))
    e("v_and_b32 %s, 1, %s" % (v(T), v(vG)))
    e("v_mul_u32_u24 %s, 80, %s" % (v(T + 1), v(vRow)))
    e("v_lshl_add_u32 %s, %s, 5, %s" % (v(vB), v(T), v(T + 1)))
    e("v_lshl_add_u32 %s, %s, 2, %s" % (v(vBt), v(T), v(T + 1)))
    def rec(dst, base_off):
        e("ds_read_b128 %s, %s offset:%d" % (v(dst, 4), v(vB), base_off))
        e("ds_read_b128 %s, %s offset:%d" % (v(dst + 4, 4), v(vB), base_off + 16))
        e("ds_read_b32 %s, %s offset:%d" % (v(dst + 8), v(vBt), base_off + 64))
    rec(Qr, QB)
    for w in range(4): rec(Kr + w * 12, KB + 1280 - 160 * w)
    e("s_lshl_b32 s40, %s, 8" % s(sMt))
    e("v_add_u32 %s, s40, %s" % (v(vRow), v(vRow)))
    e("s_mov_b32 s41, 0x%08x" % f2u(18 ** -0.5 * 1.4426950408889634))
    e("v_mov_b32 %s, 0x%08x" % (v(T + 2), f2u(-1e9 * 1.4426950408889634)))
    for w in range(8):
        e("s_waitcnt lgkmcnt(%d)" % (9 if w < 5 else 9 - 3 * (w - 4)))
        kr = Kr + w * 12
        e("v_mul_f32 %s, %s, %s" % (v(LG + w), v(Qr), v(kr)))
        for d in range(1, 9): e("v_fmac_f32 %s, %s, %s" % (v(LG + w), v(Qr + d), v(kr + d)))
        if w < 4: rec(Kr + (w + 4) * 12, KB + 1280 - 160 * (w + 4))
    for w in range(5): rec(Kr + w * 12, VB + 1280 - 160 * w)
    for w in range(8): e("v_mov_b32 %s, %s" % (v(Or + w), v(LG + w)))
    nop(2)
    for w in range(8): e("v_permlane16_swap_b32 %s, %s" % (v(LG + w), v(Or + w)))
    nop(2)
    for w in range(8):
        e("v_add_f32 %s, %s, %s" % (v(LG + w), v(LG + w), v(Or + w)))
        e("v_cmp_le_u32 vcc, %d, %s" % (2 * w, v(vRow)))
        e("v_mul_f32 %s, s41, %s" % (v(LG + w), v(LG + w)))
        nop(1)
        e("v_cndmask_b32 %s, %s, %s, vcc" % (v(LG + w), v(T + 2), v(LG + w)))
    e("v_max3_f32 %s, %s, %s, %s" % (v(T + 3), v(LG), v(LG + 1), v(LG + 2)))
    e("v_max3_f32 %s, %s, %s, %s" % (v(T + 3), v(T + 3), v(LG + 3), v(LG + 4)))
    e("v_max3_f32 %s, %s, %s, %s" % (v(T + 3), v(T + 3), v(LG + 5), v(LG + 6)))
    e("v_max_f32 %s, %s, %s" % (v(T + 3), v(T + 3), v(LG + 7)))
    for w in range(8):
        e("v_sub_f32 %s, %s, %s" % (v(LG + w), v(LG + w), v(T + 3)))
        e("v_exp_f32 %s, %s" % (v(LG + w), v(LG + w)))
    nop(1)
    e("v_add_f32 %s, %s, %s" % (v(T + 4), v(LG), v(LG + 1)))
    for w in range(2, 8): e("v_add_f32 %s, %s, %s" % (v(T + 4), v(T + 4), v(LG + w)))
    e("v_rcp_f32 %s, %s" % (v(T + 4), v(T + 4)))
    for w in range(8):
        e("s_waitcnt lgkmcnt(%d)" % (3 * (min(w + 4, 7) - w)))
        kr = Kr + w * 12
        for d in range(9):
            if w == 0: e("v_mul_f32 %s, %s, %s" % (v(Or + d), v(LG), v(kr + d)))
            else: e("v_fmac_f32 %s, %s, %s" % (v(Or + d), v(LG + w), v(kr + d)))
        if w + 5 < 8: rec(Kr + (w + 5) * 12, VB + 1280 - 160 * (w + 5))
    for d in range(9): e("v_mul_f32 %s, %s, %s" % (v(Or + d), v(T + 4), v(Or + d)))
    for d in range(4): e("v_cvt_pk_bf16_f32 %s, %s, %s" % (v(Qr + d), v(Or + 2 * d), v(Or + 2 * d + 1)))
    e("v_mov_b32 %s, %s" % (v(Or + 9), v(Or + 8)))
    nop(2)
    e("v_permlane16_swap_b32 %s, %s" % (v(Or + 8), v(Or + 9)))
    nop(2)
    e("v_cvt_pk_bf16_f32 %s, %s, %s" % (v(Qr + 4), v(Or + 8), v(Or + 9)))
    e("s_lshl_b32 s40, %s, 4" % s(sMt))
    e("v_add_u32 %s, s40, %s" % (v(T + 5), v(T + 15)))
    e("v_lshlrev_b32 %s, 10, %s" % (v(T + 5), v(T + 5)))
    e("v_lshl_add_u32 %s, %s, 4, %s" % (v(T + 5), v(vM), v(T + 5)))
    e("v_lshl_add_u32 %s, %s, 8, %s" % (v(T + 6), v(T), v(T + 5)))
    e("s_lshr_b32 s42, %s, 1" % s(sJ)); e("s_lshl_b32 s42, s42, 17"); e("s_and_b32 s41, %s, 1" % s(sJ)); e("s_lshl_b32 s41, s41, 9"); e("s_add_u32 s42, s42, s41")
    e("s_bfe_u32 s43, %s, 0x20002" % s(sJ)); e("s_lshl_b32 s43, s43, 8"); e("s_and_b32 s41, %s, 3" % s(sJ)); e("s_lshl_b32 s41, s41, 2")
    e("s_add_u32 s43, s43, s41"); e("s_lshr_b32 s41, %s, 4" % s(sJ)); e("s_add_u32 s41, s41, 16"); e("s_lshl_b32 s41, s41, 17"); e("s_add_u32 s43, s43, s41")
    e("buffer_store_dwordx4 %s, %s, %s, s42 offen sc1" % (v(Qr, 4), v(T + 6), s(sO, 4)))
    e("s_mov_b32 exec_lo, 0xffff"); e("s_mov_b32 exec_hi, 0xffff")
    e("buffer_store_dword %s, %s, %s, s43 offen sc1" % (v(Qr + 4), v(T + 5), s(sO, 4)))
    e("s_mov_b64 exec, -1")
    stamp(7)
    def poll(name, sline, smask):
        e("s_mov_b32 exec_hi, 0"); e("s_mov_b32 s42, 0")
        lab(name)
        e("buffer_load_dword v252, v250, %s, %s offen sc1" % (s(sFl, 4), sline))
        e("s_add_u32 s42, s42, 1"); e("s_cmp_gt_u32 s42, 40000"); e("s_cbranch_scc1 %sX" % name)
        e("s_waitcnt vmcnt(0)")
        e("v_cmp_eq_u32 vcc, 1, v252"); e("s_nop 3")
        e("s_and_b32 s43, vcc_lo, %s" % smask); e("s_cmp_eq_u32 s43, %s" % smask); e("s_cbranch_scc0 %s" % name)
        lab(name + "X")
        e("s_mov_b64 exec, -1")
    sKs = 51
    e("s_cmp_lg_u32 %s, 0" % s(sWave)); e("s_cbranch_scc1 K1_S1"); e("s_cmp_eq_u32 %s, 7" % s(sKs)); e("s_cbranch_scc1 K1_S1")
    e("s_mul_i32 s40, %s, 14" % s(sKs)); e("s_add_u32 s41, s40, 16"); e("s_mul_i32 s40, s40, 21846"); e("s_lshr_b32 s40, s40, 16")
    e("s_mul_i32 s41, s41, 21846"); e("s_lshr_b32 s41, s41, 16"); e("s_sub_u32 s41, s41, s40"); e("s_bfm_b32 s40, s41, s40")
    poll("K1_PH", "s47", "s40")
    lab("K1_S1")
    e("s_waitcnt vmcnt(0)"); e("s_barrier")
    e("s_cmp_lg_u32 %s, 0" % s(sWave)); e("s_cbranch_scc1 K1_S2")
    e("s_mov_b64 exec, 1")
    e("buffer_store_dword v251, v250, %s, s48 offen offset:1024 sc1" % s(sFl, 4))
    e("s_mov_b64 exec, -1")
    e("s_cmp_lg_u32 %s, 7" % s(sKs)); e("s_cbranch_scc1 K1_S2")
    e("s_add_u32 s47, s47, 1024"); e("s_mov_b32 s40, -1")
    poll("K1_PO", "s47", "s40")
    lab("K1_S2")
    e("s_cmp_lg_u32 %s, 7" % s(sKs)); e("s_cbranch_scc1 K1_S3")
    e("s_barrier")
    lab("K1_S3")
    stamp(8)
    SOFF[0] = 8
    next(k2)
    stamp_out(1, 16, 30)
    lab("K1_END")
    e("s_endpgm")

K2_STAGE = 96 * 288; K2_NS = 4; K2_LDS = K2_STAGE * K2_NS
def reduce_vals(src, nd, F):
    for k in range(8):
        for r in range(nd):
            x = src(k, r)
            if k == 0 or k == 7:
                o = F + (8 if k else 0) + 2 * r
                e("v_lshlrev_b32 %s, 16, %s" % (v(o), v(x))); e("v_and_b32 %s, s46, %s" % (v(o + 1), v(x)))
            else:
                tp = F + 16 + 2 * (r & 1)
                e("v_lshlrev_b32 %s, 16, %s" % (v(tp), v(x))); e("v_and_b32 %s, s46, %s" % (v(tp + 1), v(x)))
                e("v_pk_add_f32 %s, %s, %s" % (v(F + 2 * r, 2), v(F + 2 * r, 2), v(tp, 2)))
    for r in range(2 * nd):
        e("v_mul_f32 %s, s45, %s" % (v(F + 16 + r), v(F + r)))
        e("v_exp_f32 %s, %s" % (v(F + 16 + r), v(F + 16 + r)))
        e("v_mul_f32 %s, %s, %s" % (v(F + r), v(F + r), v(F + 8 + r)))
        e("v_add_f32 %s, 1.0, %s" % (v(F + 16 + r), v(F + 16 + r)))
        e("v_rcp_f32 %s, %s" % (v(F + 16 + r), v(F + 16 + r)))
    nop(1)
    for r in range(2 * nd): e("v_mul_f32 %s, %s, %s" % (v(F + r), v(F + r), v(F + 16 + r)))
    for r in range(nd): e("v_cvt_pk_bf16_f32 %s, %s, %s" % (v(F + 24 + r), v(F + 2 * r), v(F + 2 * r + 1)))
def k2_tail(sP, sX, sFl, sWave, sKs, sMt, sNt, vL, vG, vM, vTid, T):
    sOut = 20; YS = 304
    srd(sX, 52, 2048 * 1152); srd(sOut, 60, 2048 * 1152); srd(sFl, 54, 4096, FLAG_OFF)
    e("s_lshl_b32 s40, %s, 3" % s(sMt)); e("s_add_u32 s40, s40, %s" % s(sKs))
    e("s_mul_i32 s41, s40, %d" % (32 * 1152)); e("s_mul_i32 s42, %s, 288" % s(sNt)); e("s_add_u32 s41, s41, s42")
    vXA, vYA, XR = 72, 74, 76
    for n in range(2):
        e("v_add_u32 %s, %d, %s" % (v(T + 1), 512 * n, v(vTid)))
        divc(T + 2, T + 3, T + 1, 18, 3641, 16)
        e("v_mul_u32_u24 %s, 1152, %s" % (v(T + 4), v(T + 2))); e("v_lshl_add_u32 %s, %s, 4, %s" % (v(T + 4), v(T + 3), v(T + 4)))
        e("v_add_u32 %s, s41, %s" % (v(vXA + n), v(T + 4)))
        e("v_mul_u32_u24 %s, %d, %s" % (v(T + 4), YS, v(T + 2))); e("v_lshl_add_u32 %s, %s, 4, %s" % (v(vYA + n), v(T + 3), v(T + 4)))
    e("s_cmp_eq_u32 %s, 0" % s(sWave)); e("s_cselect_b32 s47, 0, 0x40000000")
    e("buffer_load_dwordx4 %s, %s, %s, 0 offen" % (v(XR, 4), v(vXA), s(sX, 4)))
    e("buffer_load_dwordx4 %s, %s, %s, s47 offen" % (v(XR + 4, 4), v(vXA + 1), s(sX, 4)))
    e("s_mul_i32 s40, s40, 36"); e("s_mul_i32 s41, %s, 9" % s(sNt)); e("s_add_u32 s40, s40, s41")
    e("s_add_u32 s41, s40, %s" % s(sWave)); e("s_lshl_b32 s41, s41, 10"); e("s_add_u32 s40, s40, 8"); e("s_lshl_b32 s40, s40, 10")
    e("s_lshl_b32 s42, %s, 2" % s(sWave)); e("s_add_u32 s40, s40, s42")
    e("v_add_u32 %s, s41, %s" % (v(T + 1), v(T)))
    e("v_add_u32 %s, s40, %s" % (v(T + 2), v(T)))
    e("v_mul_u32_u24 %s, %d, %s" % (v(T + 3), YS, v(vM))); e("v_lshl_add_u32 %s, %s, 3, %s" % (v(T + 3), v(vG), v(T + 3)))
    e("s_lshr_b32 s40, %s, 1" % s(sWave)); e("s_mul_i32 s40, s40, %d" % (16 * YS)); e("s_and_b32 s41, %s, 1" % s(sWave)); e("s_lshl_b32 s41, s41, 2")
    e("s_add_u32 s40, s40, s41"); e("v_add_u32 %s, s40, %s" % (v(T + 4), v(T + 3)))
    e("s_lshl_b32 s40, %s, 5" % s(sWave)); e("v_add_u32 %s, s40, %s" % (v(T + 3), v(T + 3)))
    for k in range(8): e("s_mov_b32 s%d, %d" % (32 + k, k * SLAB))
    e("s_mov_b32 s45, 0x%08x" % f2u(-1.4426950408889634)); e("s_mov_b32 s46, 0xffff0000")
    e("s_lshr_b32 s40, s2, 3"); e("s_lshl_b32 s40, s40, 7")
    e("v_lshlrev_b32 %s, 2, %s" % (v(T + 5), v(vL))); e("v_mov_b32 %s, 1" % v(T + 6))
    e("s_lshl_b32 s41, %s, 2" % s(sKs)); e("s_add_u32 s41, s41, s40")
    e("s_waitcnt vmcnt(0)"); e("s_barrier")
    stamp(5)
    e("s_cmp_lg_u32 %s, 0" % s(sWave)); e("s_cbranch_scc1 K2_WAITB")
    e("s_mov_b64 exec, 1")
    e("buffer_store_dword %s, %s, %s, s41 offen sc1" % (v(T + 6), v(T + 5), s(sFl, 4)))
    e("s_mov_b64 exec, 0xff"); e("s_mov_b32 s42, 0")
    lab("K2_POLL")
    e("buffer_load_dword %s, %s, %s, s40 offen sc1" % (v(T + 7), v(T + 5), s(sFl, 4)))
    e("s_add_u32 s42, s42, 1"); e("s_cmp_gt_u32 s42, 40000"); e("s_cbranch_scc1 K2_POLLX")
    e("s_waitcnt vmcnt(0)")
    e("v_cmp_eq_u32 vcc, 1, %s" % v(T + 7)); e("s_nop 3")
    e("s_cmp_eq_u32 vcc_lo, 0xff"); e("s_cbranch_scc0 K2_POLL")
    lab("K2_POLLX")
    e("s_mov_b64 exec, -1")
    lab("K2_WAITB")
    e("s_barrier")
    stamp(6)
    for k in range(8): e("buffer_load_dwordx4 %s, %s, %s, s%d offen sc1" % (v(4 * k, 4), v(T + 1), s(sP, 4), 32 + k))
    e("s_cmp_gt_u32 %s, 3" % s(sWave)); e("s_cbranch_scc1 K2_NOQ")
    for k in range(8): e("buffer_load_dword %s, %s, %s, s%d offen sc1" % (v(32 + k), v(T + 2), s(sP, 4), 32 + k))
    e("s_waitcnt vmcnt(0)")
    reduce_vals(lambda k, r: 32 + k, 1, 88)
    e("ds_write_b32 %s, %s offset:256" % (v(T + 4), v(88 + 24)))
    lab("K2_NOQ")
    e("s_waitcnt vmcnt(0)")
    reduce_vals(lambda k, r: 4 * k + r, 4, 40)
    e("ds_write_b64 %s, %s" % (v(T + 3), v(64, 2)))
    e("ds_write_b64 %s, %s offset:%d" % (v(T + 3), v(66, 2), 16 * YS))
    e("s_waitcnt lgkmcnt(0)"); e("s_barrier")
    def fin(n):
        e("ds_read_b128 %s, %s" % (v(0, 4), v(vYA + n)))
        e("s_waitcnt lgkmcnt(0)")
        for r in range(4):
            x = XR + 4 * n + r
            e("v_lshlrev_b32 v8, 16, %s" % v(r)); e("v_and_b32 v9, s46, %s" % v(r))
            e("v_lshlrev_b32 v10, 16, %s" % v(x)); e("v_and_b32 v11, s46, %s" % v(x))
            e("v_pk_add_f32 v[8:9], v[8:9], v[10:11]")
            e("v_cvt_pk_bf16_f32 %s, v8, v9" % v(12 + 4 * n + r))
        e("buffer_store_dwordx4 %s, %s, %s, 0 offen" % (v(12 + 4 * n, 4), v(vXA + n), s(sOut, 4)))
    fin(0)
    e("s_cmp_lg_u32 %s, 0" % s(sWave)); e("s_cbranch_scc1 K2_FIN")
    fin(1)
    lab("K2_FIN")
def gen_k2(vL, vG, vM, vTid):
    P = Loop(); P.name = "K2"; P.STAGE = K2_STAGE; P.NS = K2_NS; P.D = 6; P.AR = K2_AR; P.RW = 9
    P.asc = " sc1"; P.early = 1; P.slot0 = 1; P.RB = K1_LDS - K2_LDS
    ACT = 72; WR = 144; vMain = 180; vTail = 188; vD = 189; vDT = 192; vA0, vA1 = 193, 194; T = 200
    acc = lambda i, u: (i * 2 + u) * 4
    P.acc = acc; P.act = lambda st, f: ACT + (st * 2 + f) * 4; P.WR = WR; P.nacc = 72
    sW, sA, sP = 8, 12, 16
    sWave, sKs, sMt, sNt = 28, 51, 30, 46
    P.sCnt, P.sDelta, P.sRd, P.sWr, P.sT, P.sOffA, P.sAct = 31, 32, 33, 34, 35, 36, sA
    sOffW, sBM, sBT = 37, 39, 45
    TAILB = 96 * 256
    e("s_and_b32 %s, s2, 7" % s(sKs)); e("s_bfe_u32 %s, s2, 0x20003" % s(sNt))
    w_setup(vL, T, sWave, sNt, 1152, vD, vDT, vMain, vTail, TAILB)
    Lsave = len(L)
    w_setup_rd(vL, T, vMain, vTail, TAILB)
    e("s_lshl_b32 s40, %s, 4" % s(sMt)); e("s_lshl_b32 s41, %s, 1" % s(sWave)); e("s_add_u32 s41, s41, s40")
    e("s_lshl_b32 s41, s41, 10")
    e("v_lshlrev_b32 %s, 4, %s" % (v(T), v(vL)))
    e("v_add_u32 %s, s41, %s" % (v(vA0), v(T)))
    late = L[Lsave:]; del L[Lsave:]
    P.late_setup = lambda: L.extend(late)
    e("s_mul_i32 %s, %s, 3072" % (s(sBM), s(sWave))); e("s_add_u32 %s, %s, %d" % (s(sBM), s(sBM), P.RB))
    e("s_mul_i32 %s, %s, 384" % (s(sBT), s(sWave))); e("s_add_u32 %s, %s, %d" % (s(sBT), s(sBT), TAILB + P.RB))
    srd(sP, 54, 8 * SLAB, P_OFF)
    e("s_cmp_eq_u32 %s, 7" % s(sKs)); e("s_cbranch_scc1 K2_SJOB")
    srd(sW, 58, 4608 * 1152); srd(sA, 54, H_BYTES, H_OFF)
    e("s_mul_i32 %s, %s, %d" % (s(sOffW), s(sKs), 21 * 32 * 1152)); e("s_mul_i32 %s, %s, %d" % (s(P.sOffA), s(sKs), 21 * 131072))
    e("s_add_u32 s40, %s, %d" % (s(sOffW), 7 * 96 * 1152)); e("s_min_u32 %s, s40, %s" % (s(sW + 2), s(sW + 2)))
    e("s_branch K2_GO")
    lab("K2_SJOB")
    srd(sW, 54, WO_BYTES, WO_OFF); srd(sA, 54, O_BYTES, O_OFF)
    e("s_mov_b32 %s, 0" % s(sOffW)); e("s_mov_b32 %s, 0" % s(P.sOffA))
    lab("K2_GO")
    P.tiles = [(vMain + i, 4096, 8192) for i in range(8)] + [(vTail, 512, 1024)]
    P.dmas = [(vD, sW, sOffW, sBM, 0, 64), (vDT, sW, sOffW, sBT, 0, 24), (vD + 1, sW, sOffW, sBM, 1024, 64), (vD + 2, sW, sOffW, sBM, 2048, 64)]
    P.dsteps = [(sOffW, 96 * 1152)]
    P.vA = [(vA0, 0), (vA0, 1024)]; P.vmpos = [0, 2, 4, 6]; P.dd = [[0, 1], [2], [3]]
    P.extra = lambda q, kk, wr, tag: None
    P.K = 21; P.groups = [[0, 1, 2], [3, 4], [5, 6], [7, 8]]
    def tail_pre(store):
        e("s_lshl_b32 s40, %s, 3" % s(sMt)); e("s_add_u32 s40, s40, %s" % s(sWave)); e("s_mul_i32 s40, s40, 36")
        e("s_mul_i32 s41, %s, 9" % s(sNt)); e("s_add_u32 s40, s40, s41"); e("s_lshl_b32 s40, s40, 10")
        e("s_mul_i32 s41, %s, %d" % (s(sKs), SLAB)); e("s_add_u32 s40, s40, s41")
        e("s_and_b32 s41, %s, 1" % s(sNt)); e("s_lshl_b32 s42, s41, 10"); e("s_add_u32 s42, s42, s40"); e("s_add_u32 s43, s42, 4096")
        e("s_xor_b32 s41, s41, 1"); e("s_lshl_b32 s41, s41, 13"); e("s_add_u32 s41, s41, s40")
        e("v_lshlrev_b32 %s, 4, %s" % (v(T), v(vL)))
    def fin(g, store):
        for i in g:
            a0 = acc(i, 0)
            for r in range(4): e("v_cvt_pk_bf16_f32 %s, %s, %s" % (v(a0 + r), v(a0 + 2 * r), v(a0 + 2 * r + 1)))
            store("buffer_store_dwordx4 %s, %s, %s, %s offen offset:%d" % (v(a0, 4), v(T), s(sP, 4), ("s42", "s43", "s41")[i >> 2], (i & 3) * 1024) + (" sc1" if FUSE3 else PSC))
    P.tail_pre = tail_pre; P.fin = fin
    ml = mainloop(P)
    next(ml)
    yield
    next(ml)
    stamp(4)
    k2_tail(sP, sW, sA, sWave, sKs, sMt, sNt, vL, vG, vM, vTid, T)
    yield

def gen_k3():
    sX, sP, sOut = 8, 12, 16
    kstart("k3_kernel")
    e("s_cmp_ge_u32 s2, 192"); e("s_cbranch_scc1 K3_END"); stamp_init()
    e("s_load_dwordx2 s[48:49], s[0:1], 0"); e("s_load_dwordx2 s[50:51], s[0:1], 48"); e("s_load_dwordx2 s[54:55], s[0:1], 64")
    e("v_and_b32 v1, 63, v0"); e("v_lshrrev_b32 v2, 6, v0")
    e("s_mul_i32 s40, s2, 12288")
    e("v_mul_u32_u24 v5, 3072, v2"); e("v_lshl_add_u32 v5, v1, 4, v5"); e("v_add_u32 v5, s40, v5")
    e("v_and_b32 v6, 15, v1"); e("v_mul_u32_u24 v6, 400, v6"); e("v_mul_u32_u24 v7, 96, v2"); e("v_lshrrev_b32 v8, 4, v1")
    e("v_lshl_add_u32 v7, v8, 3, v7"); e("v_add_u32 v6, v6, v7")
    e("s_mul_hi_u32 s41, s2, 1431655766"); e("s_mul_i32 s42, s41, 3"); e("s_sub_u32 s42, s2, s42")
    e("s_mul_i32 s41, s41, %d" % (32 * 1152)); e("s_mul_i32 s42, s42, 384"); e("s_add_u32 s41, s41, s42")
    for n in range(3):
        e("v_add_u32 v9, %d, v0" % (256 * n))
        divc(10, 11, 9, 24, 2731, 16)
        e("v_mul_u32_u24 v9, 1152, v10"); e("v_lshl_add_u32 v9, v11, 4, v9"); e("v_add_u32 %s, s41, v9" % v(12 + n))
        e("v_mul_u32_u24 v9, 400, v10"); e("v_lshl_add_u32 %s, v11, 4, v9" % v(15 + n))
    e("s_waitcnt lgkmcnt(0)")
    srd(sX, 48, 2048 * 1152); srd(sOut, 50, 2048 * 1152); srd(sP, 54, 8 * SLAB, P_OFF)
    for k in range(8): e("s_mov_b32 s%d, %d" % (32 + k, k * SLAB))
    B = 32
    for t in range(3):
        for k in range(8):
            e("buffer_load_dwordx4 %s, v5, %s, s%d offen offset:%d" % (v(B + (t * 8 + k) * 4, 4), s(sP, 4), 32 + k, t * 1024))
    XR = 128
    for n in range(3): e("buffer_load_dwordx4 %s, %s, %s, 0 offen" % (v(XR + 4 * n, 4), v(12 + n), s(sX, 4)))
    e("s_mov_b32 s45, 0x%08x" % f2u(-1.4426950408889634)); e("s_mov_b32 s46, 0xffff0000")
    F = 140
    for t in range(3):
        b = B + t * 32
        for k in range(8):
            e("s_waitcnt vmcnt(%d)" % (26 - (t * 8 + k)))
            for r in range(4):
                src = b + k * 4 + r
                if k == 0:
                    e("v_lshlrev_b32 %s, 16, %s" % (v(F + 2 * r), v(src))); e("v_and_b32 %s, s46, %s" % (v(F + 2 * r + 1), v(src)))
                elif k < 7:
                    e("v_lshlrev_b32 v20, 16, %s" % v(src)); e("v_and_b32 v21, s46, %s" % v(src))
                    e("v_add_f32 %s, %s, v20" % (v(F + 2 * r), v(F + 2 * r))); e("v_add_f32 %s, %s, v21" % (v(F + 2 * r + 1), v(F + 2 * r + 1)))
                else:
                    e("v_lshlrev_b32 %s, 16, %s" % (v(F + 8 + 2 * r), v(src))); e("v_and_b32 %s, s46, %s" % (v(F + 8 + 2 * r + 1), v(src)))
        for r in range(8):
            e("v_mul_f32 %s, s45, %s" % (v(F + 16 + r), v(F + r)))
            e("v_exp_f32 %s, %s" % (v(F + 16 + r), v(F + 16 + r)))
            e("v_mul_f32 %s, %s, %s" % (v(F + r), v(F + r), v(F + 8 + r)))
            e("v_add_f32 %s, 1.0, %s" % (v(F + 16 + r), v(F + 16 + r)))
            e("v_rcp_f32 %s, %s" % (v(F + 16 + r), v(F + 16 + r)))
        nop(1)
        for r in range(8): e("v_mul_f32 %s, %s, %s" % (v(F + r), v(F + r), v(F + 16 + r)))
        for r in range(4): e("v_cvt_pk_bf16_f32 %s, %s, %s" % (v(b + r), v(F + 2 * r), v(F + 2 * r + 1)))
        e("ds_write_b64 v6, %s offset:%d" % (v(b, 2), t * 32))
        e("ds_write_b64 v6, %s offset:%d" % (v(b + 2, 2), t * 32 + 6400))
    e("s_waitcnt lgkmcnt(0)"); e("s_barrier")
    for n in range(3): e("ds_read_b128 %s, %s" % (v(B + 4 * n, 4), v(15 + n)))
    e("s_waitcnt vmcnt(0)")
    for n in range(3):
        e("s_waitcnt lgkmcnt(%d)" % (2 - n))
        for r in range(4):
            p = B + 4 * n + r; x = XR + 4 * n + r
            e("v_lshlrev_b32 v20, 16, %s" % v(p)); e("v_and_b32 v21, s46, %s" % v(p))
            e("v_lshlrev_b32 v22, 16, %s" % v(x)); e("v_and_b32 v23, s46, %s" % v(x))
            e("v_add_f32 v20, v20, v22"); e("v_add_f32 v21, v21, v23")
            e("v_cvt_pk_bf16_f32 %s, v20, v21" % v(p))
        e("buffer_store_dwordx4 %s, %s, %s, 0 offen" % (v(B + 4 * n, 4), v(12 + n), s(sOut, 4)))
    stamp_out(3, 2, 2)
    lab("K3_END")
    e("s_endpgm")

def kd(name, vg):
    return [".amdhsa_kernel %s" % name, "  .amdhsa_next_free_vgpr %d" % vg, "  .amdhsa_next_free_sgpr %d" % (96 if INSTR else 64),
            "  .amdhsa_accum_offset %d" % ((vg + 3) // 4 * 4), "  .amdhsa_group_segment_fixed_size 0", "  .amdhsa_kernarg_size 72",
            "  .amdhsa_user_sgpr_count 2", "  .amdhsa_user_sgpr_kernarg_segment_ptr 1",
            "  .amdhsa_system_sgpr_workgroup_id_x 1", "  .amdhsa_float_denorm_mode_32 3", ".end_amdhsa_kernel"]
hdr = ["; generated: LN+repack | QKV/FFN1+attention | FFN2 split-K + wo | reduce+epilogue",
       "; @launch kernel=k0_kernel grid=(256,1,1) block=(256,1,1) lds=0",
       "; @launch kernel=k1_kernel grid=(256,1,1) block=(512,1,1) lds=%d" % K1_LDS,
       ] + ([] if FUSE3 else ["; @launch kernel=k3_kernel grid=(192,1,1) block=(256,1,1) lds=12800"]) + [
       '.amdgcn_target "amdgcn-amd-amdhsa--gfx950"', ".text"]
gen_k0(); gen_k1()
tail = ['.section .rodata,"a"']
for n, vg in (("k0_kernel", 80), ("k1_kernel", 256), ("k2_kernel", 216), ("k3_kernel", 168))[:2]:
    tail += [".p2align 6"] + kd(n, vg)
open(sys.argv[1] if len(sys.argv) > 1 else OUT, "w").write("\n".join(hdr + L + tail) + "\n")
print("ok", len(L))
```

```python
import sys
NAME = "recurrent_scan__sliding_local_dilated__dense_activation_relu__prompt"
OUT = "cdna_kernels/%s.s" % NAME

import struct
def f2u(x): return struct.unpack("<I", struct.pack("<f", x))[0]
H_OFF = 0
H_BYTES = 128 * 144 * 1024
O_OFF = H_BYTES
O_BYTES = 2048 * 1152
XN_OFF = O_OFF + O_BYTES
WQ_OFF = XN_OFF + O_BYTES
WQ_BYTES = 32 * 576 * 128
WO_OFF = WQ_OFF + WQ_BYTES
WO_BYTES = 576 * 1152
P_OFF = WO_OFF + WO_BYTES
SLAB = 64 * 36 * 1024
L = []
def e(s): L.append("    " + s)
def lab(s): L.append(s + ":")
def v(i, n=1): return "v%d" % i if n == 1 else "v[%d:%d]" % (i, i + n - 1)
def s(i, n=1): return "s%d" % i if n == 1 else "s[%d:%d]" % (i, i + n - 1)
def nop(n): e("s_nop %d" % (n - 1))
def srd(d, lo, nbytes, add=0):
    if add:
        e("s_add_u32 %s, %s, 0x%x" % (s(d), s(lo), add))
        e("s_addc_u32 %s, %s, 0" % (s(d + 1), s(lo + 1)))
    else:
        e("s_mov_b32 %s, %s" % (s(d), s(lo)))
        e("s_mov_b32 %s, %s" % (s(d + 1), s(lo + 1)))
    e("s_mov_b32 %s, 0x%x" % (s(d + 2), nbytes))
    e("s_mov_b32 %s, 0x00020000" % s(d + 3))
def mfma(d, a, b): e("v_mfma_f32_16x16x32_bf16 %s, %s, %s, %s" % (v(d, 4), v(a, 4), v(b, 4), v(d, 4)))
def kstart(name):
    L.append(".globl %s" % name); L.append(".p2align 8"); L.append(".type %s,@function" % name); lab(name)
def perm_pi(dst, src, t0, t1):
    e("v_and_b32 %s, 0x63, %s" % (v(dst), v(src)))
    e("v_bfe_u32 %s, %s, 2, 2" % (v(t0), v(src)))
    e("v_lshl_add_u32 %s, %s, 3, %s" % (v(dst), v(t0), v(dst)))
    e("v_bfe_u32 %s, %s, 4, 1" % (v(t1), v(src)))
    e("v_lshl_add_u32 %s, %s, 2, %s" % (v(dst), v(t1), v(dst)))
def divc(q, r, x, c, magic, sh):
    e("v_mul_u32_u24 %s, %d, %s" % (v(q), magic, v(x)))
    e("v_lshrrev_b32 %s, %d, %s" % (v(q), sh, v(q)))
    e("v_mul_u32_u24 %s, %d, %s" % (v(r), c, v(q)))
    e("v_sub_u32 %s, %s, %s" % (v(r), v(x), v(r)))
def bf16r(d, src):
    e("v_cvt_pk_bf16_f32 %s, %s, %s" % (v(d), v(src), v(src)))
    e("v_and_b32 %s, 0xffff0000, %s" % (v(d), v(d)))
def xreduce(a, t):
    for p in ("v_permlane32_swap_b32", "v_permlane16_swap_b32"):
        e("v_mov_b32 %s, %s" % (v(t), v(a)))
        nop(2)
        e("%s %s, %s" % (p, v(a), v(t)))
        nop(2)
        e("v_add_f32 %s, %s, %s" % (v(a), v(a), v(t)))


import os
INSTR = int(os.environ.get("INSTR", "0"))
DBG_OFF = 60 << 20
SOFF = [0]
def stamp(i):
    if not INSTR: return
    i += SOFF[0]
    e("s_memrealtime s[62:63]"); e("s_waitcnt lgkmcnt(0)"); e("s_mov_b32 s%d, s62" % (64 + i))
    if INSTR == 2 and i in (2, 3):
        e("s_memtime s[62:63]"); e("s_waitcnt lgkmcnt(0)"); e("s_mov_b32 s%d, s62" % (64 + i - 2))
def stamp_out(kern, n, vt):
    if not INSTR: return
    SOFF[0] = 0
    stamp(n - 1)
    srd(80, 54, 1 << 20, DBG_OFF + kern * 65536 * 4)
    e("s_lshl_b32 s62, s2, 3"); e("s_add_u32 s62, s62, s84"); e("s_lshl_b32 s62, s62, 6")
    e("s_mov_b64 exec, 1")
    e("v_mov_b32 %s, s62" % v(vt))
    for i in range(n):
        e("v_mov_b32 %s, s%d" % (v(vt + 1), 64 + i))
        e("buffer_store_dword %s, %s, s[80:83], 0 offen offset:%d" % (v(vt + 1), v(vt), 4 * i))
        e("s_nop 1")
def stamp_init():
    if not INSTR: return
    e("v_lshrrev_b32 v1, 6, v0"); e("s_nop 1"); e("v_readfirstlane_b32 s84, v1")
    stamp(0)

HSC = " sc1"
PSC = os.environ.get("PSC", "")
K2_AR = int(os.environ.get("K2_AR", "6"))
PF = int(os.environ.get("PF", "1"))
FUSE3 = int(os.environ.get("FUSE3", "1"))
FLAG_OFF = P_OFF + 8 * SLAB
POLLW = int(os.environ.get("POLLW", "4"))
SLP = int(os.environ.get("SLP", "2"))
PRIO = int(os.environ.get("PRIO", "1"))
CPF = int(os.environ.get("CPF", "5"))
class Loop:
    pass
def mainloop(P):
    NT = len(P.tiles); D = P.D; AR = P.AR; LA = AR - 1; RW = P.RW; U = AR // 3
    assert (NT * 3 * U) % RW == 0 and D < RW + 0 and AR % 3 == 0
    def wreg(gq): return P.WR + (gq % RW) * 4
    def wread(gq, q=None, kk=None):
        if q is None:
            gq %= NT * 3 * U
            q = gq % NT; kk = (gq // NT) % 3
        base, o16, okk = P.tiles[q]
        if kk == 0: e("v_add_u32 %s, %s, %s" % (v(base), s(P.sDelta), v(base)))
        e("ds_read_b64_tr_b16 %s, %s offset:%d" % (v(wreg(gq), 2), v(base), kk * okk))
        e("ds_read_b64_tr_b16 %s, %s offset:%d" % (v(wreg(gq) + 2, 2), v(base), kk * okk + o16))
    def nextdelta():
        e("s_add_u32 %s, %s, %d" % (s(P.sRd), s(P.sRd), P.STAGE))
        e("s_cmp_ge_u32 %s, %d" % (s(P.sRd), P.STAGE * P.NS))
        e("s_cselect_b32 %s, %d, 0" % (s(P.sDelta), P.STAGE * P.NS))
        e("s_sub_u32 %s, %s, %s" % (s(P.sRd), s(P.sRd), s(P.sDelta)))
        e("s_sub_u32 %s, %d, %s" % (s(P.sDelta), P.STAGE, s(P.sDelta)))
    def dma(n):
        vo, sr, so, sbase, ldsoff, lanes = P.dmas[n]
        e("s_add_u32 m0, %s, %s" % (s(P.sWr), s(sbase)))
        if lanes < 64:
            e("s_mov_b32 exec_lo, 0x%x" % ((1 << min(lanes, 32)) - 1)); e("s_mov_b32 exec_hi, 0")
            assert lanes <= 32
        else: e("s_nop 0")
        e("buffer_load_dwordx4 %s, %s, %s offen offset:%d lds" % (v(vo), s(sr, 4), s(so), ldsoff))
        if lanes < 64: e("s_mov_b64 exec, -1")
        if n == len(P.dmas) - 1:
            for so2, st in P.dsteps: e("s_add_u32 %s, %s, %d" % (s(so2), s(so2), st))
            e("s_add_u32 %s, %s, %d" % (s(P.sWr), s(P.sWr), P.STAGE))
            e("s_cmp_ge_u32 %s, %d" % (s(P.sWr), P.STAGE * P.NS))
            e("s_cselect_b32 %s, 0, %s" % (s(P.sWr), s(P.sWr)))
    def aload(st, f, off):
        e("buffer_load_dwordx4 %s, %s, %s, %s offen offset:%d" % (v(P.act(st, f), 4), v(P.vA[f][0]), s(P.sAct, 4), s(P.sOffA), P.vA[f][1]) + P.asc)
        if f == len(P.vA) - 1: e("s_add_u32 %s, %s, 0x20000" % (s(P.sOffA), s(P.sOffA)))
    NA = len(P.vA); ND = len(P.dmas); dd = P.dd
    cnt = [NA + len(dd[k]) for k in range(3)]
    assert AR == 6 and P.NS == 4
    Q = []
    def A(k): return [("a", k, f) for f in range(NA)]
    def S(st): return [("d", st, n) for n in range(ND)]
    def issue(op):
        Q.append(op)
        if op[0] == "a": aload(op[1] % AR, op[2], 0)
        else: dma(op[2])
    def after(ops): return len(Q) - 1 - max(Q.index(o) for o in ops)
    def wcount(kk): return len(dd[(kk - LA) % 3]) + sum(cnt[(kk - i) % 3] for i in range(1, LA))
    def kstep(k, vm, vpos, tag, emit=True, steady=False):
        ks = k % AR; kk = k % 3
        need = [o for o in A(k) + (S(k // 3 + 1) if kk == 2 else []) if o not in Done]
        w = after(need) if need else 63
        if steady:
            assert wcount(kk) <= w, (k, wcount(kk), w)
            w = wcount(kk)
        if not emit:
            Q.extend(vm); return
        e("s_waitcnt vmcnt(%d)" % w)
        if kk == 2: nextdelta()
        pos = {}
        for i, x in enumerate(vm): pos.setdefault(vpos[i], []).append(x)
        for q in range(NT):
            gq = ks * NT + q
            e("s_waitcnt lgkmcnt(%d)" % (2 * D - 2))
            if kk == 2 and q == NT - D: e("s_barrier")
            wread(gq + D)
            mfma(P.acc(q, 0), wreg(gq), P.act(ks, 0))
            mfma(P.acc(q, 1), wreg(gq), P.act(ks, 1))
            P.extra(q, ks, wreg(gq), tag)
            for x in pos.get(q, []): issue(x)
    def svm(k): return A(k + LA) + [("d", k // 3 + 3, n) for n in dd[k % 3]]
    Done = set()
    if PRIO and not P.early:
        e("s_cmp_lt_u32 s28, 4"); e("s_cbranch_scc1 %s_NP" % P.name); e("s_setprio 1"); lab(P.name + "_NP")
    e("s_mov_b32 %s, %d" % (s(P.sWr), P.STAGE * P.slot0)); e("s_mov_b32 %s, %d" % (s(P.sRd), P.STAGE * P.slot0))
    e("s_mov_b32 %s, %d" % (s(P.sDelta), P.RB + P.STAGE * P.slot0))
    if P.early:
        for op in S(0) + S(1) + S(2): issue(op)
        P.late_setup()
        yield
        Done = set(Q)
        ramp = [A(3) + A(4), A(5) + A(6), A(7) + S(3)]
        e("s_cmp_lg_u32 %s, 7" % s(P.sKs)); e("s_cbranch_scc1 %s_FULL" % P.name)
        Qs = list(Q)
        for op in A(3) + A(4) + A(5) + A(6) + A(7): issue(op)
        for op in S(3): issue(op)
        for base, _, _ in P.tiles: e("v_add_u32 %s, %s, %s" % (v(base), s(P.sDelta), v(base)))
        nextdelta()
        for q in range(D): wread(3 * NT + q)
        for r in range(P.nacc): e("v_mov_b32 %s, 0" % v(r))
        e("s_branch %s_JOIN" % P.name)
        Q[:] = Qs
        lab(P.name + "_FULL")
        for op in A(0) + A(1) + A(2): issue(op)
        for q in range(D): wread(q)
        for r in range(P.nacc): e("v_mov_b32 %s, 0" % v(r))
        stamp(1)
    else:
        for op in S(0): issue(op)
        P.late_setup()
        for op in A(0) + A(1): issue(op)
        for r in range(P.nacc): e("v_mov_b32 %s, 0" % v(r))
        stamp(1)
        e("s_waitcnt vmcnt(%d)" % after(S(0))); e("s_barrier")
        stamp(2)
        for q in range(D): wread(q)
        ramp = [A(2) + S(1) + A(3), A(4) + S(2) + A(5), A(6) + A(7) + S(3)]
    for k in range(3):
        kstep(k, ramp[k], list(range(NT)), "P")
        if k == 0 and P.early: stamp(2)
    if P.early:
        lab(P.name + "_JOIN")
        e("s_waitcnt vmcnt(%d)" % after(A(4))); Done = set(Q[:Q.index(A(4)[-1]) + 1])
    e("s_mov_b32 %s, %d" % (s(P.sCnt), P.K // 3 - 3))
    e("s_branch %s_MID" % P.name)
    Q0 = list(Q)
    for k in range(3, 12): kstep(k, svm(k), None, "", emit=False, steady=True)
    lab(P.name + "_LOOP")
    for u in range(U):
        if u == 1: lab(P.name + "_MID")
        for kk in range(3):
            k = 12 + u * 3 + kk
            kstep(k, svm(k), P.vmpos, "L", steady=True)
        e("s_sub_u32 %s, %s, 1" % (s(P.sCnt), s(P.sCnt)))
        e("s_cmp_lg_u32 %s, 0" % s(P.sCnt))
        if u == U - 1: e("s_cbranch_scc1 %s_LOOP" % P.name)
        else: e("s_cbranch_scc0 %s_DONE" % P.name)
    lab(P.name + "_DONE")
    stamp(3)
    K0 = P.K - 6
    Q[:] = Q0
    for k in range(3, K0): Q.extend(svm(k))
    seq = [(K0, q) for q in range(NT)]; fins = {}
    for g in P.groups:
        seq += [(k, q) for k in range(K0 + 1, P.K) for q in g]
        fins[len(seq) - 1 + 2] = g
    g0 = (K0 % AR) * NT; seen = set(); first = True
    vm = A(P.K - 1)
    def store(txt): Q.append(("s", len(Q))); e(txt)
    for i, (k, q) in enumerate(seq):
        if k not in seen:
            seen.add(k); e("s_waitcnt vmcnt(%d)" % after(A(k)))
        e("s_waitcnt lgkmcnt(%d)" % (2 * min(D - 1, len(seq) - 1 - i)))
        if i + D < len(seq):
            k2, q2 = seq[i + D]
            if k2 == P.K - 3 and first:
                first = False
                nextdelta(); e("s_waitcnt vmcnt(%d)" % after(S(P.K // 3 - 1))); e("s_barrier")
            wread(g0 + i + D, q2, k2 % 3)
        mfma(P.acc(q, 0), wreg(g0 + i), P.act(k % AR, 0))
        mfma(P.acc(q, 1), wreg(g0 + i), P.act(k % AR, 1))
        P.extra(q, k % AR, wreg(g0 + i), "T")
        if i < len(vm): issue(vm[i])
        if i == len(vm): P.tail_pre(store)
        if i in fins: P.fin(fins.pop(i), store)
    e("s_nop 7"); e("s_nop 7")
    for i in sorted(fins): P.fin(fins[i], store)
    P.after = after; P.S = S
    yield

def common_ids(vL, vG, vM, T, sWave):
    e("v_and_b32 %s, 63, v0" % v(vL))
    e("v_lshrrev_b32 %s, 6, v0" % v(T))
    e("v_lshrrev_b32 %s, 4, %s" % (v(vG), v(vL)))
    e("v_readfirstlane_b32 %s, %s" % (s(sWave), v(T)))
    e("v_and_b32 %s, 15, %s" % (v(vM), v(vL)))
def w_setup(vL, T, sWave, sCol, stride, vD, vDT, vMain, vTail, TAILB, perm=0):
    def pp():
        if perm:
            perm_pi(T + 2, T, T + 3, T + 3); e("v_mov_b32 %s, %s" % (v(T), v(T + 2)))
    e("s_mul_i32 s40, %s, 12" % s(sWave))
    e("s_mul_i32 s41, %s, 288" % s(sCol)); e("s_and_b32 s42, %s, 1" % s(sCol))
    e("s_lshl_b32 s43, s42, 5"); e("s_add_u32 s43, s43, s41")
    e("s_xor_b32 s42, s42, 1"); e("s_lshl_b32 s42, s42, 8"); e("s_add_u32 s42, s42, s41")
    e("s_mov_b32 s41, %d" % stride)
    for n in range(3):
        e("v_lshrrev_b32 %s, 4, %s" % (v(T), v(vL)))
        e("v_add3_u32 %s, %s, s40, %d" % (v(T), v(T), 4 * n))
        e("v_bfe_u32 %s, %s, 1, 3" % (v(T + 1), v(vL)))
        e("v_xor_b32 %s, %s, %s" % (v(T + 1), v(T + 1), v(T)))
        e("v_and_b32 %s, 7, %s" % (v(T + 1), v(T + 1)))
        pp()
        e("v_mul_lo_u32 %s, %s, s41" % (v(T), v(T)))
        e("v_lshl_add_u32 %s, %s, 5, %s" % (v(T), v(T + 1), v(T)))
        e("v_and_b32 %s, 1, %s" % (v(T + 1), v(vL)))
        e("v_lshl_add_u32 %s, %s, 4, %s" % (v(T), v(T + 1), v(T)))
        e("v_add_u32 %s, s43, %s" % (v(vD + n), v(T)))
        e("s_sub_u32 s43, s43, 1024")
    e("v_lshrrev_b32 %s, 1, %s" % (v(T), v(vL)))
    e("v_add_u32 %s, s40, %s" % (v(T), v(T)))
    pp()
    e("v_mul_lo_u32 %s, %s, s41" % (v(T), v(T)))
    e("v_lshl_add_u32 %s, %s, 4, %s" % (v(T), v(T + 1), v(T)))
    e("v_add_u32 %s, s42, %s" % (v(vDT), v(T)))
def w_setup_rd(vL, T, vMain, vTail, TAILB):
    e("v_lshrrev_b32 %s, 2, %s" % (v(T), v(vL)))
    e("v_and_b32 %s, 3, %s" % (v(T + 1), v(vL)))
    e("v_and_b32 %s, 7, %s" % (v(T + 2), v(T)))
    e("v_lshlrev_b32 %s, 8, %s" % (v(T + 3), v(T)))
    e("v_lshl_add_u32 %s, %s, 5, %s" % (v(T + 3), v(T + 2), v(T + 3)))
    e("v_lshl_add_u32 %s, %s, 3, %s" % (v(vMain), v(T + 1), v(T + 3)))
    for i in range(1, 8): e("v_xor_b32 %s, %d, %s" % (v(vMain + i), i << 5, v(vMain)))
    e("v_lshlrev_b32 %s, 3, %s" % (v(vTail), v(vL)))
    e("v_add_u32 %s, %d, %s" % (v(vTail), TAILB, v(vTail)))

def gen_k0():
    sX, sXN, sWQ, sWQP, sWO, sWOP = 8, 12, 16, 20, 24, 28
    kstart("k0_kernel")
    e("s_cmp_ge_u32 s2, 256"); e("s_cbranch_scc1 K0_END"); stamp_init()
    e("s_load_dwordx4 s[48:51], s[0:1], 0"); e("s_load_dwordx2 s[52:53], s[0:1], 16"); e("s_load_dwordx2 s[54:55], s[0:1], 64")
    e("s_load_dwordx2 s[34:35], s[0:1], 32")
    e("v_lshrrev_b32 v1, 7, v0"); e("v_and_b32 v2, 127, v0"); e("s_nop 0")
    e("v_readfirstlane_b32 s33, v1")
    e("s_waitcnt lgkmcnt(0)")
    srd(sX, 48, 2048 * 1152); srd(sWQ, 50, 576 * 3456); srd(sWO, 52, WO_BYTES)
    srd(sXN, 54, O_BYTES, XN_OFF); srd(sWQP, 54, WQ_BYTES, WQ_OFF); srd(sWOP, 54, WO_BYTES, WO_OFF)
    def pf():
        if not PF: return
        srd(36, 34, 576 * 9216)
        if CPF:
            n = len(L)
            e("s_getpc_b64 s[56:57]")
            lab("K0_PC%d" % n)
            e("v_lshrrev_b32 v72, 6, v0"); e("s_lshr_b32 s58, s2, 3"); e("s_lshl_b32 s58, s58, 2"); e("v_readfirstlane_b32 s59, v72")
            e("s_add_u32 s58, s58, s59"); e("s_mul_i32 s58, s58, %d" % (64 * CPF)); e("s_min_u32 s58, s58, K1_LAST-k1_kernel-%d" % (64 * CPF))
            e("s_add_u32 s58, s58, k1_kernel-K0_PC%d" % n)
            e("s_add_u32 s56, s56, s58"); e("s_addc_u32 s57, s57, 0")
            for i in range(CPF): e("s_load_dword s60, s[56:57], %d" % (64 * i))
        e("s_lshr_b32 s44, s2, 3"); e("s_mul_i32 s44, s44, %d" % (18 * 9216)); e("s_and_b32 s45, s2, 7"); e("s_mul_i32 s45, s45, 1152"); e("s_add_u32 s44, s44, s45")
        for n in range(2):
            e("v_add_u32 v72, %d, v0" % (256 * n)); e("v_min_u32 v72, 323, v72")
            divc(73, 74, 72, 18, 3641, 16)
            e("v_mul_u32_u24 v73, 9216, v73"); e("v_lshl_add_u32 v73, v74, 6, v73")
            e("buffer_load_dword v75, v73, s[36:39], s44 offen")
    e("s_cmp_eq_u32 s33, 0"); e("s_cbranch_scc0 K0_PACK")
    e("s_lshl_b32 s40, s2, 3")
    e("v_lshrrev_b32 v3, 4, v2"); e("v_add_u32 v3, s40, v3"); e("v_and_b32 v4, 15, v2")
    e("v_mul_u32_u24 v5, 1152, v3"); e("v_lshl_add_u32 v5, v4, 3, v5")
    for i in range(9): e("buffer_load_dwordx2 %s, v5, %s, 0 offen offset:%d" % (v(10 + 2 * i, 2), s(sX, 4), i * 128))
    pf()
    e("v_lshrrev_b32 v6, 4, v3"); e("v_lshrrev_b32 v7, 3, v4"); e("v_lshl_add_u32 v6, v7, 7, v6")
    e("v_lshlrev_b32 v6, 10, v6"); e("v_and_b32 v7, 3, v4"); e("v_lshl_add_u32 v6, v7, 8, v6")
    e("v_and_b32 v7, 15, v3"); e("v_lshl_add_u32 v6, v7, 4, v6"); e("v_bfe_u32 v7, v4, 2, 1"); e("v_lshl_add_u32 v6, v7, 3, v6")
    e("s_mov_b32 s40, 0x%08x" % f2u(1.0 / 576.0)); e("s_mov_b32 s41, 0x%08x" % f2u(1e-5))
    X = 32
    e("v_mov_b32 v8, 0")
    for i in range(18):
        if i % 2 == 0: e("s_waitcnt vmcnt(%d)" % (8 - i // 2 + 2 * PF))
        e("v_lshlrev_b32 %s, 16, %s" % (v(X + 2 * i), v(10 + i)))
        e("v_and_b32 %s, 0xffff0000, %s" % (v(X + 2 * i + 1), v(10 + i)))
        e("v_add_f32 v8, v8, %s" % v(X + 2 * i)); e("v_add_f32 v8, v8, %s" % v(X + 2 * i + 1))
    def rowred(r):
        for sh in (8, 4, 2, 1):
            nop(2); e("v_add_f32_dpp %s, %s, %s row_ror:%d row_mask:0xf bank_mask:0xf" % (v(r), v(r), v(r), sh))
    rowred(8)
    e("v_mul_f32 v8, s40, v8")
    bf16r(9, 8)
    e("v_mov_b32 v70, 0")
    for i in range(36):
        e("v_sub_f32 v71, %s, v8" % v(X + i)); e("v_fmac_f32 v70, v71, v71")
    rowred(70)
    e("v_mul_f32 v70, s40, v70"); bf16r(70, 70)
    e("v_add_f32 v70, s41, v70"); bf16r(70, 70)
    e("v_sqrt_f32 v70, v70"); nop(1); bf16r(70, 70)
    e("v_rcp_f32 v70, v70")
    for i in range(18):
        a = X + 2 * i
        e("v_sub_f32 %s, %s, v9" % (v(a), v(a))); e("v_sub_f32 %s, %s, v9" % (v(a + 1), v(a + 1)))
        e("v_cvt_pk_bf16_f32 %s, %s, %s" % (v(a), v(a), v(a + 1)))
        e("v_and_b32 %s, 0xffff0000, %s" % (v(a + 1), v(a))); e("v_lshlrev_b32 %s, 16, %s" % (v(a), v(a)))
        e("v_mul_f32 %s, %s, v70" % (v(a), v(a))); e("v_mul_f32 %s, %s, v70" % (v(a + 1), v(a + 1)))
        e("v_cvt_pk_bf16_f32 %s, %s, %s" % (v(10 + i), v(a), v(a + 1)))
        if i % 2 == 1:
            k = i // 2
            e("s_mov_b32 s42, %d" % (k * 262144))
            e("buffer_store_dwordx2 %s, v6, %s, s42 offen" % (v(10 + i - 1, 2), s(sXN, 4)))
    stamp_out(0, 2, 2)
    e("s_endpgm")
    lab("K0_PACK")
    e("s_lshr_b32 s40, s2, 3"); e("s_and_b32 s41, s2, 7"); e("s_mul_i32 s41, s41, 72"); e("s_mul_i32 s40, s40, 36")
    e("v_lshrrev_b32 v3, 5, v2"); e("v_add_u32 v3, s41, v3"); e("v_mul_u32_u24 v3, 3456, v3")
    e("v_and_b32 v4, 31, v2")
    e("v_lshrrev_b32 v5, 3, v4"); e("v_and_b32 v6, 7, v4")
    e("v_min_u32 v7, 2, v6")
    e("v_cmp_eq_u32 vcc, 3, v5"); nop(2)
    e("v_cndmask_b32 v5, v5, v7, vcc"); e("v_cndmask_b32 v6, v6, 8, vcc")
    e("v_mul_u32_u24 v5, 1152, v5"); e("v_lshl_add_u32 v5, v6, 2, v5"); e("v_add3_u32 v3, v3, v5, s40")
    e("s_mul_i32 s42, s2, 9216"); e("v_lshlrev_b32 v4, 2, v2"); e("v_add_u32 v4, s42, v4")
    for i in range(18):
        e("s_mov_b32 s43, %d" % (i * 4 * 3456))
        e("buffer_load_dword %s, v3, %s, s43 offen" % (v(10 + i), s(sWQ, 4)))
    e("s_mul_i32 s40, s2, 162")
    for n in range(2):
        b = 40 + n * 12
        e("v_add_u32 %s, s40, v2" % v(b))
        if n: e("v_add_u32 %s, 128, %s" % (v(b), v(b)))
        e("s_mov_b32 s41, 59652324"); e("v_mul_hi_u32 %s, %s, s41" % (v(b + 1), v(b)))
        e("v_mul_u32_u24 %s, 72, %s" % (v(b + 2), v(b + 1))); e("v_sub_u32 %s, %s, %s" % (v(b + 2), v(b), v(b + 2)))
        e("v_mov_b32 %s, %s" % (v(b + 4), v(b + 1)))
        e("v_lshrrev_b32 %s, 4, %s" % (v(b + 5), v(b + 4))); e("v_mul_u32_u24 %s, 18, %s" % (v(b + 5), v(b + 5)))
        e("v_and_b32 %s, 15, %s" % (v(b + 6), v(b + 4))); e("v_add_u32 %s, %s, %s" % (v(b + 5), v(b + 5), v(b + 6)))
        e("v_bfe_u32 %s, %s, 1, 5" % (v(b + 6), v(b + 4))); e("v_mul_u32_u24 %s, 18, %s" % (v(b + 6), v(b + 6)))
        e("v_and_b32 %s, 1, %s" % (v(b + 7), v(b + 4))); e("v_add3_u32 %s, %s, %s, 16" % (v(b + 6), v(b + 6), v(b + 7)))
        e("v_cmp_gt_u32 vcc, 512, %s" % v(b + 4)); nop(2)
        e("v_cndmask_b32 %s, %s, %s, vcc" % (v(b + 5), v(b + 6), v(b + 5)))
        e("v_mul_u32_u24 %s, 1152, %s" % (v(b + 5), v(b + 5))); e("v_lshl_add_u32 %s, %s, 4, %s" % (v(b + 5), v(b + 2), v(b + 5)))
        e("v_lshlrev_b32 %s, 4, %s" % (v(b), v(b)))
        if n:
            e("v_mov_b32 %s, 0x80000000" % v(b + 7)); e("v_cmp_gt_u32 vcc, 34, v2"); nop(2)
            e("v_cndmask_b32 %s, %s, %s, vcc" % (v(b), v(b + 7), v(b))); e("v_cndmask_b32 %s, %s, %s, vcc" % (v(b + 5), v(b + 7), v(b + 5)))
        e("buffer_load_dwordx4 %s, %s, %s, 0 offen" % (v(b + 8, 4), v(b + 5), s(sWO, 4)))
    pf()
    for i in range(18):
        e("s_waitcnt vmcnt(%d)" % (19 + 2 * PF))
        e("buffer_store_dword %s, v4, %s, 0 offen offset:%d" % (v(10 + i), s(sWQP, 4), 0) if i == 0 else
          "buffer_store_dword %s, v4, %s, s43 offen" % (v(10 + i), s(sWQP, 4)))
        e("s_mov_b32 s43, %d" % ((i + 1) * 512))
    e("s_waitcnt vmcnt(%d)" % (18 + 2 * PF))
    for n in range(2):
        b = 40 + n * 12
        e("buffer_store_dwordx4 %s, %s, %s, 0 offen" % (v(b + 8, 4), v(b), s(sWOP, 4)))
    if FUSE3:
        e("s_cmp_ge_u32 s2, 12"); e("s_cbranch_scc1 K0_NOFLAG")
        srd(36, 54, 24576, FLAG_OFF)
        for r in range(4): e("v_mov_b32 v%d, 0" % (76 + r))
        e("v_lshlrev_b32 v72, 4, v2"); e("s_lshl_b32 s44, s2, 11")
        e("buffer_store_dwordx4 v[76:79], v72, s[36:39], s44 offen")
        lab("K0_NOFLAG")
    stamp_out(0, 2, 2)
    lab("K0_END")
    e("s_endpgm")

K1_STAGE = 96 * 416; K1_NS = 4; K1_LDS = K1_STAGE * K1_NS
def gen_k1():
    P = Loop(); P.name = "K1"; P.STAGE = K1_STAGE; P.NS = K1_NS; P.D = 5; P.AR = 6; P.RW = 6; P.asc = ""; P.early = 0; P.slot0 = 0; P.RB = 0
    EX = 104; ACT = 108; WR = 180; vMain = 204; vTail = 212; vQK = 213; vD = 217; vDT = 220; vDQ = 221; ST = 136
    vA0, vA1, vAH = 223, 224, 225; vL, vG, vM, vTid = 226, 227, 228, 229; T = 232
    acc = lambda i, u: (i * 2 + u) * 4
    P.acc = acc; P.act = lambda st, f: ACT + (st * 3 + f) * 4; P.WR = WR; P.nacc = 108
    sX, sW1, sWQ, sH, sO = 8, 12, 16, 20, 24
    sWave, sJ, sMt = 28, 29, 30
    P.sCnt, P.sDelta, P.sRd, P.sWr, P.sT, P.sOffA, P.sAct = 31, 32, 33, 34, 35, 36, sX
    sOffW1, sOffWQ, sBM, sBT, sBQ = 37, 38, 39, 44, 45
    TAILB = 96 * 256; QKB = TAILB + 96 * 32
    kstart("k1_kernel")
    e("s_cmp_ge_u32 s2, 256"); e("s_cbranch_scc1 K1_END"); stamp_init()
    e("s_load_dwordx4 s[56:59], s[0:1], 32"); e("s_load_dwordx2 s[54:55], s[0:1], 64")
    e("s_load_dwordx2 s[60:61], s[0:1], 48"); e("s_load_dwordx2 s[52:53], s[0:1], 0")
    common_ids(vL, vG, vM, T, sWave)
    e("v_mov_b32 %s, v0" % v(vTid))
    e("s_and_b32 s40, s2, 7"); e("s_lshr_b32 s41, s2, 3")
    e("s_lshr_b32 %s, s41, 2" % s(sMt)); e("s_and_b32 s41, s41, 3"); e("s_lshl_b32 s40, s40, 2"); e("s_add_u32 %s, s40, s41" % s(sJ))
    w_setup(vL, T, sWave, sJ, 9216, vD, vDT, vMain, vTail, TAILB)
    e("s_mul_i32 s41, %s, %d" % (s(sJ), 576 * 128))
    for n in range(2):
        e("v_lshrrev_b32 %s, 3, %s" % (v(T), v(vL)))
        e("v_add3_u32 %s, %s, s40, %d" % (v(T), v(T), 8 * n))
        e("v_lshrrev_b32 %s, 1, %s" % (v(T + 1), v(T)))
        e("v_bfe_u32 %s, %s, 1, 2" % (v(T + 2), v(vL)))
        e("v_xor_b32 %s, %s, %s" % (v(T + 1), v(T + 1), v(T + 2)))
        e("v_and_b32 %s, 3, %s" % (v(T + 1), v(T + 1)))
        e("v_lshlrev_b32 %s, 7, %s" % (v(T), v(T)))
        e("v_lshl_add_u32 %s, %s, 5, %s" % (v(T), v(T + 1), v(T)))
        e("v_and_b32 %s, 1, %s" % (v(T + 1), v(vL)))
        e("v_lshl_add_u32 %s, %s, 4, %s" % (v(T), v(T + 1), v(T)))
        e("v_add_u32 %s, s41, %s" % (v(vDQ + n), v(T)))
        e("s_sub_u32 s41, s41, 1024")
    Lsave = len(L)
    w_setup_rd(vL, T, vMain, vTail, TAILB)
    e("v_lshrrev_b32 %s, 2, %s" % (v(T), v(vL)))
    e("v_bfe_u32 %s, %s, 3, 2" % (v(T + 1), v(vL)))
    e("v_lshlrev_b32 %s, 7, %s" % (v(T), v(T)))
    e("v_lshl_add_u32 %s, %s, 5, %s" % (v(T), v(T + 1), v(T)))
    e("v_and_b32 %s, 3, %s" % (v(T + 1), v(vL)))
    e("v_lshl_add_u32 %s, %s, 3, %s" % (v(T), v(T + 1), v(T)))
    for i in range(4):
        e("v_xor_b32 %s, %d, %s" % (v(vQK + i), i << 5, v(T)))
        e("v_add_u32 %s, %d, %s" % (v(vQK + i), QKB, v(vQK + i)))
    e("s_lshl_b32 s40, %s, 4" % s(sMt)); e("s_lshl_b32 s41, %s, 1" % s(sWave)); e("s_add_u32 s41, s41, s40")
    e("s_lshl_b32 s41, s41, 10")
    e("v_lshlrev_b32 %s, 4, %s" % (v(T), v(vL)))
    e("v_add_u32 %s, s41, %s" % (v(vA0), v(T)))
    e("s_sub_u32 s41, s40, 1"); e("s_lshl_b32 s41, s41, 10")
    e("s_cmp_eq_u32 %s, 0" % s(sMt)); e("s_cselect_b32 s41, 0x80000000, s41")
    e("s_cmp_gt_u32 %s, 2" % s(sWave)); e("s_cselect_b32 s41, 0x80000000, s41")
    e("v_add_u32 %s, s41, %s" % (v(vAH), v(T)))
    late = L[Lsave:]; del L[Lsave:]
    P.late_setup = lambda: L.extend(late)
    e("s_mul_i32 %s, %s, 3072" % (s(sBM), s(sWave)))
    e("s_mul_i32 %s, %s, 384" % (s(sBT), s(sWave))); e("s_add_u32 %s, %s, %d" % (s(sBT), s(sBT), TAILB))
    e("s_mul_i32 %s, %s, 1536" % (s(sBQ), s(sWave))); e("s_add_u32 %s, %s, %d" % (s(sBQ), s(sBQ), QKB))
    e("s_mov_b32 %s, 0" % s(sOffW1)); e("s_mov_b32 %s, 0" % s(sOffWQ)); e("s_mov_b32 %s, 0" % s(P.sOffA))
    e("s_waitcnt lgkmcnt(0)")
    srd(sX, 54, O_BYTES, XN_OFF); srd(sW1, 56, 576 * 9216); srd(sH, 54, H_BYTES, H_OFF); srd(sO, 54, O_BYTES, O_OFF)
    srd(sWQ, 54, WQ_BYTES, WQ_OFF)
    e("s_add_u32 s40, %s, 1" % s(sJ)); e("s_mul_i32 %s, s40, %d" % (s(sWQ + 2), 576 * 128))
    P.tiles = [(vMain + i, 4096, 8192) for i in range(8)] + [(vTail, 512, 1024)] + [(vQK + i, 2048, 4096) for i in range(4)]
    P.dmas = [(vD, sW1, sOffW1, sBM, 0, 64), (vD + 1, sW1, sOffW1, sBM, 1024, 64), (vD + 2, sW1, sOffW1, sBM, 2048, 64),
              (vDT, sW1, sOffW1, sBT, 0, 24), (vDQ, sWQ, sOffWQ, sBQ, 0, 64), (vDQ + 1, sWQ, sOffWQ, sBQ, 1024, 32)]
    P.dsteps = [(sOffW1, 96 * 9216), (sOffWQ, 96 * 128)]
    P.vA = [(vA0, 0), (vA0, 1024), (vAH, 0)]; P.vmpos = [0, 2, 4, 7, 10]; P.dd = [[0, 1], [2, 3], [4, 5]]
    def extra(q, kk, wr, tag):
        if q >= 10:
            e("s_cmp_eq_u32 %s, %d" % (s(sWave), q - 10)); e("s_cbranch_scc0 K1_X%s%d_%d" % (tag, q, kk))
            mfma(EX, wr, P.act(kk, 2))
            lab("K1_X%s%d_%d" % (tag, q, kk))
    P.extra = extra
    P.K = 18; P.groups = [[0, 1, 2, 3], [4, 5], [6, 7, 8], [9, 10], [11, 12]]
    def tail_pre(store):
        e("s_mul_i32 s40, %s, 9" % s(sJ)); e("s_and_b32 s41, %s, 1" % s(sJ))
        e("s_add_u32 s47, s40, s41"); e("s_lshl_b32 s47, s47, 16")
        e("s_xor_b32 s43, s41, 1"); e("s_lshl_b32 s43, s43, 3"); e("s_add_u32 s43, s43, s40"); e("s_lshr_b32 s43, s43, 1"); e("s_lshl_b32 s43, s43, 17")
        e("s_lshl_b32 s41, s41, 9"); e("s_add_u32 s43, s43, s41")
        for i in range(1, 4): e("s_add_u32 s%d, s47, %d" % (47 + i, i << 17))
        e("s_lshl_b32 s40, %s, 4" % s(sMt)); e("s_lshl_b32 s41, %s, 1" % s(sWave)); e("s_add_u32 s41, s41, s40"); e("s_lshl_b32 s41, s41, 10")
        e("v_and_b32 v253, 1, %s" % v(vG)); e("v_lshlrev_b32 v253, 10, v253"); e("v_lshl_add_u32 v253, %s, 4, v253" % v(vM))
        e("v_lshrrev_b32 v248, 1, %s" % v(vG)); e("v_lshl_add_u32 v253, v248, 8, v253"); e("v_add_u32 v253, s41, v253")
        if PF:
            srd(sW1, 58, 4608 * 1152)
            e("s_and_b32 s40, s2, 7"); e("s_mul_i32 s40, s40, %d" % (672 * 1152)); e("s_lshr_b32 s41, s2, 3"); e("s_mul_i32 s41, s41, %d" % (378 * 64))
            e("s_add_u32 s40, s40, s41")
            e("v_min_u32 v248, 377, %s" % v(vTid)); e("v_lshlrev_b32 v248, 6, v248")
            store("buffer_load_dword v249, v248, %s, s40 offen" % s(sW1, 4))
    def fin(g, store):
        g = [i for i in g if i <= 8]
        for i in g:
            d = acc(i, 0)
            for n in range(4): e("v_cvt_pk_bf16_f32 %s, %s, %s" % (v(d + n), v(d + 2 * n), v(d + 2 * n + 1)))
            for n in range(4): e("v_pk_max_i16 %s, %s, 0" % (v(d + n), v(d + n)))
        if g: nop(2)
        for i in g:
            d = acc(i, 0)
            e("v_permlane16_swap_b32 %s, %s" % (v(d), v(d + 2))); e("v_permlane16_swap_b32 %s, %s" % (v(d + 1), v(d + 3)))
        if g: nop(2)
        for i in g:
            store("buffer_store_dwordx4 %s, v253, %s, %s offen offset:%d%s" % (v(acc(i, 0), 4), s(sH, 4), "s43" if i == 8 else s(47 + (i >> 1)), (i & 1) * 512, HSC))
    P.tail_pre = tail_pre; P.fin = fin
    next(mainloop(P))
    e("s_waitcnt vmcnt(%d)" % P.after(P.S(6))); e("s_barrier")
    stamp(4)
    sFl = 20; sKs = 51
    def flag(soff, off):
        e("s_mov_b64 exec, 1")
        e("buffer_store_dword v251, v250, %s, %s offen offset:%d sc1" % (s(sFl, 4), soff, off))
        e("s_mov_b64 exec, -1")
    def poll(name, x4):
        e("s_mov_b32 s42, 0")
        lab(name)
        if x4: e("buffer_load_dwordx4 v[244:247], v249, %s, s47 offen sc1" % s(sFl, 4))
        else: e("buffer_load_dword v244, v250, %s, s47 offen sc1" % s(sFl, 4))
        e("s_add_u32 s42, s42, 1"); e("s_cmp_gt_u32 s42, 40000"); e("s_cbranch_scc1 %sX" % name)
        e("s_waitcnt vmcnt(0)")
        if x4: e("v_min_u32 v244, v244, v245"); e("v_min3_u32 v244, v244, v246, v247")
        e("v_cmp_eq_u32 vcc, 1, v244"); e("s_nop 3")
        e("s_and_b64 s[40:41], vcc, s[2:3]"); e("s_cmp_eq_u64 s[40:41], s[2:3]"); e("s_cbranch_scc1 %sX" % name)
        e("s_sleep %d" % SLP); e("s_branch %s" % name)
        lab(name + "X")
    QB, KB, VB = 0, 20480, 20480 + 21760
    e("s_lshl_b32 s44, %s, 5" % s(sWave))
    e("v_add_u32 %s, s44, %s" % (v(T + 9), v(vM)))
    e("v_mul_u32_u24 %s, 80, %s" % (v(T + 9), v(T + 9)))
    e("v_lshl_add_u32 %s, %s, 4, %s" % (v(T + 8), v(vG), v(T + 9)))
    e("v_mul_u32_u24 %s, %d, %s" % (v(T + 10), VB + 1280 - QB, v(vG)))
    e("v_add_u32 %s, %s, %s" % (v(T + 10), v(T + 10), v(T + 9)))
    for u in range(2):
        e("ds_write_b128 %s, %s offset:%d" % (v(T + 8), v(acc(9, u), 4), QB + u * 1280))
        e("ds_write_b128 %s, %s offset:%d" % (v(T + 8), v(acc(10, u), 4), KB + 1280 + u * 1280))
        e("ds_write_b128 %s, %s offset:%d" % (v(T + 8), v(acc(11, u), 4), VB + 1280 + u * 1280))
        e("s_mov_b32 exec_hi, 0")
        e("ds_write_b64 %s, %s offset:%d" % (v(T + 10), v(acc(12, u), 2), QB + 64 + u * 1280))
        e("s_mov_b32 exec_lo, 0xffff")
        e("ds_write_b64 %s, %s offset:%d" % (v(T + 9), v(acc(12, u) + 2, 2), KB + 1280 + 64 + u * 1280))
        e("s_mov_b64 exec, -1")
    e("v_mul_u32_u24 %s, 80, %s" % (v(T + 9), v(vM)))
    e("v_lshl_add_u32 %s, %s, 4, %s" % (v(T + 10), v(vG), v(T + 9)))
    e("s_cmp_gt_u32 %s, 1" % s(sWave)); e("s_cbranch_scc1 K1_H2")
    e("s_mul_i32 s44, %s, %d" % (s(sWave), VB - KB))
    e("v_add_u32 %s, s44, %s" % (v(T + 10), v(T + 10)))
    e("ds_write_b128 %s, %s offset:%d" % (v(T + 10), v(EX, 4), KB))
    e("s_branch K1_HD")
    lab("K1_H2")
    e("s_cmp_eq_u32 %s, 2" % s(sWave)); e("s_cbranch_scc0 K1_HD")
    e("s_mov_b64 exec, 0xffff")
    e("ds_write_b64 %s, %s offset:%d" % (v(T + 9), v(EX + 2, 2), KB + 64))
    e("s_mov_b32 exec_lo, 0xffff0000")
    e("ds_write_b64 %s, %s offset:%d" % (v(T + 9), v(EX, 2), VB + 64))
    e("s_mov_b64 exec, -1")
    lab("K1_HD")
    stamp(5)
    e("s_waitcnt lgkmcnt(0)"); e("s_barrier")
    stamp(6)
    Qr = 0; Kr = 12; LG = 112; Or = 124; vB, vBt, vRow = T + 12, T + 13, T + 14
    e("v_lshrrev_b32 %s, 5, %s" % (v(T + 15), v(vTid)))
    e("v_lshl_add_u32 %s, %s, 4, %s" % (v(vRow), v(T + 15), v(vM)))
    e("v_and_b32 %s, 1, %s" % (v(T), v(vG)))
    e("v_mul_u32_u24 %s, 80, %s" % (v(T + 1), v(vRow)))
    e("v_lshl_add_u32 %s, %s, 5, %s" % (v(vB), v(T), v(T + 1)))
    e("v_lshl_add_u32 %s, %s, 2, %s" % (v(vBt), v(T), v(T + 1)))
    def rec(dst, base_off):
        e("ds_read_b128 %s, %s offset:%d" % (v(dst, 4), v(vB), base_off))
        e("ds_read_b128 %s, %s offset:%d" % (v(dst + 4, 4), v(vB), base_off + 16))
        e("ds_read_b32 %s, %s offset:%d" % (v(dst + 8), v(vBt), base_off + 64))
    rec(Qr, QB)
    for w in range(4): rec(Kr + w * 12, KB + 1280 - 160 * w)
    srd(sFl, 54, 24576, FLAG_OFF)
    e("v_lshlrev_b32 v250, 2, %s" % v(vL)); e("v_mov_b32 v251, 1")
    e("s_lshl_b32 s47, %s, 10" % s(sMt)); e("s_lshl_b32 s48, %s, 5" % s(sJ)); e("s_add_u32 s48, s48, s47")
    e("s_lshl_b32 s49, %s, 2" % s(sWave)); e("s_add_u32 s48, s48, s49"); e("s_add_u32 s49, s48, 8192")
    k2 = gen_k2(vL, vG, vM, vTid, None)
    next(k2)
    e("s_mov_b32 s50, s2")
    e("s_mul_i32 s40, %s, 14" % s(sKs)); e("s_add_u32 s41, s40, 16"); e("s_mul_i32 s40, s40, 21846"); e("s_lshr_b32 s40, s40, 16")
    e("s_mul_i32 s41, s41, 21846"); e("s_lshr_b32 s41, s41, 16"); e("s_min_u32 s41, s41, 32"); e("s_sub_u32 s41, s41, s40"); e("s_lshl_b32 s41, s41, 3")
    e("s_bfm_b64 s[2:3], s41, 0"); e("s_lshl_b32 s40, s40, 5")
    e("s_cmp_eq_u32 %s, 7" % s(sKs)); e("s_cselect_b32 s40, 8192, s40"); e("s_cselect_b64 s[2:3], -1, s[2:3]"); e("s_add_u32 s47, s47, s40")
    e("s_lshl_b32 s40, %s, 8" % s(sMt))
    e("v_add_u32 %s, s40, %s" % (v(vRow), v(vRow)))
    e("s_mov_b32 s41, 0x%08x" % f2u(18 ** -0.5 * 1.4426950408889634))
    e("v_mov_b32 %s, 0x%08x" % (v(T + 2), f2u(-1e9 * 1.4426950408889634)))
    for w in range(8):
        e("s_waitcnt lgkmcnt(%d)" % (9 if w < 5 else 9 - 3 * (w - 4)))
        kr = Kr + w * 12
        e("v_mul_f32 %s, %s, %s" % (v(LG + w), v(Qr), v(kr)))
        for d in range(1, 9): e("v_fmac_f32 %s, %s, %s" % (v(LG + w), v(Qr + d), v(kr + d)))
        if w < 4: rec(Kr + (w + 4) * 12, KB + 1280 - 160 * (w + 4))
    for w in range(5): rec(Kr + w * 12, VB + 1280 - 160 * w)
    for w in range(8): e("v_mov_b32 %s, %s" % (v(Or + w), v(LG + w)))
    nop(2)
    for w in range(8): e("v_permlane16_swap_b32 %s, %s" % (v(LG + w), v(Or + w)))
    nop(2)
    for w in range(8):
        e("v_add_f32 %s, %s, %s" % (v(LG + w), v(LG + w), v(Or + w)))
        e("v_cmp_le_u32 vcc, %d, %s" % (2 * w, v(vRow)))
        e("v_mul_f32 %s, s41, %s" % (v(LG + w), v(LG + w)))
        nop(1)
        e("v_cndmask_b32 %s, %s, %s, vcc" % (v(LG + w), v(T + 2), v(LG + w)))
    e("v_max3_f32 %s, %s, %s, %s" % (v(T + 3), v(LG), v(LG + 1), v(LG + 2)))
    e("v_max3_f32 %s, %s, %s, %s" % (v(T + 3), v(T + 3), v(LG + 3), v(LG + 4)))
    e("v_max3_f32 %s, %s, %s, %s" % (v(T + 3), v(T + 3), v(LG + 5), v(LG + 6)))
    e("v_max_f32 %s, %s, %s" % (v(T + 3), v(T + 3), v(LG + 7)))
    for w in range(8):
        e("v_sub_f32 %s, %s, %s" % (v(LG + w), v(LG + w), v(T + 3)))
        e("v_exp_f32 %s, %s" % (v(LG + w), v(LG + w)))
    nop(1)
    e("v_add_f32 %s, %s, %s" % (v(T + 4), v(LG), v(LG + 1)))
    for w in range(2, 8): e("v_add_f32 %s, %s, %s" % (v(T + 4), v(T + 4), v(LG + w)))
    e("v_rcp_f32 %s, %s" % (v(T + 4), v(T + 4)))
    e("s_waitcnt vmcnt(12)")
    flag("s48", 0)
    for w in range(8):
        e("s_waitcnt lgkmcnt(%d)" % (3 * (min(w + 4, 7) - w)))
        kr = Kr + w * 12
        for d in range(9):
            if w == 0: e("v_mul_f32 %s, %s, %s" % (v(Or + d), v(LG), v(kr + d)))
            else: e("v_fmac_f32 %s, %s, %s" % (v(Or + d), v(LG + w), v(kr + d)))
        if w + 5 < 8: rec(Kr + (w + 5) * 12, VB + 1280 - 160 * (w + 5))
    for d in range(9): e("v_mul_f32 %s, %s, %s" % (v(Or + d), v(T + 4), v(Or + d)))
    for d in range(4): e("v_cvt_pk_bf16_f32 %s, %s, %s" % (v(Qr + d), v(Or + 2 * d), v(Or + 2 * d + 1)))
    e("v_mov_b32 %s, %s" % (v(Or + 9), v(Or + 8)))
    nop(2)
    e("v_permlane16_swap_b32 %s, %s" % (v(Or + 8), v(Or + 9)))
    nop(2)
    e("v_cvt_pk_bf16_f32 %s, %s, %s" % (v(Qr + 4), v(Or + 8), v(Or + 9)))
    e("s_lshl_b32 s40, %s, 4" % s(sMt))
    e("v_add_u32 %s, s40, %s" % (v(T + 5), v(T + 15)))
    e("v_lshlrev_b32 %s, 10, %s" % (v(T + 5), v(T + 5)))
    e("v_lshl_add_u32 %s, %s, 4, %s" % (v(T + 5), v(vM), v(T + 5)))
    e("v_lshl_add_u32 %s, %s, 8, %s" % (v(T + 6), v(T), v(T + 5)))
    e("s_lshr_b32 s42, %s, 1" % s(sJ)); e("s_lshl_b32 s42, s42, 17"); e("s_and_b32 s41, %s, 1" % s(sJ)); e("s_lshl_b32 s41, s41, 9"); e("s_add_u32 s42, s42, s41")
    e("s_bfe_u32 s43, %s, 0x20002" % s(sJ)); e("s_lshl_b32 s43, s43, 8"); e("s_and_b32 s41, %s, 3" % s(sJ)); e("s_lshl_b32 s41, s41, 2")
    e("s_add_u32 s43, s43, s41"); e("s_lshr_b32 s41, %s, 4" % s(sJ)); e("s_add_u32 s41, s41, 16"); e("s_lshl_b32 s41, s41, 17"); e("s_add_u32 s43, s43, s41")
    e("buffer_store_dwordx4 %s, %s, %s, s42 offen sc1" % (v(Qr, 4), v(T + 6), s(sO, 4)))
    e("s_mov_b32 exec_lo, 0xffff"); e("s_mov_b32 exec_hi, 0xffff")
    e("buffer_store_dword %s, %s, %s, s43 offen sc1" % (v(Qr + 4), v(T + 5), s(sO, 4)))
    e("s_mov_b64 exec, -1")
    stamp(7)
    e("v_lshlrev_b32 v249, 4, %s" % v(vL))
    e("s_cmp_lg_u32 %s, 0" % s(sWave)); e("s_cbranch_scc1 K1_PHX"); e("s_cmp_eq_u32 %s, 7" % s(sKs)); e("s_cbranch_scc1 K1_PHX")
    e("s_waitcnt vmcnt(0)")
    flag("s49", 0)
    poll("K1_PH", 0)
    e("s_waitcnt vmcnt(0)")
    flag("s49", 0)
    e("s_cmp_lg_u32 %s, 0" % s(sWave)); e("s_cbranch_scc1 K1_POX"); e("s_cmp_lg_u32 %s, 7" % s(sKs)); e("s_cbranch_scc1 K1_POX")
    poll("K1_PO", 1)
    e("s_mov_b32 s2, s50")
    e("s_barrier")
    stamp(8)
    SOFF[0] = 8
    next(k2)
    stamp_out(1, 16, 30)
    lab("K1_END")
    e("s_endpgm")
    lab("K1_LAST")

K2_STAGE = 96 * 288; K2_NS = 4; K2_LDS = K2_STAGE * K2_NS
def reduce_vals(src, nd, F):
    for k in range(8):
        for r in range(nd):
            x = src(k, r)
            if k == 0 or k == 7:
                o = F + (8 if k else 0) + 2 * r
                e("v_lshlrev_b32 %s, 16, %s" % (v(o), v(x))); e("v_and_b32 %s, s46, %s" % (v(o + 1), v(x)))
            else:
                tp = F + 16 + 2 * (r & 1)
                e("v_lshlrev_b32 %s, 16, %s" % (v(tp), v(x))); e("v_and_b32 %s, s46, %s" % (v(tp + 1), v(x)))
                e("v_pk_add_f32 %s, %s, %s" % (v(F + 2 * r, 2), v(F + 2 * r, 2), v(tp, 2)))
    for r in range(2 * nd):
        e("v_mul_f32 %s, s45, %s" % (v(F + 16 + r), v(F + r)))
        e("v_exp_f32 %s, %s" % (v(F + 16 + r), v(F + 16 + r)))
        e("v_mul_f32 %s, %s, %s" % (v(F + r), v(F + r), v(F + 8 + r)))
        e("v_add_f32 %s, 1.0, %s" % (v(F + 16 + r), v(F + 16 + r)))
        e("v_rcp_f32 %s, %s" % (v(F + 16 + r), v(F + 16 + r)))
    nop(1)
    for r in range(2 * nd): e("v_mul_f32 %s, %s, %s" % (v(F + r), v(F + r), v(F + 16 + r)))
    for r in range(nd): e("v_cvt_pk_bf16_f32 %s, %s, %s" % (v(F + 24 + r), v(F + 2 * r), v(F + 2 * r + 1)))
def k2_tail(sP, sX, sFl, sWave, sKs, sMt, sNt, vL, vG, vM, vTid, T):
    sOut = 20; YS = 304
    srd(sX, 52, 2048 * 1152); srd(sOut, 60, 2048 * 1152); srd(sFl, 54, 8192, FLAG_OFF + 16384)
    e("s_lshl_b32 s40, %s, 3" % s(sMt)); e("s_add_u32 s40, s40, %s" % s(sKs))
    e("s_mul_i32 s41, s40, %d" % (32 * 1152)); e("s_mul_i32 s42, %s, 288" % s(sNt)); e("s_add_u32 s41, s41, s42")
    vXA, vYA, XR = 72, 74, 76
    for n in range(2):
        e("v_add_u32 %s, %d, %s" % (v(T + 1), 512 * n, v(vTid)))
        divc(T + 2, T + 3, T + 1, 18, 3641, 16)
        e("v_mul_u32_u24 %s, 1152, %s" % (v(T + 4), v(T + 2))); e("v_lshl_add_u32 %s, %s, 4, %s" % (v(T + 4), v(T + 3), v(T + 4)))
        e("v_add_u32 %s, s41, %s" % (v(vXA + n), v(T + 4)))
        e("v_mul_u32_u24 %s, %d, %s" % (v(T + 4), YS, v(T + 2))); e("v_lshl_add_u32 %s, %s, 4, %s" % (v(vYA + n), v(T + 3), v(T + 4)))
    e("s_cmp_eq_u32 %s, 0" % s(sWave)); e("s_cselect_b32 s47, 0, 0x40000000")
    e("buffer_load_dwordx4 %s, %s, %s, 0 offen" % (v(XR, 4), v(vXA), s(sX, 4)))
    e("buffer_load_dwordx4 %s, %s, %s, s47 offen" % (v(XR + 4, 4), v(vXA + 1), s(sX, 4)))
    e("s_mul_i32 s40, s40, 36"); e("s_mul_i32 s41, %s, 9" % s(sNt)); e("s_add_u32 s40, s40, s41")
    e("s_add_u32 s41, s40, %s" % s(sWave)); e("s_lshl_b32 s41, s41, 10"); e("s_add_u32 s40, s40, 8"); e("s_lshl_b32 s40, s40, 10")
    e("s_lshl_b32 s42, %s, 2" % s(sWave)); e("s_add_u32 s40, s40, s42")
    e("v_add_u32 %s, s41, %s" % (v(T + 1), v(T)))
    e("v_add_u32 %s, s40, %s" % (v(T + 2), v(T)))
    e("v_mul_u32_u24 %s, %d, %s" % (v(T + 3), YS, v(vM))); e("v_lshl_add_u32 %s, %s, 3, %s" % (v(T + 3), v(vG), v(T + 3)))
    e("s_lshr_b32 s40, %s, 1" % s(sWave)); e("s_mul_i32 s40, s40, %d" % (16 * YS)); e("s_and_b32 s41, %s, 1" % s(sWave)); e("s_lshl_b32 s41, s41, 2")
    e("s_add_u32 s40, s40, s41"); e("v_add_u32 %s, s40, %s" % (v(T + 4), v(T + 3)))
    e("s_lshl_b32 s40, %s, 5" % s(sWave)); e("v_add_u32 %s, s40, %s" % (v(T + 3), v(T + 3)))
    for k in range(8): e("s_mov_b32 s%d, %d" % (32 + k, k * SLAB))
    e("s_mov_b32 s45, 0x%08x" % f2u(-1.4426950408889634)); e("s_mov_b32 s46, 0xffff0000")
    e("s_lshr_b32 s40, s2, 3"); e("s_lshl_b32 s40, s40, 8")
    e("v_and_b32 %s, 7, %s" % (v(T + 5), v(vL))); e("v_lshlrev_b32 %s, 2, %s" % (v(T + 5), v(T + 5))); e("v_mov_b32 %s, 1" % v(T + 6))
    e("s_lshl_b32 s41, %s, 5" % s(sWave)); e("s_add_u32 s41, s41, s40"); e("s_lshl_b32 s42, %s, 2" % s(sKs)); e("s_add_u32 s41, s41, s42")
    e("s_lshl_b32 s42, %s, 5" % s(sKs)); e("s_add_u32 s40, s40, s42")
    e("s_waitcnt vmcnt(2)")
    stamp(5)
    e("s_mov_b64 exec, 1")
    e("buffer_store_dword %s, %s, %s, s41 offen sc1" % (v(T + 6), v(T + 5), s(sFl, 4)))
    e("s_mov_b64 exec, 0xff"); e("s_mov_b32 s42, 0")
    e("s_cmp_lg_u32 %s, 0" % s(sWave)); e("s_cbranch_scc1 K2_POLLX")
    lab("K2_POLL")
    e("s_sleep %d" % SLP)
    e("buffer_load_dword %s, %s, %s, s40 offen sc1" % (v(T + 7), v(T + 5), s(sFl, 4)))
    e("s_add_u32 s42, s42, 1"); e("s_cmp_gt_u32 s42, 40000"); e("s_cbranch_scc1 K2_POLLX")
    e("s_waitcnt vmcnt(0)")
    e("v_cmp_eq_u32 vcc, 1, %s" % v(T + 7)); e("s_nop 3")
    e("s_cmp_eq_u32 vcc_lo, 0xff"); e("s_cbranch_scc0 K2_POLL")
    lab("K2_POLLX")
    e("s_mov_b64 exec, -1")
    e("s_barrier")
    stamp(6)
    for k in range(8): e("buffer_load_dwordx4 %s, %s, %s, s%d offen sc1" % (v(4 * k, 4), v(T + 1), s(sP, 4), 32 + k))
    e("s_cmp_gt_u32 %s, 3" % s(sWave)); e("s_cbranch_scc1 K2_NOQ")
    for k in range(8): e("buffer_load_dword %s, %s, %s, s%d offen sc1" % (v(32 + k), v(T + 2), s(sP, 4), 32 + k))
    e("s_waitcnt vmcnt(0)")
    reduce_vals(lambda k, r: 32 + k, 1, 88)
    e("ds_write_b32 %s, %s offset:256" % (v(T + 4), v(88 + 24)))
    lab("K2_NOQ")
    e("s_waitcnt vmcnt(0)")
    reduce_vals(lambda k, r: 4 * k + r, 4, 40)
    e("ds_write_b64 %s, %s" % (v(T + 3), v(64, 2)))
    e("ds_write_b64 %s, %s offset:%d" % (v(T + 3), v(66, 2), 16 * YS))
    e("s_waitcnt lgkmcnt(0)"); e("s_barrier")
    def fin(n):
        e("ds_read_b128 %s, %s" % (v(0, 4), v(vYA + n)))
        e("s_waitcnt lgkmcnt(0)")
        for r in range(4):
            x = XR + 4 * n + r
            e("v_lshlrev_b32 v8, 16, %s" % v(r)); e("v_and_b32 v9, s46, %s" % v(r))
            e("v_lshlrev_b32 v10, 16, %s" % v(x)); e("v_and_b32 v11, s46, %s" % v(x))
            e("v_pk_add_f32 v[8:9], v[8:9], v[10:11]")
            e("v_cvt_pk_bf16_f32 %s, v8, v9" % v(12 + 4 * n + r))
        e("buffer_store_dwordx4 %s, %s, %s, 0 offen" % (v(12 + 4 * n, 4), v(vXA + n), s(sOut, 4)))
    fin(0)
    e("s_cmp_lg_u32 %s, 0" % s(sWave)); e("s_cbranch_scc1 K2_FIN")
    fin(1)
    lab("K2_FIN")
def gen_k2(vL, vG, vM, vTid, k0hook):
    P = Loop(); P.name = "K2"; P.STAGE = K2_STAGE; P.NS = K2_NS; P.D = 6; P.AR = K2_AR; P.RW = 9
    P.asc = " sc1"; P.early = 1; P.slot0 = 1; P.RB = K1_LDS - K2_LDS
    ACT = 72; WR = 144; vMain = 180; vTail = 188; vD = 189; vDT = 192; vA0, vA1 = 193, 194; T = 200
    acc = lambda i, u: (i * 2 + u) * 4
    P.acc = acc; P.act = lambda st, f: ACT + (st * 2 + f) * 4; P.WR = WR; P.nacc = 72
    sW, sA, sP = 8, 12, 16
    sWave, sKs, sMt, sNt = 28, 51, 30, 46
    P.sCnt, P.sDelta, P.sRd, P.sWr, P.sT, P.sOffA, P.sAct = 31, 32, 33, 34, 35, 36, sA
    sOffW, sBM, sBT = 37, 39, 45
    P.k0hook = k0hook; P.sKs = sKs
    TAILB = 96 * 256
    e("s_and_b32 %s, s2, 7" % s(sKs)); e("s_bfe_u32 %s, s2, 0x20003" % s(sNt))
    w_setup(vL, T, sWave, sNt, 1152, vD, vDT, vMain, vTail, TAILB, 1)
    Lsave = len(L)
    w_setup_rd(vL, T, vMain, vTail, TAILB)
    e("s_lshl_b32 s40, %s, 4" % s(sMt)); e("s_lshl_b32 s41, %s, 1" % s(sWave)); e("s_add_u32 s41, s41, s40")
    e("s_lshl_b32 s41, s41, 10")
    e("v_lshlrev_b32 %s, 4, %s" % (v(T), v(vL)))
    e("v_add_u32 %s, s41, %s" % (v(vA0), v(T)))
    late = L[Lsave:]; del L[Lsave:]
    P.late_setup = lambda: L.extend(late)
    e("s_mul_i32 %s, %s, 3072" % (s(sBM), s(sWave))); e("s_add_u32 %s, %s, %d" % (s(sBM), s(sBM), P.RB))
    e("s_mul_i32 %s, %s, 384" % (s(sBT), s(sWave))); e("s_add_u32 %s, %s, %d" % (s(sBT), s(sBT), TAILB + P.RB))
    srd(sP, 54, 8 * SLAB, P_OFF)
    e("s_cmp_eq_u32 %s, 7" % s(sKs)); e("s_cbranch_scc1 K2_SJOB")
    srd(sW, 58, 4608 * 1152); srd(sA, 54, H_BYTES, H_OFF)
    e("s_mul_i32 %s, %s, %d" % (s(sOffW), s(sKs), 21 * 32 * 1152)); e("s_mul_i32 %s, %s, %d" % (s(P.sOffA), s(sKs), 21 * 131072))
    e("s_add_u32 s40, %s, %d" % (s(sOffW), 7 * 96 * 1152)); e("s_min_u32 %s, s40, %s" % (s(sW + 2), s(sW + 2)))
    e("s_branch K2_GO")
    lab("K2_SJOB")
    srd(sW, 54, WO_BYTES, WO_OFF); srd(sA, 54, O_BYTES, O_OFF)
    e("s_mov_b32 %s, 0x%x" % (s(sOffW), (1 << 32) - 96 * 1152)); e("s_mov_b32 %s, 0" % s(P.sOffA))
    lab("K2_GO")
    P.tiles = [(vMain + i, 4096, 8192) for i in range(8)] + [(vTail, 512, 1024)]
    P.dmas = [(vD, sW, sOffW, sBM, 0, 64), (vDT, sW, sOffW, sBT, 0, 24), (vD + 1, sW, sOffW, sBM, 1024, 64), (vD + 2, sW, sOffW, sBM, 2048, 64)]
    P.dsteps = [(sOffW, 96 * 1152)]
    P.vA = [(vA0, 0), (vA0, 1024)]; P.vmpos = [0, 2, 4, 6]; P.dd = [[0, 1], [2], [3]]
    P.extra = lambda q, kk, wr, tag: None
    P.K = 21; P.groups = [[0, 1, 2], [3, 4], [5, 6], [7, 8]]
    def tail_pre(store):
        e("s_lshl_b32 s40, %s, 3" % s(sMt)); e("s_add_u32 s40, s40, %s" % s(sWave)); e("s_mul_i32 s40, s40, 36")
        e("s_mul_i32 s41, %s, 9" % s(sNt)); e("s_add_u32 s40, s40, s41"); e("s_lshl_b32 s40, s40, 10")
        e("s_mul_i32 s41, %s, %d" % (s(sKs), SLAB)); e("s_add_u32 s40, s40, s41")
        e("s_and_b32 s41, %s, 1" % s(sNt)); e("s_lshl_b32 s42, s41, 10"); e("s_add_u32 s42, s42, s40"); e("s_add_u32 s43, s42, 4096")
        e("s_xor_b32 s41, s41, 1"); e("s_lshl_b32 s41, s41, 13"); e("s_add_u32 s41, s41, s40")
        e("v_lshlrev_b32 %s, 4, %s" % (v(T), v(vL)))
    def fin(g, store):
        for i in g:
            a0 = acc(i, 0)
            for r in range(4): e("v_cvt_pk_bf16_f32 %s, %s, %s" % (v(a0 + r), v(a0 + 2 * r), v(a0 + 2 * r + 1)))
            store("buffer_store_dwordx4 %s, %s, %s, %s offen offset:%d" % (v(a0, 4), v(T), s(sP, 4), ("s42", "s43", "s41")[i >> 2], (i & 3) * 1024) + (" sc1" if FUSE3 else PSC))
    P.tail_pre = tail_pre; P.fin = fin
    ml = mainloop(P)
    next(ml)
    yield
    next(ml)
    stamp(4)
    k2_tail(sP, sW, sA, sWave, sKs, sMt, sNt, vL, vG, vM, vTid, T)
    yield

def gen_k3():
    sX, sP, sOut = 8, 12, 16
    kstart("k3_kernel")
    e("s_cmp_ge_u32 s2, 192"); e("s_cbranch_scc1 K3_END"); stamp_init()
    e("s_load_dwordx2 s[48:49], s[0:1], 0"); e("s_load_dwordx2 s[50:51], s[0:1], 48"); e("s_load_dwordx2 s[54:55], s[0:1], 64")
    e("v_and_b32 v1, 63, v0"); e("v_lshrrev_b32 v2, 6, v0")
    e("s_mul_i32 s40, s2, 12288")
    e("v_mul_u32_u24 v5, 3072, v2"); e("v_lshl_add_u32 v5, v1, 4, v5"); e("v_add_u32 v5, s40, v5")
    e("v_and_b32 v6, 15, v1"); e("v_mul_u32_u24 v6, 400, v6"); e("v_mul_u32_u24 v7, 96, v2"); e("v_lshrrev_b32 v8, 4, v1")
    e("v_lshl_add_u32 v7, v8, 3, v7"); e("v_add_u32 v6, v6, v7")
    e("s_mul_hi_u32 s41, s2, 1431655766"); e("s_mul_i32 s42, s41, 3"); e("s_sub_u32 s42, s2, s42")
    e("s_mul_i32 s41, s41, %d" % (32 * 1152)); e("s_mul_i32 s42, s42, 384"); e("s_add_u32 s41, s41, s42")
    for n in range(3):
        e("v_add_u32 v9, %d, v0" % (256 * n))
        divc(10, 11, 9, 24, 2731, 16)
        e("v_mul_u32_u24 v9, 1152, v10"); e("v_lshl_add_u32 v9, v11, 4, v9"); e("v_add_u32 %s, s41, v9" % v(12 + n))
        e("v_mul_u32_u24 v9, 400, v10"); e("v_lshl_add_u32 %s, v11, 4, v9" % v(15 + n))
    e("s_waitcnt lgkmcnt(0)")
    srd(sX, 48, 2048 * 1152); srd(sOut, 50, 2048 * 1152); srd(sP, 54, 8 * SLAB, P_OFF)
    for k in range(8): e("s_mov_b32 s%d, %d" % (32 + k, k * SLAB))
    B = 32
    for t in range(3):
        for k in range(8):
            e("buffer_load_dwordx4 %s, v5, %s, s%d offen offset:%d" % (v(B + (t * 8 + k) * 4, 4), s(sP, 4), 32 + k, t * 1024))
    XR = 128
    for n in range(3): e("buffer_load_dwordx4 %s, %s, %s, 0 offen" % (v(XR + 4 * n, 4), v(12 + n), s(sX, 4)))
    e("s_mov_b32 s45, 0x%08x" % f2u(-1.4426950408889634)); e("s_mov_b32 s46, 0xffff0000")
    F = 140
    for t in range(3):
        b = B + t * 32
        for k in range(8):
            e("s_waitcnt vmcnt(%d)" % (26 - (t * 8 + k)))
            for r in range(4):
                src = b + k * 4 + r
                if k == 0:
                    e("v_lshlrev_b32 %s, 16, %s" % (v(F + 2 * r), v(src))); e("v_and_b32 %s, s46, %s" % (v(F + 2 * r + 1), v(src)))
                elif k < 7:
                    e("v_lshlrev_b32 v20, 16, %s" % v(src)); e("v_and_b32 v21, s46, %s" % v(src))
                    e("v_add_f32 %s, %s, v20" % (v(F + 2 * r), v(F + 2 * r))); e("v_add_f32 %s, %s, v21" % (v(F + 2 * r + 1), v(F + 2 * r + 1)))
                else:
                    e("v_lshlrev_b32 %s, 16, %s" % (v(F + 8 + 2 * r), v(src))); e("v_and_b32 %s, s46, %s" % (v(F + 8 + 2 * r + 1), v(src)))
        for r in range(8):
            e("v_mul_f32 %s, s45, %s" % (v(F + 16 + r), v(F + r)))
            e("v_exp_f32 %s, %s" % (v(F + 16 + r), v(F + 16 + r)))
            e("v_mul_f32 %s, %s, %s" % (v(F + r), v(F + r), v(F + 8 + r)))
            e("v_add_f32 %s, 1.0, %s" % (v(F + 16 + r), v(F + 16 + r)))
            e("v_rcp_f32 %s, %s" % (v(F + 16 + r), v(F + 16 + r)))
        nop(1)
        for r in range(8): e("v_mul_f32 %s, %s, %s" % (v(F + r), v(F + r), v(F + 16 + r)))
        for r in range(4): e("v_cvt_pk_bf16_f32 %s, %s, %s" % (v(b + r), v(F + 2 * r), v(F + 2 * r + 1)))
        e("ds_write_b64 v6, %s offset:%d" % (v(b, 2), t * 32))
        e("ds_write_b64 v6, %s offset:%d" % (v(b + 2, 2), t * 32 + 6400))
    e("s_waitcnt lgkmcnt(0)"); e("s_barrier")
    for n in range(3): e("ds_read_b128 %s, %s" % (v(B + 4 * n, 4), v(15 + n)))
    e("s_waitcnt vmcnt(0)")
    for n in range(3):
        e("s_waitcnt lgkmcnt(%d)" % (2 - n))
        for r in range(4):
            p = B + 4 * n + r; x = XR + 4 * n + r
            e("v_lshlrev_b32 v20, 16, %s" % v(p)); e("v_and_b32 v21, s46, %s" % v(p))
            e("v_lshlrev_b32 v22, 16, %s" % v(x)); e("v_and_b32 v23, s46, %s" % v(x))
            e("v_add_f32 v20, v20, v22"); e("v_add_f32 v21, v21, v23")
            e("v_cvt_pk_bf16_f32 %s, v20, v21" % v(p))
        e("buffer_store_dwordx4 %s, %s, %s, 0 offen" % (v(B + 4 * n, 4), v(12 + n), s(sOut, 4)))
    stamp_out(3, 2, 2)
    lab("K3_END")
    e("s_endpgm")

def kd(name, vg):
    return [".amdhsa_kernel %s" % name, "  .amdhsa_next_free_vgpr %d" % vg, "  .amdhsa_next_free_sgpr %d" % (96 if INSTR else 64),
            "  .amdhsa_accum_offset %d" % ((vg + 3) // 4 * 4), "  .amdhsa_group_segment_fixed_size 0", "  .amdhsa_kernarg_size 72",
            "  .amdhsa_user_sgpr_count 2", "  .amdhsa_user_sgpr_kernarg_segment_ptr 1",
            "  .amdhsa_system_sgpr_workgroup_id_x 1", "  .amdhsa_float_denorm_mode_32 3", ".end_amdhsa_kernel"]
hdr = ["; generated: LN+repack | QKV/FFN1+attention | FFN2 split-K + wo | reduce+epilogue",
       "; @launch kernel=k0_kernel grid=(256,1,1) block=(256,1,1) lds=0",
       "; @launch kernel=k1_kernel grid=(256,1,1) block=(512,1,1) lds=%d" % K1_LDS,
       ] + ([] if FUSE3 else ["; @launch kernel=k3_kernel grid=(192,1,1) block=(256,1,1) lds=12800"]) + [
       '.amdgcn_target "amdgcn-amd-amdhsa--gfx950"', ".text"]
gen_k0(); gen_k1()
tail = ['.section .rodata,"a"']
for n, vg in (("k0_kernel", 80), ("k1_kernel", 256), ("k2_kernel", 216), ("k3_kernel", 168))[:2]:
    tail += [".p2align 6"] + kd(n, vg)
open(sys.argv[1] if len(sys.argv) > 1 else OUT, "w").write("\n".join(hdr + L + tail) + "\n")
print("ok", len(L))
```

```python
import sys
NAME = "recurrent_scan__sliding_local_dilated__dense_activation_relu__prompt"
OUT = "cdna_kernels/%s.s" % NAME

import struct
def f2u(x): return struct.unpack("<I", struct.pack("<f", x))[0]
H_OFF = 0
H_BYTES = 128 * 144 * 1024
O_OFF = H_BYTES
O_BYTES = 2048 * 1152
XN_OFF = O_OFF + O_BYTES
WQ_OFF = XN_OFF + O_BYTES
WQ_BYTES = 32 * 576 * 128
WO_OFF = WQ_OFF + WQ_BYTES
WO_BYTES = 576 * 1152
P_OFF = WO_OFF + WO_BYTES
SLAB = 64 * 36 * 1024
L = []
def e(s): L.append("    " + s)
def lab(s): L.append(s + ":")
def v(i, n=1): return "v%d" % i if n == 1 else "v[%d:%d]" % (i, i + n - 1)
def s(i, n=1): return "s%d" % i if n == 1 else "s[%d:%d]" % (i, i + n - 1)
def nop(n): e("s_nop %d" % (n - 1))
def srd(d, lo, nbytes, add=0):
    if add:
        e("s_add_u32 %s, %s, 0x%x" % (s(d), s(lo), add))
        e("s_addc_u32 %s, %s, 0" % (s(d + 1), s(lo + 1)))
    else:
        e("s_mov_b32 %s, %s" % (s(d), s(lo)))
        e("s_mov_b32 %s, %s" % (s(d + 1), s(lo + 1)))
    e("s_mov_b32 %s, 0x%x" % (s(d + 2), nbytes))
    e("s_mov_b32 %s, 0x00020000" % s(d + 3))
def mfma(d, a, b): e("v_mfma_f32_16x16x32_bf16 %s, %s, %s, %s" % (v(d, 4), v(a, 4), v(b, 4), v(d, 4)))
def kstart(name):
    L.append(".globl %s" % name); L.append(".p2align 8"); L.append(".type %s,@function" % name); lab(name)
def perm_pi(dst, src, t0, t1):
    e("v_and_b32 %s, 0x63, %s" % (v(dst), v(src)))
    e("v_bfe_u32 %s, %s, 2, 2" % (v(t0), v(src)))
    e("v_lshl_add_u32 %s, %s, 3, %s" % (v(dst), v(t0), v(dst)))
    e("v_bfe_u32 %s, %s, 4, 1" % (v(t1), v(src)))
    e("v_lshl_add_u32 %s, %s, 2, %s" % (v(dst), v(t1), v(dst)))
def divc(q, r, x, c, magic, sh):
    e("v_mul_u32_u24 %s, %d, %s" % (v(q), magic, v(x)))
    e("v_lshrrev_b32 %s, %d, %s" % (v(q), sh, v(q)))
    e("v_mul_u32_u24 %s, %d, %s" % (v(r), c, v(q)))
    e("v_sub_u32 %s, %s, %s" % (v(r), v(x), v(r)))
def bf16r(d, src):
    e("v_cvt_pk_bf16_f32 %s, %s, %s" % (v(d), v(src), v(src)))
    e("v_and_b32 %s, 0xffff0000, %s" % (v(d), v(d)))
def xreduce(a, t):
    for p in ("v_permlane32_swap_b32", "v_permlane16_swap_b32"):
        e("v_mov_b32 %s, %s" % (v(t), v(a)))
        nop(2)
        e("%s %s, %s" % (p, v(a), v(t)))
        nop(2)
        e("v_add_f32 %s, %s, %s" % (v(a), v(a), v(t)))


import os
INSTR = int(os.environ.get("INSTR", "0"))
DBG_OFF = 60 << 20
SOFF = [0]
def stamp(i):
    if not INSTR: return
    i += SOFF[0]
    e("s_memrealtime s[62:63]"); e("s_waitcnt lgkmcnt(0)"); e("s_mov_b32 s%d, s62" % (64 + i))
    if INSTR == 2 and i in (2, 3):
        e("s_memtime s[62:63]"); e("s_waitcnt lgkmcnt(0)"); e("s_mov_b32 s%d, s62" % (64 + i - 2))
def stamp_out(kern, n, vt):
    if not INSTR: return
    SOFF[0] = 0
    stamp(n - 1)
    srd(80, 54, 1 << 20, DBG_OFF + kern * 65536 * 4)
    e("s_lshl_b32 s62, s2, 3"); e("s_add_u32 s62, s62, s84"); e("s_lshl_b32 s62, s62, 6")
    e("s_mov_b64 exec, 1")
    e("v_mov_b32 %s, s62" % v(vt))
    for i in range(n):
        e("v_mov_b32 %s, s%d" % (v(vt + 1), 64 + i))
        e("buffer_store_dword %s, %s, s[80:83], 0 offen offset:%d" % (v(vt + 1), v(vt), 4 * i))
        e("s_nop 1")
def stamp_init():
    if not INSTR: return
    e("v_lshrrev_b32 v1, 6, v0"); e("s_nop 1"); e("v_readfirstlane_b32 s84, v1")
    stamp(0)

HSC = " sc1"
PSC = os.environ.get("PSC", "")
K2_AR = int(os.environ.get("K2_AR", "6"))
PF = int(os.environ.get("PF", "1"))
FUSE3 = int(os.environ.get("FUSE3", "1"))
FLAG_OFF = P_OFF + 8 * SLAB
POLLW = int(os.environ.get("POLLW", "4"))
SLP = int(os.environ.get("SLP", "2"))
PRIO = int(os.environ.get("PRIO", "1"))
CPF = int(os.environ.get("CPF", "5"))
class Loop:
    pass
def mainloop(P):
    NT = len(P.tiles); D = P.D; AR = P.AR; LA = AR - 1; RW = P.RW; U = AR // 3
    assert (NT * 3 * U) % RW == 0 and D < RW + 0 and AR % 3 == 0
    def wreg(gq): return P.WR + (gq % RW) * 4
    def wread(gq, q=None, kk=None):
        if q is None:
            gq %= NT * 3 * U
            q = gq % NT; kk = (gq // NT) % 3
        base, o16, okk = P.tiles[q]
        if kk == 0: e("v_add_u32 %s, %s, %s" % (v(base), s(P.sDelta), v(base)))
        e("ds_read_b64_tr_b16 %s, %s offset:%d" % (v(wreg(gq), 2), v(base), kk * okk))
        e("ds_read_b64_tr_b16 %s, %s offset:%d" % (v(wreg(gq) + 2, 2), v(base), kk * okk + o16))
    def nextdelta():
        e("s_add_u32 %s, %s, %d" % (s(P.sRd), s(P.sRd), P.STAGE))
        e("s_cmp_ge_u32 %s, %d" % (s(P.sRd), P.STAGE * P.NS))
        e("s_cselect_b32 %s, %d, 0" % (s(P.sDelta), P.STAGE * P.NS))
        e("s_sub_u32 %s, %s, %s" % (s(P.sRd), s(P.sRd), s(P.sDelta)))
        e("s_sub_u32 %s, %d, %s" % (s(P.sDelta), P.STAGE, s(P.sDelta)))
    def dma(n):
        vo, sr, so, sbase, ldsoff, lanes = P.dmas[n]
        e("s_add_u32 m0, %s, %s" % (s(P.sWr), s(sbase)))
        if lanes < 64:
            e("s_mov_b32 exec_lo, 0x%x" % ((1 << min(lanes, 32)) - 1)); e("s_mov_b32 exec_hi, 0")
            assert lanes <= 32
        else: e("s_nop 0")
        e("buffer_load_dwordx4 %s, %s, %s offen offset:%d lds" % (v(vo), s(sr, 4), s(so), ldsoff))
        if lanes < 64: e("s_mov_b64 exec, -1")
        if n == len(P.dmas) - 1:
            for so2, st in P.dsteps: e("s_add_u32 %s, %s, %d" % (s(so2), s(so2), st))
            e("s_add_u32 %s, %s, %d" % (s(P.sWr), s(P.sWr), P.STAGE))
            e("s_cmp_ge_u32 %s, %d" % (s(P.sWr), P.STAGE * P.NS))
            e("s_cselect_b32 %s, 0, %s" % (s(P.sWr), s(P.sWr)))
    def aload(st, f, off):
        e("buffer_load_dwordx4 %s, %s, %s, %s offen offset:%d" % (v(P.act(st, f), 4), v(P.vA[f][0]), s(P.sAct, 4), s(P.sOffA), P.vA[f][1]) + P.asc)
        if f == len(P.vA) - 1: e("s_add_u32 %s, %s, 0x20000" % (s(P.sOffA), s(P.sOffA)))
    NA = len(P.vA); ND = len(P.dmas); dd = P.dd
    cnt = [NA + len(dd[k]) for k in range(3)]
    assert AR == 6 and P.NS == 4
    Q = []
    def A(k): return [("a", k, f) for f in range(NA)]
    def S(st): return [("d", st, n) for n in range(ND)]
    def issue(op):
        Q.append(op)
        if op[0] == "a": aload(op[1] % AR, op[2], 0)
        else: dma(op[2])
    def after(ops): return len(Q) - 1 - max(Q.index(o) for o in ops)
    def wcount(kk): return len(dd[(kk - LA) % 3]) + sum(cnt[(kk - i) % 3] for i in range(1, LA))
    def kstep(k, vm, vpos, tag, emit=True, steady=False):
        ks = k % AR; kk = k % 3
        need = [o for o in A(k) + (S(k // 3 + 1) if kk == 2 else []) if o not in Done]
        w = after(need) if need else 63
        if steady:
            assert wcount(kk) <= w, (k, wcount(kk), w)
            w = wcount(kk)
        if not emit:
            Q.extend(vm); return
        e("s_waitcnt vmcnt(%d)" % w)
        if kk == 2: nextdelta()
        pos = {}
        for i, x in enumerate(vm): pos.setdefault(vpos[i], []).append(x)
        for q in range(NT):
            gq = ks * NT + q
            e("s_waitcnt lgkmcnt(%d)" % (2 * D - 2))
            if kk == 2 and q == NT - D: e("s_barrier")
            wread(gq + D)
            mfma(P.acc(q, 0), wreg(gq), P.act(ks, 0))
            mfma(P.acc(q, 1), wreg(gq), P.act(ks, 1))
            P.extra(q, ks, wreg(gq), tag)
            for x in pos.get(q, []): issue(x)
    def svm(k): return A(k + LA) + [("d", k // 3 + 3, n) for n in dd[k % 3]]
    Done = set()
    if PRIO and not P.early:
        e("s_cmp_lt_u32 s28, 4"); e("s_cbranch_scc1 %s_NP" % P.name); e("s_setprio 1"); lab(P.name + "_NP")
    e("s_mov_b32 %s, %d" % (s(P.sWr), P.STAGE * P.slot0)); e("s_mov_b32 %s, %d" % (s(P.sRd), P.STAGE * P.slot0))
    e("s_mov_b32 %s, %d" % (s(P.sDelta), P.RB + P.STAGE * P.slot0))
    if P.early:
        for op in S(0) + S(1) + S(2): issue(op)
        P.late_setup()
        yield
        Done = set(Q)
        ramp = [A(3) + A(4), A(5) + A(6), A(7) + S(3)]
        e("s_cmp_lg_u32 %s, 7" % s(P.sKs)); e("s_cbranch_scc1 %s_FULL" % P.name)
        Qs = list(Q)
        for op in A(3) + A(4) + A(5) + A(6) + A(7): issue(op)
        for op in S(3): issue(op)
        for base, _, _ in P.tiles: e("v_add_u32 %s, %s, %s" % (v(base), s(P.sDelta), v(base)))
        nextdelta()
        for q in range(D): wread(3 * NT + q)
        for r in range(P.nacc): e("v_mov_b32 %s, 0" % v(r))
        e("s_branch %s_JOIN" % P.name)
        Q[:] = Qs
        lab(P.name + "_FULL")
        for op in A(0) + A(1) + A(2): issue(op)
        for q in range(D): wread(q)
        for r in range(P.nacc): e("v_mov_b32 %s, 0" % v(r))
        stamp(1)
    else:
        for op in S(0): issue(op)
        P.late_setup()
        for op in A(0) + A(1): issue(op)
        for r in range(P.nacc): e("v_mov_b32 %s, 0" % v(r))
        stamp(1)
        e("s_waitcnt vmcnt(%d)" % after(S(0))); e("s_barrier")
        stamp(2)
        for q in range(D): wread(q)
        ramp = [A(2) + S(1) + A(3), A(4) + S(2) + A(5), A(6) + A(7) + S(3)]
    for k in range(3):
        kstep(k, ramp[k], list(range(NT)), "P")
        if k == 0 and P.early: stamp(2)
    if P.early:
        lab(P.name + "_JOIN")
        e("s_waitcnt vmcnt(%d)" % after(A(4))); Done = set(Q[:Q.index(A(4)[-1]) + 1])
    e("s_mov_b32 %s, %d" % (s(P.sCnt), P.K // 3 - 3))
    e("s_branch %s_MID" % P.name)
    Q0 = list(Q)
    for k in range(3, 12): kstep(k, svm(k), None, "", emit=False, steady=True)
    lab(P.name + "_LOOP")
    for u in range(U):
        if u == 1: lab(P.name + "_MID")
        for kk in range(3):
            k = 12 + u * 3 + kk
            kstep(k, svm(k), P.vmpos, "L", steady=True)
        e("s_sub_u32 %s, %s, 1" % (s(P.sCnt), s(P.sCnt)))
        e("s_cmp_lg_u32 %s, 0" % s(P.sCnt))
        if u == U - 1: e("s_cbranch_scc1 %s_LOOP" % P.name)
        else: e("s_cbranch_scc0 %s_DONE" % P.name)
    lab(P.name + "_DONE")
    stamp(3)
    K0 = P.K - 6
    Q[:] = Q0
    for k in range(3, K0): Q.extend(svm(k))
    seq = [(K0, q) for q in range(NT)]; fins = {}
    for g in P.groups:
        seq += [(k, q) for k in range(K0 + 1, P.K) for q in g]
        fins[len(seq) - 1 + 2] = g
    g0 = (K0 % AR) * NT; seen = set(); first = True
    vm = A(P.K - 1)
    def store(txt): Q.append(("s", len(Q))); e(txt)
    for i, (k, q) in enumerate(seq):
        if k not in seen:
            seen.add(k); e("s_waitcnt vmcnt(%d)" % after(A(k)))
        e("s_waitcnt lgkmcnt(%d)" % (2 * min(D - 1, len(seq) - 1 - i)))
        if i + D < len(seq):
            k2, q2 = seq[i + D]
            if k2 == P.K - 3 and first:
                first = False
                nextdelta(); e("s_waitcnt vmcnt(%d)" % after(S(P.K // 3 - 1))); e("s_barrier")
            wread(g0 + i + D, q2, k2 % 3)
        mfma(P.acc(q, 0), wreg(g0 + i), P.act(k % AR, 0))
        mfma(P.acc(q, 1), wreg(g0 + i), P.act(k % AR, 1))
        P.extra(q, k % AR, wreg(g0 + i), "T")
        if i < len(vm): issue(vm[i])
        if i == len(vm): P.tail_pre(store)
        if i in fins: P.fin(fins.pop(i), store)
    e("s_nop 7"); e("s_nop 7")
    for i in sorted(fins): P.fin(fins[i], store)
    P.after = after; P.S = S
    yield

def common_ids(vL, vG, vM, T, sWave):
    e("v_and_b32 %s, 63, v0" % v(vL))
    e("v_lshrrev_b32 %s, 6, v0" % v(T))
    e("v_lshrrev_b32 %s, 4, %s" % (v(vG), v(vL)))
    e("v_readfirstlane_b32 %s, %s" % (s(sWave), v(T)))
    e("v_and_b32 %s, 15, %s" % (v(vM), v(vL)))
def w_setup(vL, T, sWave, sCol, stride, vD, vDT, vMain, vTail, TAILB, perm=0):
    def pp():
        if perm:
            perm_pi(T + 2, T, T + 3, T + 3); e("v_mov_b32 %s, %s" % (v(T), v(T + 2)))
    e("s_mul_i32 s40, %s, 12" % s(sWave))
    e("s_mul_i32 s41, %s, 288" % s(sCol)); e("s_and_b32 s42, %s, 1" % s(sCol))
    e("s_lshl_b32 s43, s42, 5"); e("s_add_u32 s43, s43, s41")
    e("s_xor_b32 s42, s42, 1"); e("s_lshl_b32 s42, s42, 8"); e("s_add_u32 s42, s42, s41")
    e("s_mov_b32 s41, %d" % stride)
    for n in range(3):
        e("v_lshrrev_b32 %s, 4, %s" % (v(T), v(vL)))
        e("v_add3_u32 %s, %s, s40, %d" % (v(T), v(T), 4 * n))
        e("v_bfe_u32 %s, %s, 1, 3" % (v(T + 1), v(vL)))
        e("v_xor_b32 %s, %s, %s" % (v(T + 1), v(T + 1), v(T)))
        e("v_and_b32 %s, 7, %s" % (v(T + 1), v(T + 1)))
        pp()
        e("v_mul_lo_u32 %s, %s, s41" % (v(T), v(T)))
        e("v_lshl_add_u32 %s, %s, 5, %s" % (v(T), v(T + 1), v(T)))
        e("v_and_b32 %s, 1, %s" % (v(T + 1), v(vL)))
        e("v_lshl_add_u32 %s, %s, 4, %s" % (v(T), v(T + 1), v(T)))
        e("v_add_u32 %s, s43, %s" % (v(vD + n), v(T)))
        e("s_sub_u32 s43, s43, 1024")
    e("v_lshrrev_b32 %s, 1, %s" % (v(T), v(vL)))
    e("v_add_u32 %s, s40, %s" % (v(T), v(T)))
    pp()
    e("v_mul_lo_u32 %s, %s, s41" % (v(T), v(T)))
    e("v_lshl_add_u32 %s, %s, 4, %s" % (v(T), v(T + 1), v(T)))
    e("v_add_u32 %s, s42, %s" % (v(vDT), v(T)))
def w_setup_rd(vL, T, vMain, vTail, TAILB):
    e("v_lshrrev_b32 %s, 2, %s" % (v(T), v(vL)))
    e("v_and_b32 %s, 3, %s" % (v(T + 1), v(vL)))
    e("v_and_b32 %s, 7, %s" % (v(T + 2), v(T)))
    e("v_lshlrev_b32 %s, 8, %s" % (v(T + 3), v(T)))
    e("v_lshl_add_u32 %s, %s, 5, %s" % (v(T + 3), v(T + 2), v(T + 3)))
    e("v_lshl_add_u32 %s, %s, 3, %s" % (v(vMain), v(T + 1), v(T + 3)))
    for i in range(1, 8): e("v_xor_b32 %s, %d, %s" % (v(vMain + i), i << 5, v(vMain)))
    e("v_lshlrev_b32 %s, 3, %s" % (v(vTail), v(vL)))
    e("v_add_u32 %s, %d, %s" % (v(vTail), TAILB, v(vTail)))

def gen_k0():
    sX, sXN, sWQ, sWQP, sWO, sWOP = 8, 12, 16, 20, 24, 28
    kstart("k0_kernel")
    e("s_cmp_ge_u32 s2, 256"); e("s_cbranch_scc1 K0_END"); stamp_init()
    e("s_load_dwordx4 s[48:51], s[0:1], 0"); e("s_load_dwordx2 s[52:53], s[0:1], 16"); e("s_load_dwordx2 s[54:55], s[0:1], 64")
    e("s_load_dwordx2 s[34:35], s[0:1], 32")
    e("v_lshrrev_b32 v1, 7, v0"); e("v_and_b32 v2, 127, v0"); e("s_nop 0")
    e("v_readfirstlane_b32 s33, v1")
    e("s_waitcnt lgkmcnt(0)")
    srd(sX, 48, 2048 * 1152); srd(sWQ, 50, 576 * 3456); srd(sWO, 52, WO_BYTES)
    srd(sXN, 54, O_BYTES, XN_OFF); srd(sWQP, 54, WQ_BYTES, WQ_OFF); srd(sWOP, 54, WO_BYTES, WO_OFF)
    def pf():
        if not PF: return
        srd(36, 34, 576 * 9216)
        if CPF:
            n = len(L)
            e("s_getpc_b64 s[56:57]")
            lab("K0_PC%d" % n)
            e("v_lshrrev_b32 v72, 6, v0"); e("s_lshr_b32 s58, s2, 3"); e("s_lshl_b32 s58, s58, 2"); e("v_readfirstlane_b32 s59, v72")
            e("s_add_u32 s58, s58, s59"); e("s_mul_i32 s58, s58, %d" % (64 * CPF)); e("s_min_u32 s58, s58, K1_LAST-k1_kernel-%d" % (64 * CPF))
            e("s_add_u32 s58, s58, k1_kernel-K0_PC%d" % n)
            e("s_add_u32 s56, s56, s58"); e("s_addc_u32 s57, s57, 0")
            for i in range(CPF): e("s_load_dword s60, s[56:57], %d" % (64 * i))
        e("s_lshr_b32 s44, s2, 3"); e("s_mul_i32 s44, s44, %d" % (18 * 9216)); e("s_and_b32 s45, s2, 7"); e("s_mul_i32 s45, s45, 1152"); e("s_add_u32 s44, s44, s45")
        for n in range(2):
            e("v_add_u32 v72, %d, v0" % (256 * n)); e("v_min_u32 v72, 323, v72")
            divc(73, 74, 72, 18, 3641, 16)
            e("v_mul_u32_u24 v73, 9216, v73"); e("v_lshl_add_u32 v73, v74, 6, v73")
            e("buffer_load_dword v75, v73, s[36:39], s44 offen")
    e("s_cmp_eq_u32 s33, 0"); e("s_cbranch_scc0 K0_PACK")
    e("s_lshl_b32 s40, s2, 3")
    e("v_lshrrev_b32 v3, 4, v2"); e("v_add_u32 v3, s40, v3"); e("v_and_b32 v4, 15, v2")
    e("v_mul_u32_u24 v5, 1152, v3"); e("v_lshl_add_u32 v5, v4, 3, v5")
    for i in range(9): e("buffer_load_dwordx2 %s, v5, %s, 0 offen offset:%d" % (v(10 + 2 * i, 2), s(sX, 4), i * 128))
    pf()
    e("v_lshrrev_b32 v6, 4, v3"); e("v_lshrrev_b32 v7, 3, v4"); e("v_lshl_add_u32 v6, v7, 7, v6")
    e("v_lshlrev_b32 v6, 10, v6"); e("v_and_b32 v7, 3, v4"); e("v_lshl_add_u32 v6, v7, 8, v6")
    e("v_and_b32 v7, 15, v3"); e("v_lshl_add_u32 v6, v7, 4, v6"); e("v_bfe_u32 v7, v4, 2, 1"); e("v_lshl_add_u32 v6, v7, 3, v6")
    e("s_mov_b32 s40, 0x%08x" % f2u(1.0 / 576.0)); e("s_mov_b32 s41, 0x%08x" % f2u(1e-5))
    X = 32
    e("v_mov_b32 v8, 0")
    for i in range(18):
        if i % 2 == 0: e("s_waitcnt vmcnt(%d)" % (8 - i // 2 + 2 * PF))
        e("v_lshlrev_b32 %s, 16, %s" % (v(X + 2 * i), v(10 + i)))
        e("v_and_b32 %s, 0xffff0000, %s" % (v(X + 2 * i + 1), v(10 + i)))
        e("v_add_f32 v8, v8, %s" % v(X + 2 * i)); e("v_add_f32 v8, v8, %s" % v(X + 2 * i + 1))
    def rowred(r):
        for sh in (8, 4, 2, 1):
            nop(2); e("v_add_f32_dpp %s, %s, %s row_ror:%d row_mask:0xf bank_mask:0xf" % (v(r), v(r), v(r), sh))
    rowred(8)
    e("v_mul_f32 v8, s40, v8")
    bf16r(9, 8)
    e("v_mov_b32 v70, 0")
    for i in range(36):
        e("v_sub_f32 v71, %s, v8" % v(X + i)); e("v_fmac_f32 v70, v71, v71")
    rowred(70)
    e("v_mul_f32 v70, s40, v70"); bf16r(70, 70)
    e("v_add_f32 v70, s41, v70"); bf16r(70, 70)
    e("v_sqrt_f32 v70, v70"); nop(1); bf16r(70, 70)
    e("v_rcp_f32 v70, v70")
    for i in range(18):
        a = X + 2 * i
        e("v_sub_f32 %s, %s, v9" % (v(a), v(a))); e("v_sub_f32 %s, %s, v9" % (v(a + 1), v(a + 1)))
        e("v_cvt_pk_bf16_f32 %s, %s, %s" % (v(a), v(a), v(a + 1)))
        e("v_and_b32 %s, 0xffff0000, %s" % (v(a + 1), v(a))); e("v_lshlrev_b32 %s, 16, %s" % (v(a), v(a)))
        e("v_mul_f32 %s, %s, v70" % (v(a), v(a))); e("v_mul_f32 %s, %s, v70" % (v(a + 1), v(a + 1)))
        e("v_cvt_pk_bf16_f32 %s, %s, %s" % (v(10 + i), v(a), v(a + 1)))
        if i % 2 == 1:
            k = i // 2
            e("s_mov_b32 s42, %d" % (k * 262144))
            e("buffer_store_dwordx2 %s, v6, %s, s42 offen" % (v(10 + i - 1, 2), s(sXN, 4)))
    stamp_out(0, 2, 2)
    e("s_endpgm")
    lab("K0_PACK")
    e("s_lshr_b32 s40, s2, 3"); e("s_and_b32 s41, s2, 7"); e("s_mul_i32 s41, s41, 72"); e("s_mul_i32 s40, s40, 36")
    e("v_lshrrev_b32 v3, 5, v2"); e("v_add_u32 v3, s41, v3"); e("v_mul_u32_u24 v3, 3456, v3")
    e("v_and_b32 v4, 31, v2")
    e("v_lshrrev_b32 v5, 3, v4"); e("v_and_b32 v6, 7, v4")
    e("v_min_u32 v7, 2, v6")
    e("v_cmp_eq_u32 vcc, 3, v5"); nop(2)
    e("v_cndmask_b32 v5, v5, v7, vcc"); e("v_cndmask_b32 v6, v6, 8, vcc")
    e("v_mul_u32_u24 v5, 1152, v5"); e("v_lshl_add_u32 v5, v6, 2, v5"); e("v_add3_u32 v3, v3, v5, s40")
    e("s_mul_i32 s42, s2, 9216"); e("v_lshlrev_b32 v4, 2, v2"); e("v_add_u32 v4, s42, v4")
    for i in range(18):
        e("s_mov_b32 s43, %d" % (i * 4 * 3456))
        e("buffer_load_dword %s, v3, %s, s43 offen" % (v(10 + i), s(sWQ, 4)))
    e("s_mul_i32 s40, s2, 162")
    for n in range(2):
        b = 40 + n * 12
        e("v_add_u32 %s, s40, v2" % v(b))
        if n: e("v_add_u32 %s, 128, %s" % (v(b), v(b)))
        e("s_mov_b32 s41, 59652324"); e("v_mul_hi_u32 %s, %s, s41" % (v(b + 1), v(b)))
        e("v_mul_u32_u24 %s, 72, %s" % (v(b + 2), v(b + 1))); e("v_sub_u32 %s, %s, %s" % (v(b + 2), v(b), v(b + 2)))
        e("v_mov_b32 %s, %s" % (v(b + 4), v(b + 1)))
        e("v_lshrrev_b32 %s, 4, %s" % (v(b + 5), v(b + 4))); e("v_mul_u32_u24 %s, 18, %s" % (v(b + 5), v(b + 5)))
        e("v_and_b32 %s, 15, %s" % (v(b + 6), v(b + 4))); e("v_add_u32 %s, %s, %s" % (v(b + 5), v(b + 5), v(b + 6)))
        e("v_bfe_u32 %s, %s, 1, 5" % (v(b + 6), v(b + 4))); e("v_mul_u32_u24 %s, 18, %s" % (v(b + 6), v(b + 6)))
        e("v_and_b32 %s, 1, %s" % (v(b + 7), v(b + 4))); e("v_add3_u32 %s, %s, %s, 16" % (v(b + 6), v(b + 6), v(b + 7)))
        e("v_cmp_gt_u32 vcc, 512, %s" % v(b + 4)); nop(2)
        e("v_cndmask_b32 %s, %s, %s, vcc" % (v(b + 5), v(b + 6), v(b + 5)))
        e("v_mul_u32_u24 %s, 1152, %s" % (v(b + 5), v(b + 5))); e("v_lshl_add_u32 %s, %s, 4, %s" % (v(b + 5), v(b + 2), v(b + 5)))
        e("v_lshlrev_b32 %s, 4, %s" % (v(b), v(b)))
        if n:
            e("v_mov_b32 %s, 0x80000000" % v(b + 7)); e("v_cmp_gt_u32 vcc, 34, v2"); nop(2)
            e("v_cndmask_b32 %s, %s, %s, vcc" % (v(b), v(b + 7), v(b))); e("v_cndmask_b32 %s, %s, %s, vcc" % (v(b + 5), v(b + 7), v(b + 5)))
        e("buffer_load_dwordx4 %s, %s, %s, 0 offen" % (v(b + 8, 4), v(b + 5), s(sWO, 4)))
    pf()
    for i in range(18):
        e("s_waitcnt vmcnt(%d)" % (19 + 2 * PF))
        e("buffer_store_dword %s, v4, %s, 0 offen offset:%d" % (v(10 + i), s(sWQP, 4), 0) if i == 0 else
          "buffer_store_dword %s, v4, %s, s43 offen" % (v(10 + i), s(sWQP, 4)))
        e("s_mov_b32 s43, %d" % ((i + 1) * 512))
    e("s_waitcnt vmcnt(%d)" % (18 + 2 * PF))
    for n in range(2):
        b = 40 + n * 12
        e("buffer_store_dwordx4 %s, %s, %s, 0 offen" % (v(b + 8, 4), v(b), s(sWOP, 4)))
    if FUSE3:
        e("s_cmp_ge_u32 s2, 12"); e("s_cbranch_scc1 K0_NOFLAG")
        srd(36, 54, 24576, FLAG_OFF)
        for r in range(4): e("v_mov_b32 v%d, 0" % (76 + r))
        e("v_lshlrev_b32 v72, 4, v2"); e("s_lshl_b32 s44, s2, 11")
        e("buffer_store_dwordx4 v[76:79], v72, s[36:39], s44 offen")
        lab("K0_NOFLAG")
    stamp_out(0, 2, 2)
    lab("K0_END")
    e("s_endpgm")

PW1 = int(os.environ.get('PW1', '7')); HF = int(os.environ.get('HF', '1')); PP = int(os.environ.get('PP', '0'))
K1_STAGE = 96 * 416; K1_NS = 4; K1_LDS = K1_STAGE * K1_NS
def gen_k1():
    P = Loop(); P.name = "K1"; P.STAGE = K1_STAGE; P.NS = K1_NS; P.D = 5; P.AR = 6; P.RW = 6; P.asc = ""; P.early = 0; P.slot0 = 0; P.RB = 0
    EX = 104; ACT = 108; WR = 180; vMain = 204; vTail = 212; vQK = 213; vD = 217; vDT = 220; vDQ = 221; ST = 136
    vA0, vA1, vAH = 223, 224, 225; vL, vG, vM, vTid = 226, 227, 228, 229; T = 232
    acc = lambda i, u: (i * 2 + u) * 4
    P.acc = acc; P.act = lambda st, f: ACT + (st * 3 + f) * 4; P.WR = WR; P.nacc = 108
    sX, sW1, sWQ, sH, sO = 8, 12, 16, 20, 24
    sWave, sJ, sMt = 28, 29, 30
    P.sCnt, P.sDelta, P.sRd, P.sWr, P.sT, P.sOffA, P.sAct = 31, 32, 33, 34, 35, 36, sX
    sOffW1, sOffWQ, sBM, sBT, sBQ = 37, 38, 39, 44, 45
    TAILB = 96 * 256; QKB = TAILB + 96 * 32
    kstart("k1_kernel")
    e("s_cmp_ge_u32 s2, 256"); e("s_cbranch_scc1 K1_END"); stamp_init()
    e("s_load_dwordx4 s[56:59], s[0:1], 32"); e("s_load_dwordx2 s[54:55], s[0:1], 64")
    e("s_load_dwordx2 s[60:61], s[0:1], 48"); e("s_load_dwordx2 s[52:53], s[0:1], 0")
    common_ids(vL, vG, vM, T, sWave)
    e("v_mov_b32 %s, v0" % v(vTid))
    e("s_and_b32 s40, s2, 7"); e("s_lshr_b32 s41, s2, 3")
    e("s_lshr_b32 %s, s41, 2" % s(sMt)); e("s_and_b32 s41, s41, 3"); e("s_lshl_b32 s40, s40, 2"); e("s_add_u32 %s, s40, s41" % s(sJ))
    w_setup(vL, T, sWave, sJ, 9216, vD, vDT, vMain, vTail, TAILB)
    e("s_mul_i32 s41, %s, %d" % (s(sJ), 576 * 128))
    for n in range(2):
        e("v_lshrrev_b32 %s, 3, %s" % (v(T), v(vL)))
        e("v_add3_u32 %s, %s, s40, %d" % (v(T), v(T), 8 * n))
        e("v_lshrrev_b32 %s, 1, %s" % (v(T + 1), v(T)))
        e("v_bfe_u32 %s, %s, 1, 2" % (v(T + 2), v(vL)))
        e("v_xor_b32 %s, %s, %s" % (v(T + 1), v(T + 1), v(T + 2)))
        e("v_and_b32 %s, 3, %s" % (v(T + 1), v(T + 1)))
        e("v_lshlrev_b32 %s, 7, %s" % (v(T), v(T)))
        e("v_lshl_add_u32 %s, %s, 5, %s" % (v(T), v(T + 1), v(T)))
        e("v_and_b32 %s, 1, %s" % (v(T + 1), v(vL)))
        e("v_lshl_add_u32 %s, %s, 4, %s" % (v(T), v(T + 1), v(T)))
        e("v_add_u32 %s, s41, %s" % (v(vDQ + n), v(T)))
        e("s_sub_u32 s41, s41, 1024")
    Lsave = len(L)
    w_setup_rd(vL, T, vMain, vTail, TAILB)
    e("v_lshrrev_b32 %s, 2, %s" % (v(T), v(vL)))
    e("v_bfe_u32 %s, %s, 3, 2" % (v(T + 1), v(vL)))
    e("v_lshlrev_b32 %s, 7, %s" % (v(T), v(T)))
    e("v_lshl_add_u32 %s, %s, 5, %s" % (v(T), v(T + 1), v(T)))
    e("v_and_b32 %s, 3, %s" % (v(T + 1), v(vL)))
    e("v_lshl_add_u32 %s, %s, 3, %s" % (v(T), v(T + 1), v(T)))
    for i in range(4):
        e("v_xor_b32 %s, %d, %s" % (v(vQK + i), i << 5, v(T)))
        e("v_add_u32 %s, %d, %s" % (v(vQK + i), QKB, v(vQK + i)))
    e("s_lshl_b32 s40, %s, 4" % s(sMt)); e("s_lshl_b32 s41, %s, 1" % s(sWave)); e("s_add_u32 s41, s41, s40")
    e("s_lshl_b32 s41, s41, 10")
    e("v_lshlrev_b32 %s, 4, %s" % (v(T), v(vL)))
    e("v_add_u32 %s, s41, %s" % (v(vA0), v(T)))
    e("s_sub_u32 s41, s40, 1"); e("s_lshl_b32 s41, s41, 10")
    e("s_cmp_eq_u32 %s, 0" % s(sMt)); e("s_cselect_b32 s41, 0x80000000, s41")
    e("s_cmp_gt_u32 %s, 2" % s(sWave)); e("s_cselect_b32 s41, 0x80000000, s41")
    e("v_add_u32 %s, s41, %s" % (v(vAH), v(T)))
    late = L[Lsave:]; del L[Lsave:]
    P.late_setup = lambda: L.extend(late)
    e("s_mul_i32 %s, %s, 3072" % (s(sBM), s(sWave)))
    e("s_mul_i32 %s, %s, 384" % (s(sBT), s(sWave))); e("s_add_u32 %s, %s, %d" % (s(sBT), s(sBT), TAILB))
    e("s_mul_i32 %s, %s, 1536" % (s(sBQ), s(sWave))); e("s_add_u32 %s, %s, %d" % (s(sBQ), s(sBQ), QKB))
    e("s_mov_b32 %s, 0" % s(sOffW1)); e("s_mov_b32 %s, 0" % s(sOffWQ)); e("s_mov_b32 %s, 0" % s(P.sOffA))
    e("s_waitcnt lgkmcnt(0)")
    srd(sX, 54, O_BYTES, XN_OFF); srd(sW1, 56, 576 * 9216); srd(sH, 54, H_BYTES, H_OFF); srd(sO, 54, O_BYTES, O_OFF)
    srd(sWQ, 54, WQ_BYTES, WQ_OFF)
    e("s_add_u32 s40, %s, 1" % s(sJ)); e("s_mul_i32 %s, s40, %d" % (s(sWQ + 2), 576 * 128))
    P.tiles = [(vMain + i, 4096, 8192) for i in range(8)] + [(vTail, 512, 1024)] + [(vQK + i, 2048, 4096) for i in range(4)]
    P.dmas = [(vD, sW1, sOffW1, sBM, 0, 64), (vD + 1, sW1, sOffW1, sBM, 1024, 64), (vD + 2, sW1, sOffW1, sBM, 2048, 64),
              (vDT, sW1, sOffW1, sBT, 0, 24), (vDQ, sWQ, sOffWQ, sBQ, 0, 64), (vDQ + 1, sWQ, sOffWQ, sBQ, 1024, 32)]
    P.dsteps = [(sOffW1, 96 * 9216), (sOffWQ, 96 * 128)]
    P.vA = [(vA0, 0), (vA0, 1024), (vAH, 0)]; P.vmpos = [0, 2, 4, 7, 10]; P.dd = [[0, 1], [2, 3], [4, 5]]
    def extra(q, kk, wr, tag):
        if q >= 10:
            e("s_cmp_eq_u32 %s, %d" % (s(sWave), q - 10)); e("s_cbranch_scc0 K1_X%s%d_%d" % (tag, q, kk))
            mfma(EX, wr, P.act(kk, 2))
            lab("K1_X%s%d_%d" % (tag, q, kk))
    P.extra = extra
    P.K = 18; P.groups = [[0, 1, 2, 3], [4, 5], [6, 7, 8], [9, 10], [11, 12]]
    def tail_pre(store):
        e("s_mul_i32 s40, %s, 9" % s(sJ)); e("s_and_b32 s41, %s, 1" % s(sJ))
        e("s_add_u32 s47, s40, s41"); e("s_lshl_b32 s47, s47, 16")
        e("s_xor_b32 s43, s41, 1"); e("s_lshl_b32 s43, s43, 3"); e("s_add_u32 s43, s43, s40"); e("s_lshr_b32 s43, s43, 1"); e("s_lshl_b32 s43, s43, 17")
        e("s_lshl_b32 s41, s41, 9"); e("s_add_u32 s43, s43, s41")
        for i in range(1, 4): e("s_add_u32 s%d, s47, %d" % (47 + i, i << 17))
        e("s_lshl_b32 s40, %s, 4" % s(sMt)); e("s_lshl_b32 s41, %s, 1" % s(sWave)); e("s_add_u32 s41, s41, s40"); e("s_lshl_b32 s41, s41, 10")
        e("v_and_b32 v253, 1, %s" % v(vG)); e("v_lshlrev_b32 v253, 10, v253"); e("v_lshl_add_u32 v253, %s, 4, v253" % v(vM))
        e("v_lshrrev_b32 v248, 1, %s" % v(vG)); e("v_lshl_add_u32 v253, v248, 8, v253"); e("v_add_u32 v253, s41, v253")
        if PF:
            srd(sW1, 58, 4608 * 1152)
            e("s_and_b32 s40, s2, 7"); e("s_mul_i32 s40, s40, %d" % (672 * 1152)); e("s_lshr_b32 s41, s2, 3"); e("s_mul_i32 s41, s41, %d" % (378 * 64))
            e("s_add_u32 s40, s40, s41")
            e("v_min_u32 v248, 377, %s" % v(vTid)); e("v_lshlrev_b32 v248, 6, v248")
            store("buffer_load_dword v249, v248, %s, s40 offen" % s(sW1, 4))
    def fin(g, store):
        g = [i for i in g if i <= 8]
        for i in g:
            d = acc(i, 0)
            for n in range(4): e("v_cvt_pk_bf16_f32 %s, %s, %s" % (v(d + n), v(d + 2 * n), v(d + 2 * n + 1)))
            for n in range(4): e("v_pk_max_i16 %s, %s, 0" % (v(d + n), v(d + n)))
        if g: nop(2)
        for i in g:
            d = acc(i, 0)
            e("v_permlane16_swap_b32 %s, %s" % (v(d), v(d + 2))); e("v_permlane16_swap_b32 %s, %s" % (v(d + 1), v(d + 3)))
        if g: nop(2)
        for i in g:
            store("buffer_store_dwordx4 %s, v253, %s, %s offen offset:%d%s" % (v(acc(i, 0), 4), s(sH, 4), "s43" if i == 8 else s(47 + (i >> 1)), (i & 1) * 512, HSC))
    P.tail_pre = tail_pre; P.fin = fin
    next(mainloop(P))
    e("s_waitcnt vmcnt(%d)" % P.after(P.S(6))); e("s_barrier")
    stamp(4)
    sFl = 20; sKs = 51
    def flag(soff, off):
        e("s_mov_b64 exec, 1")
        e("buffer_store_dword v251, v250, %s, %s offen offset:%d sc1" % (s(sFl, 4), soff, off))
        e("s_mov_b64 exec, -1")
    def poll(name, x4, oflag):
        R = (244, 240, 236)
        def ld(r):
            if x4: e("buffer_load_dwordx4 v[%d:%d], v249, %s, s47 offen sc1" % (r, r + 3, s(sFl, 4)))
            else: e("buffer_load_dword v%d, v250, %s, s47 offen sc1" % (r, s(sFl, 4)))
        e("s_mov_b32 s42, 0")
        ld(R[0])
        if oflag:
            e("s_waitcnt vmcnt(1)"); flag("s49", 0)
            e("v_mov_b32 v%d, 0" % R[1])
        elif PP: e("s_sleep %d" % SLP); ld(R[1])
        lab(name)
        for i in range(3):
            c = R[i]
            if PP: e("s_sleep %d" % SLP); ld(R[(i + 2) % 3]); e("s_waitcnt vmcnt(2)")
            else: e("s_waitcnt vmcnt(%d)" % (1 if oflag else 0))
            if x4: e("v_min_u32 v%d, v%d, v%d" % (c, c, c + 1)); e("v_min3_u32 v%d, v%d, v%d, v%d" % (c, c, c + 2, c + 3))
            e("v_cmp_eq_u32 vcc, 1, v%d" % c); e("s_nop 3")
            e("s_and_b64 s[40:41], vcc, s[2:3]"); e("s_cmp_eq_u64 s[40:41], s[2:3]"); e("s_cbranch_scc1 %sX" % name)
            if not PP:
                e("s_sleep %d" % SLP); ld(R[(i + 1) % 3])
                if oflag: e("s_waitcnt vmcnt(0)")
        e("s_add_u32 s42, s42, 1"); e("s_cmp_lt_u32 s42, 20000"); e("s_cbranch_scc1 %s" % name)
        lab(name + "X")
    QB, KB, VB = 0, 20480, 20480 + 21760
    e("s_lshl_b32 s44, %s, 5" % s(sWave))
    e("v_add_u32 %s, s44, %s" % (v(T + 9), v(vM)))
    e("v_mul_u32_u24 %s, 80, %s" % (v(T + 9), v(T + 9)))
    e("v_lshl_add_u32 %s, %s, 4, %s" % (v(T + 8), v(vG), v(T + 9)))
    e("v_mul_u32_u24 %s, %d, %s" % (v(T + 10), VB + 1280 - QB, v(vG)))
    e("v_add_u32 %s, %s, %s" % (v(T + 10), v(T + 10), v(T + 9)))
    for u in range(2):
        e("ds_write_b128 %s, %s offset:%d" % (v(T + 8), v(acc(9, u), 4), QB + u * 1280))
        e("ds_write_b128 %s, %s offset:%d" % (v(T + 8), v(acc(10, u), 4), KB + 1280 + u * 1280))
        e("ds_write_b128 %s, %s offset:%d" % (v(T + 8), v(acc(11, u), 4), VB + 1280 + u * 1280))
        e("s_mov_b32 exec_hi, 0")
        e("ds_write_b64 %s, %s offset:%d" % (v(T + 10), v(acc(12, u), 2), QB + 64 + u * 1280))
        e("s_mov_b32 exec_lo, 0xffff")
        e("ds_write_b64 %s, %s offset:%d" % (v(T + 9), v(acc(12, u) + 2, 2), KB + 1280 + 64 + u * 1280))
        e("s_mov_b64 exec, -1")
    e("v_mul_u32_u24 %s, 80, %s" % (v(T + 9), v(vM)))
    e("v_lshl_add_u32 %s, %s, 4, %s" % (v(T + 10), v(vG), v(T + 9)))
    e("s_cmp_gt_u32 %s, 1" % s(sWave)); e("s_cbranch_scc1 K1_H2")
    e("s_mul_i32 s44, %s, %d" % (s(sWave), VB - KB))
    e("v_add_u32 %s, s44, %s" % (v(T + 10), v(T + 10)))
    e("ds_write_b128 %s, %s offset:%d" % (v(T + 10), v(EX, 4), KB))
    e("s_branch K1_HD")
    lab("K1_H2")
    e("s_cmp_eq_u32 %s, 2" % s(sWave)); e("s_cbranch_scc0 K1_HD")
    e("s_mov_b64 exec, 0xffff")
    e("ds_write_b64 %s, %s offset:%d" % (v(T + 9), v(EX + 2, 2), KB + 64))
    e("s_mov_b32 exec_lo, 0xffff0000")
    e("ds_write_b64 %s, %s offset:%d" % (v(T + 9), v(EX, 2), VB + 64))
    e("s_mov_b64 exec, -1")
    lab("K1_HD")
    stamp(5)
    e("s_waitcnt lgkmcnt(0)"); e("s_barrier")
    stamp(6)
    Qr = 0; Kr = 12; LG = 112; Or = 124; vB, vBt, vRow = T + 12, T + 13, T + 14
    e("v_lshrrev_b32 %s, 5, %s" % (v(T + 15), v(vTid)))
    e("v_lshl_add_u32 %s, %s, 4, %s" % (v(vRow), v(T + 15), v(vM)))
    e("v_and_b32 %s, 1, %s" % (v(T), v(vG)))
    e("v_mul_u32_u24 %s, 80, %s" % (v(T + 1), v(vRow)))
    e("v_lshl_add_u32 %s, %s, 5, %s" % (v(vB), v(T), v(T + 1)))
    e("v_lshl_add_u32 %s, %s, 2, %s" % (v(vBt), v(T), v(T + 1)))
    def rec(dst, base_off):
        e("ds_read_b128 %s, %s offset:%d" % (v(dst, 4), v(vB), base_off))
        e("ds_read_b128 %s, %s offset:%d" % (v(dst + 4, 4), v(vB), base_off + 16))
        e("ds_read_b32 %s, %s offset:%d" % (v(dst + 8), v(vBt), base_off + 64))
    rec(Qr, QB)
    for w in range(4): rec(Kr + w * 12, KB + 1280 - 160 * w)
    srd(sFl, 54, 24576, FLAG_OFF)
    e("v_lshlrev_b32 v250, 2, %s" % v(vL)); e("v_mov_b32 v251, 1")
    e("s_lshl_b32 s47, %s, 10" % s(sMt)); e("s_lshl_b32 s48, %s, 5" % s(sJ)); e("s_add_u32 s48, s48, s47")
    e("s_lshl_b32 s49, %s, 2" % s(sWave)); e("s_add_u32 s48, s48, s49"); e("s_add_u32 s49, s48, 8192")
    if HF: e("s_waitcnt vmcnt(0)"); flag("s48", 0)
    k2 = gen_k2(vL, vG, vM, vTid, None)
    next(k2)
    e("s_mov_b32 s50, s2")
    e("s_mul_i32 s40, %s, 14" % s(sKs)); e("s_add_u32 s41, s40, 16"); e("s_mul_i32 s40, s40, 21846"); e("s_lshr_b32 s40, s40, 16")
    e("s_mul_i32 s41, s41, 21846"); e("s_lshr_b32 s41, s41, 16"); e("s_min_u32 s41, s41, 32"); e("s_sub_u32 s41, s41, s40"); e("s_lshl_b32 s41, s41, 3")
    e("s_bfm_b64 s[2:3], s41, 0"); e("s_lshl_b32 s40, s40, 5")
    e("s_cmp_eq_u32 %s, 7" % s(sKs)); e("s_cselect_b32 s40, 8192, s40"); e("s_cselect_b64 s[2:3], -1, s[2:3]"); e("s_add_u32 s47, s47, s40")
    e("s_lshl_b32 s40, %s, 8" % s(sMt))
    e("v_add_u32 %s, s40, %s" % (v(vRow), v(vRow)))
    e("s_mov_b32 s41, 0x%08x" % f2u(18 ** -0.5 * 1.4426950408889634))
    e("v_mov_b32 %s, 0x%08x" % (v(T + 2), f2u(-1e9 * 1.4426950408889634)))
    for w in range(8):
        e("s_waitcnt lgkmcnt(%d)" % (9 if w < 5 else 9 - 3 * (w - 4)))
        kr = Kr + w * 12
        e("v_mul_f32 %s, %s, %s" % (v(LG + w), v(Qr), v(kr)))
        for d in range(1, 9): e("v_fmac_f32 %s, %s, %s" % (v(LG + w), v(Qr + d), v(kr + d)))
        if w < 4: rec(Kr + (w + 4) * 12, KB + 1280 - 160 * (w + 4))
    for w in range(5): rec(Kr + w * 12, VB + 1280 - 160 * w)
    for w in range(8): e("v_mov_b32 %s, %s" % (v(Or + w), v(LG + w)))
    nop(2)
    for w in range(8): e("v_permlane16_swap_b32 %s, %s" % (v(LG + w), v(Or + w)))
    nop(2)
    for w in range(8):
        e("v_add_f32 %s, %s, %s" % (v(LG + w), v(LG + w), v(Or + w)))
        e("v_cmp_le_u32 vcc, %d, %s" % (2 * w, v(vRow)))
        e("v_mul_f32 %s, s41, %s" % (v(LG + w), v(LG + w)))
        nop(1)
        e("v_cndmask_b32 %s, %s, %s, vcc" % (v(LG + w), v(T + 2), v(LG + w)))
    e("v_max3_f32 %s, %s, %s, %s" % (v(T + 3), v(LG), v(LG + 1), v(LG + 2)))
    e("v_max3_f32 %s, %s, %s, %s" % (v(T + 3), v(T + 3), v(LG + 3), v(LG + 4)))
    e("v_max3_f32 %s, %s, %s, %s" % (v(T + 3), v(T + 3), v(LG + 5), v(LG + 6)))
    e("v_max_f32 %s, %s, %s" % (v(T + 3), v(T + 3), v(LG + 7)))
    for w in range(8):
        e("v_sub_f32 %s, %s, %s" % (v(LG + w), v(LG + w), v(T + 3)))
        e("v_exp_f32 %s, %s" % (v(LG + w), v(LG + w)))
    nop(1)
    e("v_add_f32 %s, %s, %s" % (v(T + 4), v(LG), v(LG + 1)))
    for w in range(2, 8): e("v_add_f32 %s, %s, %s" % (v(T + 4), v(T + 4), v(LG + w)))
    e("v_rcp_f32 %s, %s" % (v(T + 4), v(T + 4)))
    if not HF: e("s_waitcnt vmcnt(12)"); flag("s48", 0)
    for w in range(8):
        e("s_waitcnt lgkmcnt(%d)" % (3 * (min(w + 4, 7) - w)))
        kr = Kr + w * 12
        for d in range(9):
            if w == 0: e("v_mul_f32 %s, %s, %s" % (v(Or + d), v(LG), v(kr + d)))
            else: e("v_fmac_f32 %s, %s, %s" % (v(Or + d), v(LG + w), v(kr + d)))
        if w + 5 < 8: rec(Kr + (w + 5) * 12, VB + 1280 - 160 * (w + 5))
    for d in range(9): e("v_mul_f32 %s, %s, %s" % (v(Or + d), v(T + 4), v(Or + d)))
    for d in range(4): e("v_cvt_pk_bf16_f32 %s, %s, %s" % (v(Qr + d), v(Or + 2 * d), v(Or + 2 * d + 1)))
    e("v_mov_b32 %s, %s" % (v(Or + 9), v(Or + 8)))
    nop(2)
    e("v_permlane16_swap_b32 %s, %s" % (v(Or + 8), v(Or + 9)))
    nop(2)
    e("v_cvt_pk_bf16_f32 %s, %s, %s" % (v(Qr + 4), v(Or + 8), v(Or + 9)))
    e("s_lshl_b32 s40, %s, 4" % s(sMt))
    e("v_add_u32 %s, s40, %s" % (v(T + 5), v(T + 15)))
    e("v_lshlrev_b32 %s, 10, %s" % (v(T + 5), v(T + 5)))
    e("v_lshl_add_u32 %s, %s, 4, %s" % (v(T + 5), v(vM), v(T + 5)))
    e("v_lshl_add_u32 %s, %s, 8, %s" % (v(T + 6), v(T), v(T + 5)))
    e("s_lshr_b32 s42, %s, 1" % s(sJ)); e("s_lshl_b32 s42, s42, 17"); e("s_and_b32 s41, %s, 1" % s(sJ)); e("s_lshl_b32 s41, s41, 9"); e("s_add_u32 s42, s42, s41")
    e("s_bfe_u32 s43, %s, 0x20002" % s(sJ)); e("s_lshl_b32 s43, s43, 8"); e("s_and_b32 s41, %s, 3" % s(sJ)); e("s_lshl_b32 s41, s41, 2")
    e("s_add_u32 s43, s43, s41"); e("s_lshr_b32 s41, %s, 4" % s(sJ)); e("s_add_u32 s41, s41, 16"); e("s_lshl_b32 s41, s41, 17"); e("s_add_u32 s43, s43, s41")
    e("buffer_store_dwordx4 %s, %s, %s, s42 offen sc1" % (v(Qr, 4), v(T + 6), s(sO, 4)))
    e("s_mov_b32 exec_lo, 0xffff"); e("s_mov_b32 exec_hi, 0xffff")
    e("buffer_store_dword %s, %s, %s, s43 offen sc1" % (v(Qr + 4), v(T + 5), s(sO, 4)))
    e("s_mov_b64 exec, -1")
    stamp(7)
    e("v_lshlrev_b32 v249, 4, %s" % v(vL))
    e("s_cmp_lg_u32 %s, %d" % (s(sWave), PW1)); e("s_cbranch_scc1 K1_NPL"); e("s_cmp_eq_u32 %s, 7" % s(sKs)); e("s_cbranch_scc1 K1_NPL")
    poll("K1_PH", 0, 1)
    e("s_branch K1_POX")
    lab("K1_NPL")
    e("s_waitcnt vmcnt(0)")
    flag("s49", 0)
    e("s_cmp_lg_u32 %s, %d" % (s(sWave), PW1)); e("s_cbranch_scc1 K1_POX")
    poll("K1_PO", 1, 0)
    e("s_mov_b32 s2, s50")
    e("s_barrier")
    stamp(8)
    SOFF[0] = 8
    next(k2)
    stamp_out(1, 16, 30)
    lab("K1_END")
    e("s_endpgm")
    lab("K1_LAST")

K2_STAGE = 96 * 288; K2_NS = 4; K2_LDS = K2_STAGE * K2_NS
OWN = 12288; QL = 24576; PW = int(os.environ.get('PW', '7'))
def reduce_vals(src, nd, F, order=tuple(range(8)), pre=None, mid=None):
    for k in order:
        if pre: pre(k)
        for r in range(nd):
            x = src(k, r)
            if k == order[0] or k == 7:
                o = F + (8 if k == 7 else 0) + 2 * r
                e("v_lshlrev_b32 %s, 16, %s" % (v(o), v(x))); e("v_and_b32 %s, s46, %s" % (v(o + 1), v(x)))
            else:
                tp = F + 16 + 2 * (r & 1)
                e("v_lshlrev_b32 %s, 16, %s" % (v(tp), v(x))); e("v_and_b32 %s, s46, %s" % (v(tp + 1), v(x)))
                e("v_pk_add_f32 %s, %s, %s" % (v(F + 2 * r, 2), v(F + 2 * r, 2), v(tp, 2)))
    if mid: mid()
    for r in range(2 * nd):
        e("v_mul_f32 %s, s45, %s" % (v(F + 16 + r), v(F + r)))
        e("v_exp_f32 %s, %s" % (v(F + 16 + r), v(F + 16 + r)))
        e("v_mul_f32 %s, %s, %s" % (v(F + r), v(F + r), v(F + 8 + r)))
        e("v_add_f32 %s, 1.0, %s" % (v(F + 16 + r), v(F + 16 + r)))
        e("v_rcp_f32 %s, %s" % (v(F + 16 + r), v(F + 16 + r)))
    nop(1)
    for r in range(2 * nd): e("v_mul_f32 %s, %s, %s" % (v(F + r), v(F + r), v(F + 16 + r)))
    for r in range(nd): e("v_cvt_pk_bf16_f32 %s, %s, %s" % (v(F + 24 + r), v(F + 2 * r), v(F + 2 * r + 1)))
def k2_tail(sP, sX, sFl, sWave, sKs, sMt, sNt, vL, vG, vM, vTid, T):
    sOut = 20; YS = 304
    srd(sX, 52, 2048 * 1152); srd(sOut, 60, 2048 * 1152); srd(sFl, 54, 8192, FLAG_OFF + 16384)
    e("s_lshl_b32 s40, %s, 3" % s(sMt)); e("s_add_u32 s40, s40, %s" % s(sKs))
    e("s_mul_i32 s41, s40, %d" % (32 * 1152)); e("s_mul_i32 s42, %s, 288" % s(sNt)); e("s_add_u32 s41, s41, s42")
    vXA, vYA, XR = 72, 74, 76
    for n in range(2):
        e("v_add_u32 %s, %d, %s" % (v(T + 1), 512 * n, v(vTid)))
        divc(T + 2, T + 3, T + 1, 18, 3641, 16)
        e("v_mul_u32_u24 %s, 1152, %s" % (v(T + 4), v(T + 2))); e("v_lshl_add_u32 %s, %s, 4, %s" % (v(T + 4), v(T + 3), v(T + 4)))
        e("v_add_u32 %s, s41, %s" % (v(vXA + n), v(T + 4)))
        e("v_mul_u32_u24 %s, %d, %s" % (v(T + 4), YS, v(T + 2))); e("v_lshl_add_u32 %s, %s, 4, %s" % (v(vYA + n), v(T + 3), v(T + 4)))
    e("s_cmp_eq_u32 %s, 0" % s(sWave)); e("s_cselect_b32 s47, 0, 0x40000000")
    e("buffer_load_dwordx4 %s, %s, %s, 0 offen" % (v(XR, 4), v(vXA), s(sX, 4)))
    e("buffer_load_dwordx4 %s, %s, %s, s47 offen" % (v(XR + 4, 4), v(vXA + 1), s(sX, 4)))
    e("s_mul_i32 s40, s40, 36"); e("s_mul_i32 s41, %s, 9" % s(sNt)); e("s_add_u32 s40, s40, s41")
    e("s_add_u32 s41, s40, %s" % s(sWave)); e("s_lshl_b32 s41, s41, 10"); e("s_add_u32 s40, s40, 8"); e("s_lshl_b32 s40, s40, 10")
    e("v_add_u32 %s, s41, %s" % (v(T + 1), v(T)))
    e("v_add_u32 %s, s40, %s" % (v(T + 2), v(T)))
    e("v_mul_u32_u24 %s, %d, %s" % (v(T + 3), YS, v(vM))); e("v_lshl_add_u32 %s, %s, 3, %s" % (v(T + 3), v(vG), v(T + 3)))
    e("s_lshr_b32 s40, %s, 1" % s(sWave)); e("s_mul_i32 s40, s40, %d" % (16 * YS)); e("s_and_b32 s41, %s, 1" % s(sWave)); e("s_lshl_b32 s41, s41, 2")
    e("s_add_u32 s40, s40, s41"); e("v_add_u32 %s, s40, %s" % (v(T + 4), v(T + 3)))
    e("s_lshl_b32 s40, %s, 5" % s(sWave)); e("v_add_u32 %s, s40, %s" % (v(T + 3), v(T + 3)))
    for k in range(8):
        e("s_mov_b32 s%d, %d" % (32 + k, k * SLAB)); e("s_cmp_eq_u32 %s, %d" % (s(sKs), k)); e("s_cmov_b32 s%d, 0x40000000" % (32 + k))
    e("s_mul_i32 s43, %s, %d" % (s(sWave), SLAB)); e("s_cmp_eq_u32 %s, %s" % (s(sWave), s(sKs))); e("s_cmov_b32 s43, 0x40000000"); e("s_cselect_b32 s44, -1, 0")
    e("s_cmp_eq_u32 %s, 7" % s(sKs)); e("s_cselect_b32 s49, -1, 0"); e("s_cselect_b32 s48, 0, -1")
    e("s_lshl_b32 s40, %s, 10" % s(sWave)); e("v_add_u32 %s, s40, %s" % (v(T + 10), v(T)))
    e("s_lshl_b32 s40, %s, 2" % s(sWave)); e("v_add_u32 %s, s40, %s" % (v(T + 11), v(T)))
    e("s_mov_b32 s45, 0x%08x" % f2u(-1.4426950408889634)); e("s_mov_b32 s46, 0xffff0000")
    e("s_lshr_b32 s40, s2, 3"); e("s_lshl_b32 s40, s40, 8")
    e("v_and_b32 %s, 7, %s" % (v(T + 5), v(vL))); e("v_lshlrev_b32 %s, 2, %s" % (v(T + 5), v(T + 5))); e("v_mov_b32 %s, 1" % v(T + 6))
    e("s_lshl_b32 s41, %s, 5" % s(sWave)); e("s_add_u32 s41, s41, s40"); e("s_lshl_b32 s42, %s, 2" % s(sKs)); e("s_add_u32 s41, s41, s42")
    e("s_lshl_b32 s42, %s, 5" % s(sKs)); e("s_add_u32 s40, s40, s42")
    e("s_waitcnt vmcnt(2)")
    stamp(5)
    e("s_mov_b64 exec, 1")
    e("buffer_store_dword %s, %s, %s, s41 offen sc1" % (v(T + 6), v(T + 5), s(sFl, 4)))
    e("s_mov_b64 exec, -1"); e("s_mov_b32 s42, 0"); e("s_mov_b32 s31, 0")
    e("s_cmp_lg_u32 %s, %d" % (s(sWave), PW)); e("s_cbranch_scc1 K2_SPIN")
    e("s_mov_b64 exec, 0xff")
    R = (T + 7, T + 14, T + 15)
    def ld(r): e("buffer_load_dword %s, %s, %s, s40 offen sc1" % (v(r), v(T + 5), s(sFl, 4)))
    if PP: ld(R[0]); e("s_sleep %d" % SLP); ld(R[1])
    lab("K2_POLL")
    e("s_add_u32 s42, s42, 1")
    for i in range(3):
        e("s_sleep %d" % SLP); ld(R[(i + 2) % 3])
        e("s_waitcnt vmcnt(%d)" % (2 if PP else 0))
        e("v_cmp_eq_u32 vcc, 1, %s" % v(R[i if PP else (i + 2) % 3])); e("s_nop 3")
        e("s_cmp_gt_u32 s42, 20000"); e("s_cselect_b32 s41, 0xff, vcc_lo")
        e("v_mov_b32 %s, s41" % v(T + 13)); e("ds_write_b32 %s, %s" % (v(T + 12), v(T + 13)))
        e("s_cmp_eq_u32 s41, 0xff"); e("s_cbranch_scc1 K2_POLLX")
    e("s_branch K2_POLL")
    lab("K2_POLLX")
    e("s_mov_b64 exec, -1"); e("s_mov_b32 s42, 0xff"); e("s_branch K2_ISSUE")
    lab("K2_SPIN")
    e("s_sleep 1")
    e("ds_read_b32 %s, %s" % (v(T + 13), v(T + 12))); e("s_waitcnt lgkmcnt(0)")
    e("v_readfirstlane_b32 s42, %s" % v(T + 13)); e("s_nop 3")
    e("s_cmp_eq_u32 s42, s31"); e("s_cbranch_scc1 K2_SPIN")
    lab("K2_ISSUE")
    e("s_andn2_b32 s41, s42, s31"); e("s_or_b32 s31, s31, s42")
    e("s_bitcmp1_b32 s41, %s" % s(sWave)); e("s_cbranch_scc0 K2_LT")
    e("buffer_load_dwordx4 v[120:123], %s, %s, s43 offen sc1" % (v(T + 2), s(sP, 4)))
    lab("K2_LT")
    for k in range(8):
        e("s_bitcmp1_b32 s41, %d" % k); e("s_cbranch_scc0 K2_L%d" % k)
        e("buffer_load_dwordx4 %s, %s, %s, s%d offen sc1" % (v(4 * k, 4), v(T + 1), s(sP, 4), 32 + k))
        lab("K2_L%d" % k)
    e("s_cmp_eq_u32 s31, 0xff"); e("s_cbranch_scc0 K2_SPIN")
    e("s_waitcnt lgkmcnt(0)"); e("s_barrier")
    stamp(6)
    e("ds_read_b128 v[116:119], %s offset:%d" % (v(T + 10), OWN))
    e("ds_read_b128 v[124:127], %s offset:%d" % (v(T), OWN + 8192))
    e("s_waitcnt vmcnt(0) lgkmcnt(0)")
    for r in range(4): e("v_and_or_b32 v%d, v%d, s44, v%d" % (120 + r, 124 + r, 120 + r))
    e("ds_write_b128 %s, v[120:123] offset:%d" % (v(T + 10), QL))
    for r in range(4): e("v_and_b32 v%d, s48, v%d" % (124 + r, 116 + r))
    def pre(k):
        if k == 7:
            for r in range(4): e("v_and_or_b32 v%d, v%d, s49, v%d" % (28 + r, 116 + r, 28 + r))
    def mid():
        stamp(1)
        e("s_waitcnt lgkmcnt(0)"); e("s_barrier")
        stamp(2)
        e("s_cmp_gt_u32 %s, 3" % s(sWave)); e("s_cbranch_scc1 K2_NOQ0")
        for k in range(8): e("ds_read_b32 %s, %s offset:%d" % (v(32 + k), v(T + 11), QL + k * 1024))
        lab("K2_NOQ0")
    reduce_vals(lambda k, r: (4 * k + r) if k < 8 else 124 + r, 4, 40, (8, 0, 1, 2, 3, 4, 5, 6, 7), pre, mid)
    e("ds_write_b64 %s, %s" % (v(T + 3), v(64, 2)))
    e("ds_write_b64 %s, %s offset:%d" % (v(T + 3), v(66, 2), 16 * YS))
    e("s_cmp_gt_u32 %s, 3" % s(sWave)); e("s_cbranch_scc1 K2_NOQ")
    e("s_waitcnt lgkmcnt(2)")
    reduce_vals(lambda k, r: 32 + k, 1, 88)
    e("ds_write_b32 %s, %s offset:256" % (v(T + 4), v(88 + 24)))
    lab("K2_NOQ")
    e("s_waitcnt lgkmcnt(0)"); e("s_barrier")
    stamp(3)
    def fin(n):
        e("ds_read_b128 %s, %s" % (v(0, 4), v(vYA + n)))
        e("s_waitcnt lgkmcnt(0)")
        for r in range(4):
            x = XR + 4 * n + r
            e("v_lshlrev_b32 v8, 16, %s" % v(r)); e("v_and_b32 v9, s46, %s" % v(r))
            e("v_lshlrev_b32 v10, 16, %s" % v(x)); e("v_and_b32 v11, s46, %s" % v(x))
            e("v_pk_add_f32 v[8:9], v[8:9], v[10:11]")
            e("v_cvt_pk_bf16_f32 %s, v8, v9" % v(12 + 4 * n + r))
        e("buffer_store_dwordx4 %s, %s, %s, 0 offen" % (v(12 + 4 * n, 4), v(vXA + n), s(sOut, 4)))
    fin(0)
    e("s_cmp_lg_u32 %s, 0" % s(sWave)); e("s_cbranch_scc1 K2_FIN")
    fin(1)
    lab("K2_FIN")
def gen_k2(vL, vG, vM, vTid, k0hook):
    P = Loop(); P.name = "K2"; P.STAGE = K2_STAGE; P.NS = K2_NS; P.D = 6; P.AR = K2_AR; P.RW = 9
    P.asc = " sc1"; P.early = 1; P.slot0 = 1; P.RB = K1_LDS - K2_LDS
    ACT = 72; WR = 144; vMain = 180; vTail = 188; vD = 189; vDT = 192; vA0, vA1 = 193, 194; T = 200
    acc = lambda i, u: (i * 2 + u) * 4
    P.acc = acc; P.act = lambda st, f: ACT + (st * 2 + f) * 4; P.WR = WR; P.nacc = 72
    sW, sA, sP = 8, 12, 16
    sWave, sKs, sMt, sNt = 28, 51, 30, 46
    P.sCnt, P.sDelta, P.sRd, P.sWr, P.sT, P.sOffA, P.sAct = 31, 32, 33, 34, 35, 36, sA
    sOffW, sBM, sBT = 37, 39, 45
    P.k0hook = k0hook; P.sKs = sKs
    TAILB = 96 * 256
    e("s_and_b32 %s, s2, 7" % s(sKs)); e("s_bfe_u32 %s, s2, 0x20003" % s(sNt))
    w_setup(vL, T, sWave, sNt, 1152, vD, vDT, vMain, vTail, TAILB, 1)
    Lsave = len(L)
    w_setup_rd(vL, T, vMain, vTail, TAILB)
    e("s_lshl_b32 s40, %s, 4" % s(sMt)); e("s_lshl_b32 s41, %s, 1" % s(sWave)); e("s_add_u32 s41, s41, s40")
    e("s_lshl_b32 s41, s41, 10")
    e("v_lshlrev_b32 %s, 4, %s" % (v(T), v(vL)))
    e("v_add_u32 %s, s41, %s" % (v(vA0), v(T)))
    late = L[Lsave:]; del L[Lsave:]
    P.late_setup = lambda: L.extend(late)
    e("s_mul_i32 %s, %s, 3072" % (s(sBM), s(sWave))); e("s_add_u32 %s, %s, %d" % (s(sBM), s(sBM), P.RB))
    e("s_mul_i32 %s, %s, 384" % (s(sBT), s(sWave))); e("s_add_u32 %s, %s, %d" % (s(sBT), s(sBT), TAILB + P.RB))
    srd(sP, 54, 8 * SLAB, P_OFF)
    e("s_cmp_eq_u32 %s, 7" % s(sKs)); e("s_cbranch_scc1 K2_SJOB")
    srd(sW, 58, 4608 * 1152); srd(sA, 54, H_BYTES, H_OFF)
    e("s_mul_i32 %s, %s, %d" % (s(sOffW), s(sKs), 21 * 32 * 1152)); e("s_mul_i32 %s, %s, %d" % (s(P.sOffA), s(sKs), 21 * 131072))
    e("s_add_u32 s40, %s, %d" % (s(sOffW), 7 * 96 * 1152)); e("s_min_u32 %s, s40, %s" % (s(sW + 2), s(sW + 2)))
    e("s_branch K2_GO")
    lab("K2_SJOB")
    srd(sW, 54, WO_BYTES, WO_OFF); srd(sA, 54, O_BYTES, O_OFF)
    e("s_mov_b32 %s, 0x%x" % (s(sOffW), (1 << 32) - 96 * 1152)); e("s_mov_b32 %s, 0" % s(P.sOffA))
    lab("K2_GO")
    P.tiles = [(vMain + i, 4096, 8192) for i in range(8)] + [(vTail, 512, 1024)]
    P.dmas = [(vD, sW, sOffW, sBM, 0, 64), (vDT, sW, sOffW, sBT, 0, 24), (vD + 1, sW, sOffW, sBM, 1024, 64), (vD + 2, sW, sOffW, sBM, 2048, 64)]
    P.dsteps = [(sOffW, 96 * 1152)]
    P.vA = [(vA0, 0), (vA0, 1024)]; P.vmpos = [0, 2, 4, 6]; P.dd = [[0, 1], [2], [3]]
    P.extra = lambda q, kk, wr, tag: None
    P.K = 21; P.groups = [[0, 1, 2], [3, 4], [5, 6], [7, 8]]
    def tail_pre(store):
        e("s_lshl_b32 s40, %s, 3" % s(sMt)); e("s_add_u32 s40, s40, %s" % s(sWave)); e("s_mul_i32 s40, s40, 36")
        e("s_mul_i32 s41, %s, 9" % s(sNt)); e("s_add_u32 s40, s40, s41"); e("s_lshl_b32 s40, s40, 10")
        e("s_mul_i32 s41, %s, %d" % (s(sKs), SLAB)); e("s_add_u32 s40, s40, s41")
        e("s_and_b32 s41, %s, 1" % s(sNt)); e("s_lshl_b32 s42, s41, 10"); e("s_add_u32 s42, s42, s40"); e("s_add_u32 s43, s42, 4096")
        e("s_xor_b32 s41, s41, 1"); e("s_lshl_b32 s41, s41, 13"); e("s_add_u32 s41, s41, s40")
        e("v_lshlrev_b32 %s, 4, %s" % (v(T), v(vL)))
        e("v_mov_b32 %s, 40960" % v(T + 12)); e("v_mov_b32 %s, 0" % v(T + 13)); e("ds_write_b32 %s, %s" % (v(T + 12), v(T + 13)))
        e("s_sub_u32 s44, s42, s40"); e("v_add_u32 %s, s44, %s" % (v(T + 8), v(T)))
        e("s_sub_u32 s44, s41, s40"); e("v_add_u32 %s, s44, %s" % (v(T + 9), v(T)))
        e("s_cmp_eq_u32 %s, %s" % (s(sWave), s(sKs)))
        for x in (41, 42, 43): e("s_cmov_b32 s%d, 0x40000000" % x)
    def fin(g, store):
        for i in g:
            a0 = acc(i, 0)
            for r in range(4): e("v_cvt_pk_bf16_f32 %s, %s, %s" % (v(a0 + r), v(a0 + 2 * r), v(a0 + 2 * r + 1)))
            store("buffer_store_dwordx4 %s, %s, %s, %s offen offset:%d" % (v(a0, 4), v(T), s(sP, 4), ("s42", "s43", "s41")[i >> 2], (i & 3) * 1024) + (" sc1" if FUSE3 else PSC))
        e("s_cmp_lg_u32 %s, %s" % (s(sWave), s(sKs))); e("s_cbranch_scc1 K2_OWN%d" % g[0])
        for i in g: e("ds_write_b128 %s, %s offset:%d" % (v(T + 8 + (i >> 3)), v(acc(i, 0), 4), OWN + (i & 7) * 1024))
        lab("K2_OWN%d" % g[0])
    P.tail_pre = tail_pre; P.fin = fin
    ml = mainloop(P)
    next(ml)
    yield
    next(ml)
    stamp(4)
    k2_tail(sP, sW, sA, sWave, sKs, sMt, sNt, vL, vG, vM, vTid, T)
    yield

def gen_k3():
    sX, sP, sOut = 8, 12, 16
    kstart("k3_kernel")
    e("s_cmp_ge_u32 s2, 192"); e("s_cbranch_scc1 K3_END"); stamp_init()
    e("s_load_dwordx2 s[48:49], s[0:1], 0"); e("s_load_dwordx2 s[50:51], s[0:1], 48"); e("s_load_dwordx2 s[54:55], s[0:1], 64")
    e("v_and_b32 v1, 63, v0"); e("v_lshrrev_b32 v2, 6, v0")
    e("s_mul_i32 s40, s2, 12288")
    e("v_mul_u32_u24 v5, 3072, v2"); e("v_lshl_add_u32 v5, v1, 4, v5"); e("v_add_u32 v5, s40, v5")
    e("v_and_b32 v6, 15, v1"); e("v_mul_u32_u24 v6, 400, v6"); e("v_mul_u32_u24 v7, 96, v2"); e("v_lshrrev_b32 v8, 4, v1")
    e("v_lshl_add_u32 v7, v8, 3, v7"); e("v_add_u32 v6, v6, v7")
    e("s_mul_hi_u32 s41, s2, 1431655766"); e("s_mul_i32 s42, s41, 3"); e("s_sub_u32 s42, s2, s42")
    e("s_mul_i32 s41, s41, %d" % (32 * 1152)); e("s_mul_i32 s42, s42, 384"); e("s_add_u32 s41, s41, s42")
    for n in range(3):
        e("v_add_u32 v9, %d, v0" % (256 * n))
        divc(10, 11, 9, 24, 2731, 16)
        e("v_mul_u32_u24 v9, 1152, v10"); e("v_lshl_add_u32 v9, v11, 4, v9"); e("v_add_u32 %s, s41, v9" % v(12 + n))
        e("v_mul_u32_u24 v9, 400, v10"); e("v_lshl_add_u32 %s, v11, 4, v9" % v(15 + n))
    e("s_waitcnt lgkmcnt(0)")
    srd(sX, 48, 2048 * 1152); srd(sOut, 50, 2048 * 1152); srd(sP, 54, 8 * SLAB, P_OFF)
    for k in range(8): e("s_mov_b32 s%d, %d" % (32 + k, k * SLAB))
    B = 32
    for t in range(3):
        for k in range(8):
            e("buffer_load_dwordx4 %s, v5, %s, s%d offen offset:%d" % (v(B + (t * 8 + k) * 4, 4), s(sP, 4), 32 + k, t * 1024))
    XR = 128
    for n in range(3): e("buffer_load_dwordx4 %s, %s, %s, 0 offen" % (v(XR + 4 * n, 4), v(12 + n), s(sX, 4)))
    e("s_mov_b32 s45, 0x%08x" % f2u(-1.4426950408889634)); e("s_mov_b32 s46, 0xffff0000")
    F = 140
    for t in range(3):
        b = B + t * 32
        for k in range(8):
            e("s_waitcnt vmcnt(%d)" % (26 - (t * 8 + k)))
            for r in range(4):
                src = b + k * 4 + r
                if k == 0:
                    e("v_lshlrev_b32 %s, 16, %s" % (v(F + 2 * r), v(src))); e("v_and_b32 %s, s46, %s" % (v(F + 2 * r + 1), v(src)))
                elif k < 7:
                    e("v_lshlrev_b32 v20, 16, %s" % v(src)); e("v_and_b32 v21, s46, %s" % v(src))
                    e("v_add_f32 %s, %s, v20" % (v(F + 2 * r), v(F + 2 * r))); e("v_add_f32 %s, %s, v21" % (v(F + 2 * r + 1), v(F + 2 * r + 1)))
                else:
                    e("v_lshlrev_b32 %s, 16, %s" % (v(F + 8 + 2 * r), v(src))); e("v_and_b32 %s, s46, %s" % (v(F + 8 + 2 * r + 1), v(src)))
        for r in range(8):
            e("v_mul_f32 %s, s45, %s" % (v(F + 16 + r), v(F + r)))
            e("v_exp_f32 %s, %s" % (v(F + 16 + r), v(F + 16 + r)))
            e("v_mul_f32 %s, %s, %s" % (v(F + r), v(F + r), v(F + 8 + r)))
            e("v_add_f32 %s, 1.0, %s" % (v(F + 16 + r), v(F + 16 + r)))
            e("v_rcp_f32 %s, %s" % (v(F + 16 + r), v(F + 16 + r)))
        nop(1)
        for r in range(8): e("v_mul_f32 %s, %s, %s" % (v(F + r), v(F + r), v(F + 16 + r)))
        for r in range(4): e("v_cvt_pk_bf16_f32 %s, %s, %s" % (v(b + r), v(F + 2 * r), v(F + 2 * r + 1)))
        e("ds_write_b64 v6, %s offset:%d" % (v(b, 2), t * 32))
        e("ds_write_b64 v6, %s offset:%d" % (v(b + 2, 2), t * 32 + 6400))
    e("s_waitcnt lgkmcnt(0)"); e("s_barrier")
    for n in range(3): e("ds_read_b128 %s, %s" % (v(B + 4 * n, 4), v(15 + n)))
    e("s_waitcnt vmcnt(0)")
    for n in range(3):
        e("s_waitcnt lgkmcnt(%d)" % (2 - n))
        for r in range(4):
            p = B + 4 * n + r; x = XR + 4 * n + r
            e("v_lshlrev_b32 v20, 16, %s" % v(p)); e("v_and_b32 v21, s46, %s" % v(p))
            e("v_lshlrev_b32 v22, 16, %s" % v(x)); e("v_and_b32 v23, s46, %s" % v(x))
            e("v_add_f32 v20, v20, v22"); e("v_add_f32 v21, v21, v23")
            e("v_cvt_pk_bf16_f32 %s, v20, v21" % v(p))
        e("buffer_store_dwordx4 %s, %s, %s, 0 offen" % (v(B + 4 * n, 4), v(12 + n), s(sOut, 4)))
    stamp_out(3, 2, 2)
    lab("K3_END")
    e("s_endpgm")

def kd(name, vg):
    return [".amdhsa_kernel %s" % name, "  .amdhsa_next_free_vgpr %d" % vg, "  .amdhsa_next_free_sgpr %d" % (96 if INSTR else 64),
            "  .amdhsa_accum_offset %d" % ((vg + 3) // 4 * 4), "  .amdhsa_group_segment_fixed_size 0", "  .amdhsa_kernarg_size 72",
            "  .amdhsa_user_sgpr_count 2", "  .amdhsa_user_sgpr_kernarg_segment_ptr 1",
            "  .amdhsa_system_sgpr_workgroup_id_x 1", "  .amdhsa_float_denorm_mode_32 3", ".end_amdhsa_kernel"]
hdr = ["; generated: LN+repack | QKV/FFN1+attention | FFN2 split-K + wo | reduce+epilogue",
       "; @launch kernel=k0_kernel grid=(256,1,1) block=(256,1,1) lds=0",
       "; @launch kernel=k1_kernel grid=(256,1,1) block=(512,1,1) lds=%d" % K1_LDS,
       ] + ([] if FUSE3 else ["; @launch kernel=k3_kernel grid=(192,1,1) block=(256,1,1) lds=12800"]) + [
       '.amdgcn_target "amdgcn-amd-amdhsa--gfx950"', ".text"]
gen_k0(); gen_k1()
tail = ['.section .rodata,"a"']
for n, vg in (("k0_kernel", 80), ("k1_kernel", 256), ("k2_kernel", 216), ("k3_kernel", 168))[:2]:
    tail += [".p2align 6"] + kd(n, vg)
open(sys.argv[1] if len(sys.argv) > 1 else OUT, "w").write("\n".join(hdr + L + tail) + "\n")
print("ok", len(L))
```

```python
import sys
NAME = "recurrent_scan__sliding_local_dilated__dense_activation_relu__prompt"
OUT = "cdna_kernels/%s.s" % NAME

import struct
def f2u(x): return struct.unpack("<I", struct.pack("<f", x))[0]
H_OFF = 0
H_BYTES = 128 * 144 * 1024
O_OFF = H_BYTES
O_BYTES = 2048 * 1152
XN_OFF = O_OFF + O_BYTES
WQ_OFF = XN_OFF + O_BYTES
WQ_BYTES = 32 * 576 * 128
WO_OFF = WQ_OFF + WQ_BYTES
WO_BYTES = 576 * 1152
P_OFF = WO_OFF + WO_BYTES
SLAB = 64 * 36 * 1024
L = []
def e(s): L.append("    " + s)
def lab(s): L.append(s + ":")
def v(i, n=1): return "v%d" % i if n == 1 else "v[%d:%d]" % (i, i + n - 1)
def s(i, n=1): return "s%d" % i if n == 1 else "s[%d:%d]" % (i, i + n - 1)
def nop(n): e("s_nop %d" % (n - 1))
def srd(d, lo, nbytes, add=0):
    if add:
        e("s_add_u32 %s, %s, 0x%x" % (s(d), s(lo), add))
        e("s_addc_u32 %s, %s, 0" % (s(d + 1), s(lo + 1)))
    else:
        e("s_mov_b32 %s, %s" % (s(d), s(lo)))
        e("s_mov_b32 %s, %s" % (s(d + 1), s(lo + 1)))
    e("s_mov_b32 %s, 0x%x" % (s(d + 2), nbytes))
    e("s_mov_b32 %s, 0x00020000" % s(d + 3))
def mfma(d, a, b): e("v_mfma_f32_16x16x32_bf16 %s, %s, %s, %s" % (v(d, 4), v(a, 4), v(b, 4), v(d, 4)))
def kstart(name):
    L.append(".globl %s" % name); L.append(".p2align 8"); L.append(".type %s,@function" % name); lab(name)
def perm_pi(dst, src, t0, t1):
    e("v_and_b32 %s, 0x63, %s" % (v(dst), v(src)))
    e("v_bfe_u32 %s, %s, 2, 2" % (v(t0), v(src)))
    e("v_lshl_add_u32 %s, %s, 3, %s" % (v(dst), v(t0), v(dst)))
    e("v_bfe_u32 %s, %s, 4, 1" % (v(t1), v(src)))
    e("v_lshl_add_u32 %s, %s, 2, %s" % (v(dst), v(t1), v(dst)))
def divc(q, r, x, c, magic, sh):
    e("v_mul_u32_u24 %s, %d, %s" % (v(q), magic, v(x)))
    e("v_lshrrev_b32 %s, %d, %s" % (v(q), sh, v(q)))
    e("v_mul_u32_u24 %s, %d, %s" % (v(r), c, v(q)))
    e("v_sub_u32 %s, %s, %s" % (v(r), v(x), v(r)))
def bf16r(d, src):
    e("v_cvt_pk_bf16_f32 %s, %s, %s" % (v(d), v(src), v(src)))
    e("v_and_b32 %s, 0xffff0000, %s" % (v(d), v(d)))
def xreduce(a, t):
    for p in ("v_permlane32_swap_b32", "v_permlane16_swap_b32"):
        e("v_mov_b32 %s, %s" % (v(t), v(a)))
        nop(2)
        e("%s %s, %s" % (p, v(a), v(t)))
        nop(2)
        e("v_add_f32 %s, %s, %s" % (v(a), v(a), v(t)))


import os
INSTR = int(os.environ.get("INSTR", "0"))
DBG_OFF = 60 << 20
SOFF = [0]
def stamp(i):
    if not INSTR: return
    i += SOFF[0]
    e("s_memrealtime s[62:63]"); e("s_waitcnt lgkmcnt(0)"); e("s_mov_b32 s%d, s62" % (64 + i))
    if INSTR == 2 and i in (2, 3):
        e("s_memtime s[62:63]"); e("s_waitcnt lgkmcnt(0)"); e("s_mov_b32 s%d, s62" % (64 + i - 2))
def stamp_out(kern, n, vt):
    if not INSTR: return
    SOFF[0] = 0
    stamp(n - 1)
    srd(80, 54, 1 << 20, DBG_OFF + kern * 65536 * 4)
    e("s_lshl_b32 s62, s2, 3"); e("s_add_u32 s62, s62, s84"); e("s_lshl_b32 s62, s62, 6")
    e("s_mov_b64 exec, 1")
    e("v_mov_b32 %s, s62" % v(vt))
    for i in range(n):
        e("v_mov_b32 %s, s%d" % (v(vt + 1), 64 + i))
        e("buffer_store_dword %s, %s, s[80:83], 0 offen offset:%d" % (v(vt + 1), v(vt), 4 * i))
        e("s_nop 1")
def stamp_init():
    if not INSTR: return
    e("v_lshrrev_b32 v1, 6, v0"); e("s_nop 1"); e("v_readfirstlane_b32 s84, v1")
    stamp(0)

HSC = " sc1"
PSC = os.environ.get("PSC", "")
K2_AR = int(os.environ.get("K2_AR", "6"))
PF = int(os.environ.get("PF", "1"))
FUSE3 = int(os.environ.get("FUSE3", "1"))
FLAG_OFF = P_OFF + 8 * SLAB
POLLW = int(os.environ.get("POLLW", "4"))
SLP = int(os.environ.get("SLP", "8"))
PRIO = int(os.environ.get("PRIO", "1"))
CPF = int(os.environ.get("CPF", "5"))
RSH = int(os.environ.get("RSH", "8"))
SLR = int(os.environ.get("SLR", "8"))
class Loop:
    pass
def mainloop(P):
    NT = len(P.tiles); D = P.D; AR = P.AR; LA = AR - 1; RW = P.RW; U = AR // 3
    assert (NT * 3 * U) % RW == 0 and D < RW + 0 and AR % 3 == 0
    def wreg(gq): return P.WR + (gq % RW) * 4
    def wread(gq, q=None, kk=None):
        if q is None:
            gq %= NT * 3 * U
            q = gq % NT; kk = (gq // NT) % 3
        base, o16, okk = P.tiles[q]
        if kk == 0: e("v_add_u32 %s, %s, %s" % (v(base), s(P.sDelta), v(base)))
        e("ds_read_b64_tr_b16 %s, %s offset:%d" % (v(wreg(gq), 2), v(base), kk * okk))
        e("ds_read_b64_tr_b16 %s, %s offset:%d" % (v(wreg(gq) + 2, 2), v(base), kk * okk + o16))
    def nextdelta():
        e("s_add_u32 %s, %s, %d" % (s(P.sRd), s(P.sRd), P.STAGE))
        e("s_cmp_ge_u32 %s, %d" % (s(P.sRd), P.STAGE * P.NS))
        e("s_cselect_b32 %s, %d, 0" % (s(P.sDelta), P.STAGE * P.NS))
        e("s_sub_u32 %s, %s, %s" % (s(P.sRd), s(P.sRd), s(P.sDelta)))
        e("s_sub_u32 %s, %d, %s" % (s(P.sDelta), P.STAGE, s(P.sDelta)))
    def dma(n):
        vo, sr, so, sbase, ldsoff, lanes = P.dmas[n]
        e("s_add_u32 m0, %s, %s" % (s(P.sWr), s(sbase)))
        if lanes < 64:
            e("s_mov_b32 exec_lo, 0x%x" % ((1 << min(lanes, 32)) - 1)); e("s_mov_b32 exec_hi, 0")
            assert lanes <= 32
        else: e("s_nop 0")
        e("buffer_load_dwordx4 %s, %s, %s offen offset:%d lds" % (v(vo), s(sr, 4), s(so), ldsoff))
        if lanes < 64: e("s_mov_b64 exec, -1")
        if n == len(P.dmas) - 1:
            for so2, st in P.dsteps: e("s_add_u32 %s, %s, %d" % (s(so2), s(so2), st))
            e("s_add_u32 %s, %s, %d" % (s(P.sWr), s(P.sWr), P.STAGE))
            e("s_cmp_ge_u32 %s, %d" % (s(P.sWr), P.STAGE * P.NS))
            e("s_cselect_b32 %s, 0, %s" % (s(P.sWr), s(P.sWr)))
    def aload(st, f, off):
        e("buffer_load_dwordx4 %s, %s, %s, %s offen offset:%d" % (v(P.act(st, f), 4), v(P.vA[f][0]), s(P.sAct, 4), s(P.sOffA), P.vA[f][1]) + P.asc)
        if f == len(P.vA) - 1: e("s_add_u32 %s, %s, 0x20000" % (s(P.sOffA), s(P.sOffA)))
    NA = len(P.vA); ND = len(P.dmas); dd = P.dd
    cnt = [NA + len(dd[k]) for k in range(3)]
    assert AR == 6 and P.NS == 4
    Q = []
    def A(k): return [("a", k, f) for f in range(NA)]
    def S(st): return [("d", st, n) for n in range(ND)]
    def issue(op):
        Q.append(op)
        if op[0] == "a": aload(op[1] % AR, op[2], 0)
        else: dma(op[2])
    def after(ops): return len(Q) - 1 - max(Q.index(o) for o in ops)
    def wcount(kk): return len(dd[(kk - LA) % 3]) + sum(cnt[(kk - i) % 3] for i in range(1, LA))
    def kstep(k, vm, vpos, tag, emit=True, steady=False):
        ks = k % AR; kk = k % 3
        need = [o for o in A(k) + (S(k // 3 + 1) if kk == 2 else []) if o not in Done]
        w = after(need) if need else 63
        if steady:
            assert wcount(kk) <= w, (k, wcount(kk), w)
            w = wcount(kk)
        if not emit:
            Q.extend(vm); return
        e("s_waitcnt vmcnt(%d)" % w)
        if kk == 2: nextdelta()
        pos = {}
        for i, x in enumerate(vm): pos.setdefault(vpos[i], []).append(x)
        for q in range(NT):
            gq = ks * NT + q
            e("s_waitcnt lgkmcnt(%d)" % (2 * D - 2))
            if kk == 2 and q == NT - D: e("s_barrier")
            wread(gq + D)
            mfma(P.acc(q, 0), wreg(gq), P.act(ks, 0))
            mfma(P.acc(q, 1), wreg(gq), P.act(ks, 1))
            P.extra(q, ks, wreg(gq), tag)
            for x in pos.get(q, []): issue(x)
    def svm(k): return A(k + LA) + [("d", k // 3 + 3, n) for n in dd[k % 3]]
    Done = set()
    if PRIO and not P.early:
        e("s_cmp_lt_u32 s28, 4"); e("s_cbranch_scc1 %s_NP" % P.name); e("s_setprio 1"); lab(P.name + "_NP")
    e("s_mov_b32 %s, %d" % (s(P.sWr), P.STAGE * P.slot0)); e("s_mov_b32 %s, %d" % (s(P.sRd), P.STAGE * P.slot0))
    e("s_mov_b32 %s, %d" % (s(P.sDelta), P.RB + P.STAGE * P.slot0))
    if P.early:
        for op in S(0) + S(1) + S(2): issue(op)
        P.late_setup()
        yield
        Done = set(Q)
        ramp = [A(3) + A(4), A(5) + A(6), A(7) + S(3)]
        e("s_cmp_lg_u32 %s, 7" % s(P.sKs)); e("s_cbranch_scc1 %s_FULL" % P.name)
        Qs = list(Q)
        for op in A(3) + A(4) + A(5) + A(6) + A(7): issue(op)
        for op in S(3): issue(op)
        for base, _, _ in P.tiles: e("v_add_u32 %s, %s, %s" % (v(base), s(P.sDelta), v(base)))
        nextdelta()
        for q in range(D): wread(3 * NT + q)
        for r in range(P.nacc): e("v_mov_b32 %s, 0" % v(r))
        e("s_branch %s_JOIN" % P.name)
        Q[:] = Qs
        lab(P.name + "_FULL")
        for op in A(0) + A(1) + A(2): issue(op)
        for q in range(D): wread(q)
        for r in range(P.nacc): e("v_mov_b32 %s, 0" % v(r))
        stamp(1)
    else:
        for op in S(0): issue(op)
        P.late_setup()
        for op in A(0) + A(1): issue(op)
        for r in range(P.nacc): e("v_mov_b32 %s, 0" % v(r))
        stamp(1)
        e("s_waitcnt vmcnt(%d)" % after(S(0))); e("s_barrier")
        stamp(2)
        for q in range(D): wread(q)
        ramp = [A(2) + S(1) + A(3), A(4) + S(2) + A(5), A(6) + A(7) + S(3)]
    for k in range(3):
        kstep(k, ramp[k], list(range(NT)), "P")
        if k == 0 and P.early: stamp(2)
    if P.early:
        lab(P.name + "_JOIN")
        e("s_waitcnt vmcnt(%d)" % after(A(4))); Done = set(Q[:Q.index(A(4)[-1]) + 1])
    e("s_mov_b32 %s, %d" % (s(P.sCnt), P.K // 3 - 3))
    e("s_branch %s_MID" % P.name)
    Q0 = list(Q)
    for k in range(3, 12): kstep(k, svm(k), None, "", emit=False, steady=True)
    lab(P.name + "_LOOP")
    for u in range(U):
        if u == 1: lab(P.name + "_MID")
        for kk in range(3):
            k = 12 + u * 3 + kk
            kstep(k, svm(k), P.vmpos, "L", steady=True)
        e("s_sub_u32 %s, %s, 1" % (s(P.sCnt), s(P.sCnt)))
        e("s_cmp_lg_u32 %s, 0" % s(P.sCnt))
        if u == U - 1: e("s_cbranch_scc1 %s_LOOP" % P.name)
        else: e("s_cbranch_scc0 %s_DONE" % P.name)
    lab(P.name + "_DONE")
    stamp(3)
    K0 = P.K - 6
    Q[:] = Q0
    for k in range(3, K0): Q.extend(svm(k))
    seq = [(K0, q) for q in range(NT)]; fins = {}
    for g in P.groups:
        seq += [(k, q) for k in range(K0 + 1, P.K) for q in g]
        fins[len(seq) - 1 + 2] = g
    g0 = (K0 % AR) * NT; seen = set(); first = True
    vm = A(P.K - 1)
    def store(txt): Q.append(("s", len(Q))); e(txt)
    for i, (k, q) in enumerate(seq):
        if k not in seen:
            seen.add(k); e("s_waitcnt vmcnt(%d)" % after(A(k)))
        e("s_waitcnt lgkmcnt(%d)" % (2 * min(D - 1, len(seq) - 1 - i)))
        if i + D < len(seq):
            k2, q2 = seq[i + D]
            if k2 == P.K - 3 and first:
                first = False
                nextdelta(); e("s_waitcnt vmcnt(%d)" % after(S(P.K // 3 - 1))); e("s_barrier")
            wread(g0 + i + D, q2, k2 % 3)
        mfma(P.acc(q, 0), wreg(g0 + i), P.act(k % AR, 0))
        mfma(P.acc(q, 1), wreg(g0 + i), P.act(k % AR, 1))
        P.extra(q, k % AR, wreg(g0 + i), "T")
        if i < len(vm): issue(vm[i])
        if i == len(vm): P.tail_pre(store)
        if i in fins: P.fin(fins.pop(i), store)
    e("s_nop 7"); e("s_nop 7")
    for i in sorted(fins): P.fin(fins[i], store)
    P.after = after; P.S = S
    yield

def common_ids(vL, vG, vM, T, sWave):
    e("v_and_b32 %s, 63, v0" % v(vL))
    e("v_lshrrev_b32 %s, 6, v0" % v(T))
    e("v_lshrrev_b32 %s, 4, %s" % (v(vG), v(vL)))
    e("v_readfirstlane_b32 %s, %s" % (s(sWave), v(T)))
    e("v_and_b32 %s, 15, %s" % (v(vM), v(vL)))
def w_setup(vL, T, sWave, sCol, stride, vD, vDT, vMain, vTail, TAILB, perm=0):
    def pp():
        if perm:
            perm_pi(T + 2, T, T + 3, T + 3); e("v_mov_b32 %s, %s" % (v(T), v(T + 2)))
    e("s_mul_i32 s40, %s, 12" % s(sWave))
    e("s_mul_i32 s41, %s, 288" % s(sCol)); e("s_and_b32 s42, %s, 1" % s(sCol))
    e("s_lshl_b32 s43, s42, 5"); e("s_add_u32 s43, s43, s41")
    e("s_xor_b32 s42, s42, 1"); e("s_lshl_b32 s42, s42, 8"); e("s_add_u32 s42, s42, s41")
    e("s_mov_b32 s41, %d" % stride)
    for n in range(3):
        e("v_lshrrev_b32 %s, 4, %s" % (v(T), v(vL)))
        e("v_add3_u32 %s, %s, s40, %d" % (v(T), v(T), 4 * n))
        e("v_bfe_u32 %s, %s, 1, 3" % (v(T + 1), v(vL)))
        e("v_xor_b32 %s, %s, %s" % (v(T + 1), v(T + 1), v(T)))
        e("v_and_b32 %s, 7, %s" % (v(T + 1), v(T + 1)))
        pp()
        e("v_mul_lo_u32 %s, %s, s41" % (v(T), v(T)))
        e("v_lshl_add_u32 %s, %s, 5, %s" % (v(T), v(T + 1), v(T)))
        e("v_and_b32 %s, 1, %s" % (v(T + 1), v(vL)))
        e("v_lshl_add_u32 %s, %s, 4, %s" % (v(T), v(T + 1), v(T)))
        e("v_add_u32 %s, s43, %s" % (v(vD + n), v(T)))
        e("s_sub_u32 s43, s43, 1024")
    e("v_lshrrev_b32 %s, 1, %s" % (v(T), v(vL)))
    e("v_add_u32 %s, s40, %s" % (v(T), v(T)))
    pp()
    e("v_mul_lo_u32 %s, %s, s41" % (v(T), v(T)))
    e("v_lshl_add_u32 %s, %s, 4, %s" % (v(T), v(T + 1), v(T)))
    e("v_add_u32 %s, s42, %s" % (v(vDT), v(T)))
def w_setup_rd(vL, T, vMain, vTail, TAILB):
    e("v_lshrrev_b32 %s, 2, %s" % (v(T), v(vL)))
    e("v_and_b32 %s, 3, %s" % (v(T + 1), v(vL)))
    e("v_and_b32 %s, 7, %s" % (v(T + 2), v(T)))
    e("v_lshlrev_b32 %s, 8, %s" % (v(T + 3), v(T)))
    e("v_lshl_add_u32 %s, %s, 5, %s" % (v(T + 3), v(T + 2), v(T + 3)))
    e("v_lshl_add_u32 %s, %s, 3, %s" % (v(vMain), v(T + 1), v(T + 3)))
    for i in range(1, 8): e("v_xor_b32 %s, %d, %s" % (v(vMain + i), i << 5, v(vMain)))
    e("v_lshlrev_b32 %s, 3, %s" % (v(vTail), v(vL)))
    e("v_add_u32 %s, %d, %s" % (v(vTail), TAILB, v(vTail)))

def gen_k0():
    sX, sXN, sWQ, sWQP, sWO, sWOP = 8, 12, 16, 20, 24, 28
    kstart("k0_kernel")
    e("s_cmp_ge_u32 s2, 256"); e("s_cbranch_scc1 K0_END"); stamp_init()
    e("s_load_dwordx4 s[48:51], s[0:1], 0"); e("s_load_dwordx2 s[52:53], s[0:1], 16"); e("s_load_dwordx2 s[54:55], s[0:1], 64")
    e("s_load_dwordx2 s[34:35], s[0:1], 32")
    e("v_lshrrev_b32 v1, 7, v0"); e("v_and_b32 v2, 127, v0"); e("s_nop 0")
    e("v_readfirstlane_b32 s33, v1")
    e("s_waitcnt lgkmcnt(0)")
    srd(sX, 48, 2048 * 1152); srd(sWQ, 50, 576 * 3456); srd(sWO, 52, WO_BYTES)
    srd(sXN, 54, O_BYTES, XN_OFF); srd(sWQP, 54, WQ_BYTES, WQ_OFF); srd(sWOP, 54, WO_BYTES, WO_OFF)
    def pf():
        if not PF: return
        srd(36, 34, 576 * 9216)
        if CPF:
            n = len(L)
            e("s_getpc_b64 s[56:57]")
            lab("K0_PC%d" % n)
            e("v_lshrrev_b32 v72, 6, v0"); e("s_lshr_b32 s58, s2, 3"); e("s_lshl_b32 s58, s58, 2"); e("v_readfirstlane_b32 s59, v72")
            e("s_add_u32 s58, s58, s59"); e("s_mul_i32 s58, s58, %d" % (64 * CPF)); e("s_min_u32 s58, s58, K1_LAST-k1_kernel-%d" % (64 * CPF))
            e("s_add_u32 s58, s58, k1_kernel-K0_PC%d" % n)
            e("s_add_u32 s56, s56, s58"); e("s_addc_u32 s57, s57, 0")
            for i in range(CPF): e("s_load_dword s60, s[56:57], %d" % (64 * i))
        e("s_lshr_b32 s44, s2, 3"); e("s_mul_i32 s44, s44, %d" % (18 * 9216)); e("s_and_b32 s45, s2, 7"); e("s_mul_i32 s45, s45, 1152"); e("s_add_u32 s44, s44, s45")
        for n in range(2):
            e("v_add_u32 v72, %d, v0" % (256 * n)); e("v_min_u32 v72, 323, v72")
            divc(73, 74, 72, 18, 3641, 16)
            e("v_mul_u32_u24 v73, 9216, v73"); e("v_lshl_add_u32 v73, v74, 6, v73")
            e("buffer_load_dword v75, v73, s[36:39], s44 offen")
    e("s_cmp_eq_u32 s33, 0"); e("s_cbranch_scc0 K0_PACK")
    e("s_lshl_b32 s40, s2, 3")
    e("v_lshrrev_b32 v3, 4, v2"); e("v_add_u32 v3, s40, v3"); e("v_and_b32 v4, 15, v2")
    e("v_mul_u32_u24 v5, 1152, v3"); e("v_lshl_add_u32 v5, v4, 3, v5")
    for i in range(9): e("buffer_load_dwordx2 %s, v5, %s, 0 offen offset:%d" % (v(10 + 2 * i, 2), s(sX, 4), i * 128))
    pf()
    e("v_lshrrev_b32 v6, 4, v3"); e("v_lshrrev_b32 v7, 3, v4"); e("v_lshl_add_u32 v6, v7, 7, v6")
    e("v_lshlrev_b32 v6, 10, v6"); e("v_and_b32 v7, 3, v4"); e("v_lshl_add_u32 v6, v7, 8, v6")
    e("v_and_b32 v7, 15, v3"); e("v_lshl_add_u32 v6, v7, 4, v6"); e("v_bfe_u32 v7, v4, 2, 1"); e("v_lshl_add_u32 v6, v7, 3, v6")
    e("s_mov_b32 s40, 0x%08x" % f2u(1.0 / 576.0)); e("s_mov_b32 s41, 0x%08x" % f2u(1e-5))
    X = 32
    e("v_mov_b32 v8, 0")
    for i in range(18):
        if i % 2 == 0: e("s_waitcnt vmcnt(%d)" % (8 - i // 2 + 2 * PF))
        e("v_lshlrev_b32 %s, 16, %s" % (v(X + 2 * i), v(10 + i)))
        e("v_and_b32 %s, 0xffff0000, %s" % (v(X + 2 * i + 1), v(10 + i)))
        e("v_add_f32 v8, v8, %s" % v(X + 2 * i)); e("v_add_f32 v8, v8, %s" % v(X + 2 * i + 1))
    def rowred(r):
        for sh in (8, 4, 2, 1):
            nop(2); e("v_add_f32_dpp %s, %s, %s row_ror:%d row_mask:0xf bank_mask:0xf" % (v(r), v(r), v(r), sh))
    rowred(8)
    e("v_mul_f32 v8, s40, v8")
    bf16r(9, 8)
    e("v_mov_b32 v70, 0")
    for i in range(36):
        e("v_sub_f32 v71, %s, v8" % v(X + i)); e("v_fmac_f32 v70, v71, v71")
    rowred(70)
    e("v_mul_f32 v70, s40, v70"); bf16r(70, 70)
    e("v_add_f32 v70, s41, v70"); bf16r(70, 70)
    e("v_sqrt_f32 v70, v70"); nop(1); bf16r(70, 70)
    e("v_rcp_f32 v70, v70")
    for i in range(18):
        a = X + 2 * i
        e("v_sub_f32 %s, %s, v9" % (v(a), v(a))); e("v_sub_f32 %s, %s, v9" % (v(a + 1), v(a + 1)))
        e("v_cvt_pk_bf16_f32 %s, %s, %s" % (v(a), v(a), v(a + 1)))
        e("v_and_b32 %s, 0xffff0000, %s" % (v(a + 1), v(a))); e("v_lshlrev_b32 %s, 16, %s" % (v(a), v(a)))
        e("v_mul_f32 %s, %s, v70" % (v(a), v(a))); e("v_mul_f32 %s, %s, v70" % (v(a + 1), v(a + 1)))
        e("v_cvt_pk_bf16_f32 %s, %s, %s" % (v(10 + i), v(a), v(a + 1)))
        if i % 2 == 1:
            k = i // 2
            e("s_mov_b32 s42, %d" % (k * 262144))
            e("buffer_store_dwordx2 %s, v6, %s, s42 offen" % (v(10 + i - 1, 2), s(sXN, 4)))
    stamp_out(0, 2, 2)
    e("s_endpgm")
    lab("K0_PACK")
    e("s_lshr_b32 s40, s2, 3"); e("s_and_b32 s41, s2, 7"); e("s_mul_i32 s41, s41, 72"); e("s_mul_i32 s40, s40, 36")
    e("v_lshrrev_b32 v3, 5, v2"); e("v_add_u32 v3, s41, v3"); e("v_mul_u32_u24 v3, 3456, v3")
    e("v_and_b32 v4, 31, v2")
    e("v_lshrrev_b32 v5, 3, v4"); e("v_and_b32 v6, 7, v4")
    e("v_min_u32 v7, 2, v6")
    e("v_cmp_eq_u32 vcc, 3, v5"); nop(2)
    e("v_cndmask_b32 v5, v5, v7, vcc"); e("v_cndmask_b32 v6, v6, 8, vcc")
    e("v_mul_u32_u24 v5, 1152, v5"); e("v_lshl_add_u32 v5, v6, 2, v5"); e("v_add3_u32 v3, v3, v5, s40")
    e("s_mul_i32 s42, s2, 9216"); e("v_lshlrev_b32 v4, 2, v2"); e("v_add_u32 v4, s42, v4")
    for i in range(18):
        e("s_mov_b32 s43, %d" % (i * 4 * 3456))
        e("buffer_load_dword %s, v3, %s, s43 offen" % (v(10 + i), s(sWQ, 4)))
    e("s_mul_i32 s40, s2, 162")
    for n in range(2):
        b = 40 + n * 12
        e("v_add_u32 %s, s40, v2" % v(b))
        if n: e("v_add_u32 %s, 128, %s" % (v(b), v(b)))
        e("s_mov_b32 s41, 59652324"); e("v_mul_hi_u32 %s, %s, s41" % (v(b + 1), v(b)))
        e("v_mul_u32_u24 %s, 72, %s" % (v(b + 2), v(b + 1))); e("v_sub_u32 %s, %s, %s" % (v(b + 2), v(b), v(b + 2)))
        e("v_mov_b32 %s, %s" % (v(b + 4), v(b + 1)))
        e("v_lshrrev_b32 %s, 4, %s" % (v(b + 5), v(b + 4))); e("v_mul_u32_u24 %s, 18, %s" % (v(b + 5), v(b + 5)))
        e("v_and_b32 %s, 15, %s" % (v(b + 6), v(b + 4))); e("v_add_u32 %s, %s, %s" % (v(b + 5), v(b + 5), v(b + 6)))
        e("v_bfe_u32 %s, %s, 1, 5" % (v(b + 6), v(b + 4))); e("v_mul_u32_u24 %s, 18, %s" % (v(b + 6), v(b + 6)))
        e("v_and_b32 %s, 1, %s" % (v(b + 7), v(b + 4))); e("v_add3_u32 %s, %s, %s, 16" % (v(b + 6), v(b + 6), v(b + 7)))
        e("v_cmp_gt_u32 vcc, 512, %s" % v(b + 4)); nop(2)
        e("v_cndmask_b32 %s, %s, %s, vcc" % (v(b + 5), v(b + 6), v(b + 5)))
        e("v_mul_u32_u24 %s, 1152, %s" % (v(b + 5), v(b + 5))); e("v_lshl_add_u32 %s, %s, 4, %s" % (v(b + 5), v(b + 2), v(b + 5)))
        e("v_lshlrev_b32 %s, 4, %s" % (v(b), v(b)))
        if n:
            e("v_mov_b32 %s, 0x80000000" % v(b + 7)); e("v_cmp_gt_u32 vcc, 34, v2"); nop(2)
            e("v_cndmask_b32 %s, %s, %s, vcc" % (v(b), v(b + 7), v(b))); e("v_cndmask_b32 %s, %s, %s, vcc" % (v(b + 5), v(b + 7), v(b + 5)))
        e("buffer_load_dwordx4 %s, %s, %s, 0 offen" % (v(b + 8, 4), v(b + 5), s(sWO, 4)))
    pf()
    for i in range(18):
        e("s_waitcnt vmcnt(%d)" % (19 + 2 * PF))
        e("buffer_store_dword %s, v4, %s, 0 offen offset:%d" % (v(10 + i), s(sWQP, 4), 0) if i == 0 else
          "buffer_store_dword %s, v4, %s, s43 offen" % (v(10 + i), s(sWQP, 4)))
        e("s_mov_b32 s43, %d" % ((i + 1) * 512))
    e("s_waitcnt vmcnt(%d)" % (18 + 2 * PF))
    for n in range(2):
        b = 40 + n * 12
        e("buffer_store_dwordx4 %s, %s, %s, 0 offen" % (v(b + 8, 4), v(b), s(sWOP, 4)))
    if FUSE3:
        e("s_cmp_ge_u32 s2, %d" % (8 + (1 << (RSH - 3)))); e("s_cbranch_scc1 K0_NOFLAG")
        srd(36, 54, 16384 + (256 << RSH), FLAG_OFF)
        for r in range(4): e("v_mov_b32 v%d, 0" % (76 + r))
        e("v_lshlrev_b32 v72, 4, v2"); e("s_lshl_b32 s44, s2, 11")
        e("buffer_store_dwordx4 v[76:79], v72, s[36:39], s44 offen")
        lab("K0_NOFLAG")
    stamp_out(0, 2, 2)
    lab("K0_END")
    e("s_endpgm")

PW1 = int(os.environ.get('PW1', '7')); HF = int(os.environ.get('HF', '1')); PP = int(os.environ.get('PP', '0'))
K1_STAGE = 96 * 416; K1_NS = 4; K1_LDS = K1_STAGE * K1_NS
def gen_k1():
    P = Loop(); P.name = "K1"; P.STAGE = K1_STAGE; P.NS = K1_NS; P.D = 5; P.AR = 6; P.RW = 6; P.asc = ""; P.early = 0; P.slot0 = 0; P.RB = 0
    EX = 104; ACT = 108; WR = 180; vMain = 204; vTail = 212; vQK = 213; vD = 217; vDT = 220; vDQ = 221; ST = 136
    vA0, vA1, vAH = 223, 224, 225; vL, vG, vM, vTid = 226, 227, 228, 229; T = 232
    acc = lambda i, u: (i * 2 + u) * 4
    P.acc = acc; P.act = lambda st, f: ACT + (st * 3 + f) * 4; P.WR = WR; P.nacc = 108
    sX, sW1, sWQ, sH, sO = 8, 12, 16, 20, 24
    sWave, sJ, sMt = 28, 29, 30
    P.sCnt, P.sDelta, P.sRd, P.sWr, P.sT, P.sOffA, P.sAct = 31, 32, 33, 34, 35, 36, sX
    sOffW1, sOffWQ, sBM, sBT, sBQ = 37, 38, 39, 44, 45
    TAILB = 96 * 256; QKB = TAILB + 96 * 32
    kstart("k1_kernel")
    e("s_cmp_ge_u32 s2, 256"); e("s_cbranch_scc1 K1_END"); stamp_init()
    e("s_load_dwordx4 s[56:59], s[0:1], 32"); e("s_load_dwordx2 s[54:55], s[0:1], 64")
    e("s_load_dwordx2 s[60:61], s[0:1], 48"); e("s_load_dwordx2 s[52:53], s[0:1], 0")
    common_ids(vL, vG, vM, T, sWave)
    e("v_mov_b32 %s, v0" % v(vTid))
    e("s_and_b32 s40, s2, 7"); e("s_lshr_b32 s41, s2, 3")
    e("s_lshr_b32 %s, s41, 2" % s(sMt)); e("s_and_b32 s41, s41, 3"); e("s_lshl_b32 s40, s40, 2"); e("s_add_u32 %s, s40, s41" % s(sJ))
    w_setup(vL, T, sWave, sJ, 9216, vD, vDT, vMain, vTail, TAILB)
    e("s_mul_i32 s41, %s, %d" % (s(sJ), 576 * 128))
    for n in range(2):
        e("v_lshrrev_b32 %s, 3, %s" % (v(T), v(vL)))
        e("v_add3_u32 %s, %s, s40, %d" % (v(T), v(T), 8 * n))
        e("v_lshrrev_b32 %s, 1, %s" % (v(T + 1), v(T)))
        e("v_bfe_u32 %s, %s, 1, 2" % (v(T + 2), v(vL)))
        e("v_xor_b32 %s, %s, %s" % (v(T + 1), v(T + 1), v(T + 2)))
        e("v_and_b32 %s, 3, %s" % (v(T + 1), v(T + 1)))
        e("v_lshlrev_b32 %s, 7, %s" % (v(T), v(T)))
        e("v_lshl_add_u32 %s, %s, 5, %s" % (v(T), v(T + 1), v(T)))
        e("v_and_b32 %s, 1, %s" % (v(T + 1), v(vL)))
        e("v_lshl_add_u32 %s, %s, 4, %s" % (v(T), v(T + 1), v(T)))
        e("v_add_u32 %s, s41, %s" % (v(vDQ + n), v(T)))
        e("s_sub_u32 s41, s41, 1024")
    Lsave = len(L)
    w_setup_rd(vL, T, vMain, vTail, TAILB)
    e("v_lshrrev_b32 %s, 2, %s" % (v(T), v(vL)))
    e("v_bfe_u32 %s, %s, 3, 2" % (v(T + 1), v(vL)))
    e("v_lshlrev_b32 %s, 7, %s" % (v(T), v(T)))
    e("v_lshl_add_u32 %s, %s, 5, %s" % (v(T), v(T + 1), v(T)))
    e("v_and_b32 %s, 3, %s" % (v(T + 1), v(vL)))
    e("v_lshl_add_u32 %s, %s, 3, %s" % (v(T), v(T + 1), v(T)))
    for i in range(4):
        e("v_xor_b32 %s, %d, %s" % (v(vQK + i), i << 5, v(T)))
        e("v_add_u32 %s, %d, %s" % (v(vQK + i), QKB, v(vQK + i)))
    e("s_lshl_b32 s40, %s, 4" % s(sMt)); e("s_lshl_b32 s41, %s, 1" % s(sWave)); e("s_add_u32 s41, s41, s40")
    e("s_lshl_b32 s41, s41, 10")
    e("v_lshlrev_b32 %s, 4, %s" % (v(T), v(vL)))
    e("v_add_u32 %s, s41, %s" % (v(vA0), v(T)))
    e("s_sub_u32 s41, s40, 1"); e("s_lshl_b32 s41, s41, 10")
    e("s_cmp_eq_u32 %s, 0" % s(sMt)); e("s_cselect_b32 s41, 0x80000000, s41")
    e("s_cmp_gt_u32 %s, 2" % s(sWave)); e("s_cselect_b32 s41, 0x80000000, s41")
    e("v_add_u32 %s, s41, %s" % (v(vAH), v(T)))
    late = L[Lsave:]; del L[Lsave:]
    P.late_setup = lambda: L.extend(late)
    e("s_mul_i32 %s, %s, 3072" % (s(sBM), s(sWave)))
    e("s_mul_i32 %s, %s, 384" % (s(sBT), s(sWave))); e("s_add_u32 %s, %s, %d" % (s(sBT), s(sBT), TAILB))
    e("s_mul_i32 %s, %s, 1536" % (s(sBQ), s(sWave))); e("s_add_u32 %s, %s, %d" % (s(sBQ), s(sBQ), QKB))
    e("s_mov_b32 %s, 0" % s(sOffW1)); e("s_mov_b32 %s, 0" % s(sOffWQ)); e("s_mov_b32 %s, 0" % s(P.sOffA))
    e("s_waitcnt lgkmcnt(0)")
    srd(sX, 54, O_BYTES, XN_OFF); srd(sW1, 56, 576 * 9216); srd(sH, 54, H_BYTES, H_OFF); srd(sO, 54, O_BYTES, O_OFF)
    srd(sWQ, 54, WQ_BYTES, WQ_OFF)
    e("s_add_u32 s40, %s, 1" % s(sJ)); e("s_mul_i32 %s, s40, %d" % (s(sWQ + 2), 576 * 128))
    P.tiles = [(vMain + i, 4096, 8192) for i in range(8)] + [(vTail, 512, 1024)] + [(vQK + i, 2048, 4096) for i in range(4)]
    P.dmas = [(vD, sW1, sOffW1, sBM, 0, 64), (vD + 1, sW1, sOffW1, sBM, 1024, 64), (vD + 2, sW1, sOffW1, sBM, 2048, 64),
              (vDT, sW1, sOffW1, sBT, 0, 24), (vDQ, sWQ, sOffWQ, sBQ, 0, 64), (vDQ + 1, sWQ, sOffWQ, sBQ, 1024, 32)]
    P.dsteps = [(sOffW1, 96 * 9216), (sOffWQ, 96 * 128)]
    P.vA = [(vA0, 0), (vA0, 1024), (vAH, 0)]; P.vmpos = [0, 2, 4, 7, 10]; P.dd = [[0, 1], [2, 3], [4, 5]]
    def extra(q, kk, wr, tag):
        if q >= 10:
            e("s_cmp_eq_u32 %s, %d" % (s(sWave), q - 10)); e("s_cbranch_scc0 K1_X%s%d_%d" % (tag, q, kk))
            mfma(EX, wr, P.act(kk, 2))
            lab("K1_X%s%d_%d" % (tag, q, kk))
    P.extra = extra
    P.K = 18; P.groups = [[0, 1, 2, 3], [4, 5], [6, 7, 8], [9, 10], [11, 12]]
    def tail_pre(store):
        e("s_mul_i32 s40, %s, 9" % s(sJ)); e("s_and_b32 s41, %s, 1" % s(sJ))
        e("s_add_u32 s47, s40, s41"); e("s_lshl_b32 s47, s47, 16")
        e("s_xor_b32 s43, s41, 1"); e("s_lshl_b32 s43, s43, 3"); e("s_add_u32 s43, s43, s40"); e("s_lshr_b32 s43, s43, 1"); e("s_lshl_b32 s43, s43, 17")
        e("s_lshl_b32 s41, s41, 9"); e("s_add_u32 s43, s43, s41")
        for i in range(1, 4): e("s_add_u32 s%d, s47, %d" % (47 + i, i << 17))
        e("s_lshl_b32 s40, %s, 4" % s(sMt)); e("s_lshl_b32 s41, %s, 1" % s(sWave)); e("s_add_u32 s41, s41, s40"); e("s_lshl_b32 s41, s41, 10")
        e("v_and_b32 v253, 1, %s" % v(vG)); e("v_lshlrev_b32 v253, 10, v253"); e("v_lshl_add_u32 v253, %s, 4, v253" % v(vM))
        e("v_lshrrev_b32 v248, 1, %s" % v(vG)); e("v_lshl_add_u32 v253, v248, 8, v253"); e("v_add_u32 v253, s41, v253")
        if PF:
            srd(sW1, 58, 4608 * 1152)
            e("s_and_b32 s40, s2, 7"); e("s_mul_i32 s40, s40, %d" % (672 * 1152)); e("s_lshr_b32 s41, s2, 3"); e("s_mul_i32 s41, s41, %d" % (378 * 64))
            e("s_add_u32 s40, s40, s41")
            e("v_min_u32 v248, 377, %s" % v(vTid)); e("v_lshlrev_b32 v248, 6, v248")
            store("buffer_load_dword v249, v248, %s, s40 offen" % s(sW1, 4))
    def fin(g, store):
        g = [i for i in g if i <= 8]
        for i in g:
            d = acc(i, 0)
            for n in range(4): e("v_cvt_pk_bf16_f32 %s, %s, %s" % (v(d + n), v(d + 2 * n), v(d + 2 * n + 1)))
            for n in range(4): e("v_pk_max_i16 %s, %s, 0" % (v(d + n), v(d + n)))
        if g: nop(2)
        for i in g:
            d = acc(i, 0)
            e("v_permlane16_swap_b32 %s, %s" % (v(d), v(d + 2))); e("v_permlane16_swap_b32 %s, %s" % (v(d + 1), v(d + 3)))
        if g: nop(2)
        for i in g:
            store("buffer_store_dwordx4 %s, v253, %s, %s offen offset:%d%s" % (v(acc(i, 0), 4), s(sH, 4), "s43" if i == 8 else s(47 + (i >> 1)), (i & 1) * 512, HSC))
    P.tail_pre = tail_pre; P.fin = fin
    next(mainloop(P))
    e("s_waitcnt vmcnt(%d)" % P.after(P.S(6))); e("s_barrier")
    stamp(4)
    sFl = 20; sKs = 51
    def flag(soff, off):
        e("s_mov_b64 exec, 1")
        e("buffer_store_dword v251, v250, %s, %s offen offset:%d sc1" % (s(sFl, 4), soff, off))
        e("s_mov_b64 exec, -1")
    def poll(name, x4, oflag):
        R = (244, 240, 236)
        def ld(r):
            if x4: e("buffer_load_dwordx4 v[%d:%d], v249, %s, s47 offen sc1" % (r, r + 3, s(sFl, 4)))
            else: e("buffer_load_dword v%d, v250, %s, s47 offen sc1" % (r, s(sFl, 4)))
        e("s_mov_b32 s42, 0")
        ld(R[0])
        if oflag:
            e("s_waitcnt vmcnt(1)"); flag("s49", 0)
            e("v_mov_b32 v%d, 0" % R[1])
        elif PP: e("s_sleep %d" % SLP); ld(R[1])
        lab(name)
        for i in range(3):
            c = R[i]
            if PP: e("s_sleep %d" % SLP); ld(R[(i + 2) % 3]); e("s_waitcnt vmcnt(2)")
            else: e("s_waitcnt vmcnt(%d)" % (1 if oflag else 0))
            if x4: e("v_min_u32 v%d, v%d, v%d" % (c, c, c + 1)); e("v_min3_u32 v%d, v%d, v%d, v%d" % (c, c, c + 2, c + 3))
            e("v_cmp_eq_u32 vcc, 1, v%d" % c); e("s_nop 3")
            e("s_and_b64 s[40:41], vcc, s[2:3]"); e("s_cmp_eq_u64 s[40:41], s[2:3]"); e("s_cbranch_scc1 %sX" % name)
            if not PP:
                e("s_sleep %d" % SLP); ld(R[(i + 1) % 3])
                if oflag: e("s_waitcnt vmcnt(0)")
        e("s_add_u32 s42, s42, 1"); e("s_cmp_lt_u32 s42, 20000"); e("s_cbranch_scc1 %s" % name)
        lab(name + "X")
    QB, KB, VB = 0, 20480, 20480 + 21760
    e("s_lshl_b32 s44, %s, 5" % s(sWave))
    e("v_add_u32 %s, s44, %s" % (v(T + 9), v(vM)))
    e("v_mul_u32_u24 %s, 80, %s" % (v(T + 9), v(T + 9)))
    e("v_lshl_add_u32 %s, %s, 4, %s" % (v(T + 8), v(vG), v(T + 9)))
    e("v_mul_u32_u24 %s, %d, %s" % (v(T + 10), VB + 1280 - QB, v(vG)))
    e("v_add_u32 %s, %s, %s" % (v(T + 10), v(T + 10), v(T + 9)))
    for u in range(2):
        e("ds_write_b128 %s, %s offset:%d" % (v(T + 8), v(acc(9, u), 4), QB + u * 1280))
        e("ds_write_b128 %s, %s offset:%d" % (v(T + 8), v(acc(10, u), 4), KB + 1280 + u * 1280))
        e("ds_write_b128 %s, %s offset:%d" % (v(T + 8), v(acc(11, u), 4), VB + 1280 + u * 1280))
        e("s_mov_b32 exec_hi, 0")
        e("ds_write_b64 %s, %s offset:%d" % (v(T + 10), v(acc(12, u), 2), QB + 64 + u * 1280))
        e("s_mov_b32 exec_lo, 0xffff")
        e("ds_write_b64 %s, %s offset:%d" % (v(T + 9), v(acc(12, u) + 2, 2), KB + 1280 + 64 + u * 1280))
        e("s_mov_b64 exec, -1")
    e("v_mul_u32_u24 %s, 80, %s" % (v(T + 9), v(vM)))
    e("v_lshl_add_u32 %s, %s, 4, %s" % (v(T + 10), v(vG), v(T + 9)))
    e("s_cmp_gt_u32 %s, 1" % s(sWave)); e("s_cbranch_scc1 K1_H2")
    e("s_mul_i32 s44, %s, %d" % (s(sWave), VB - KB))
    e("v_add_u32 %s, s44, %s" % (v(T + 10), v(T + 10)))
    e("ds_write_b128 %s, %s offset:%d" % (v(T + 10), v(EX, 4), KB))
    e("s_branch K1_HD")
    lab("K1_H2")
    e("s_cmp_eq_u32 %s, 2" % s(sWave)); e("s_cbranch_scc0 K1_HD")
    e("s_mov_b64 exec, 0xffff")
    e("ds_write_b64 %s, %s offset:%d" % (v(T + 9), v(EX + 2, 2), KB + 64))
    e("s_mov_b32 exec_lo, 0xffff0000")
    e("ds_write_b64 %s, %s offset:%d" % (v(T + 9), v(EX, 2), VB + 64))
    e("s_mov_b64 exec, -1")
    lab("K1_HD")
    stamp(5)
    e("s_waitcnt lgkmcnt(0)"); e("s_barrier")
    stamp(6)
    Qr = 0; Kr = 12; LG = 112; Or = 124; vB, vBt, vRow = T + 12, T + 13, T + 14
    e("v_lshrrev_b32 %s, 5, %s" % (v(T + 15), v(vTid)))
    e("v_lshl_add_u32 %s, %s, 4, %s" % (v(vRow), v(T + 15), v(vM)))
    e("v_and_b32 %s, 1, %s" % (v(T), v(vG)))
    e("v_mul_u32_u24 %s, 80, %s" % (v(T + 1), v(vRow)))
    e("v_lshl_add_u32 %s, %s, 5, %s" % (v(vB), v(T), v(T + 1)))
    e("v_lshl_add_u32 %s, %s, 2, %s" % (v(vBt), v(T), v(T + 1)))
    def rec(dst, base_off):
        e("ds_read_b128 %s, %s offset:%d" % (v(dst, 4), v(vB), base_off))
        e("ds_read_b128 %s, %s offset:%d" % (v(dst + 4, 4), v(vB), base_off + 16))
        e("ds_read_b32 %s, %s offset:%d" % (v(dst + 8), v(vBt), base_off + 64))
    rec(Qr, QB)
    for w in range(4): rec(Kr + w * 12, KB + 1280 - 160 * w)
    srd(sFl, 54, 24576, FLAG_OFF)
    e("v_lshlrev_b32 v250, 2, %s" % v(vL)); e("v_mov_b32 v251, 1")
    e("s_lshl_b32 s47, %s, 10" % s(sMt)); e("s_lshl_b32 s48, %s, 5" % s(sJ)); e("s_add_u32 s48, s48, s47")
    e("s_lshl_b32 s49, %s, 2" % s(sWave)); e("s_add_u32 s48, s48, s49"); e("s_add_u32 s49, s48, 8192")
    if HF: e("s_waitcnt vmcnt(0)"); flag("s48", 0)
    k2 = gen_k2(vL, vG, vM, vTid, None)
    next(k2)
    e("s_mov_b32 s50, s2")
    e("s_mul_i32 s40, %s, 14" % s(sKs)); e("s_add_u32 s41, s40, 16"); e("s_mul_i32 s40, s40, 21846"); e("s_lshr_b32 s40, s40, 16")
    e("s_mul_i32 s41, s41, 21846"); e("s_lshr_b32 s41, s41, 16"); e("s_min_u32 s41, s41, 32"); e("s_sub_u32 s41, s41, s40"); e("s_lshl_b32 s41, s41, 3")
    e("s_bfm_b64 s[2:3], s41, 0"); e("s_lshl_b32 s40, s40, 5")
    e("s_cmp_eq_u32 %s, 7" % s(sKs)); e("s_cselect_b32 s40, 8192, s40"); e("s_cselect_b64 s[2:3], -1, s[2:3]"); e("s_add_u32 s47, s47, s40")
    e("s_lshl_b32 s40, %s, 8" % s(sMt))
    e("v_add_u32 %s, s40, %s" % (v(vRow), v(vRow)))
    e("s_mov_b32 s41, 0x%08x" % f2u(18 ** -0.5 * 1.4426950408889634))
    e("v_mov_b32 %s, 0x%08x" % (v(T + 2), f2u(-1e9 * 1.4426950408889634)))
    for w in range(8):
        e("s_waitcnt lgkmcnt(%d)" % (9 if w < 5 else 9 - 3 * (w - 4)))
        kr = Kr + w * 12
        e("v_mul_f32 %s, %s, %s" % (v(LG + w), v(Qr), v(kr)))
        for d in range(1, 9): e("v_fmac_f32 %s, %s, %s" % (v(LG + w), v(Qr + d), v(kr + d)))
        if w < 4: rec(Kr + (w + 4) * 12, KB + 1280 - 160 * (w + 4))
    for w in range(5): rec(Kr + w * 12, VB + 1280 - 160 * w)
    for w in range(8): e("v_mov_b32 %s, %s" % (v(Or + w), v(LG + w)))
    nop(2)
    for w in range(8): e("v_permlane16_swap_b32 %s, %s" % (v(LG + w), v(Or + w)))
    nop(2)
    for w in range(8):
        e("v_add_f32 %s, %s, %s" % (v(LG + w), v(LG + w), v(Or + w)))
        e("v_cmp_le_u32 vcc, %d, %s" % (2 * w, v(vRow)))
        e("v_mul_f32 %s, s41, %s" % (v(LG + w), v(LG + w)))
        nop(1)
        e("v_cndmask_b32 %s, %s, %s, vcc" % (v(LG + w), v(T + 2), v(LG + w)))
    e("v_max3_f32 %s, %s, %s, %s" % (v(T + 3), v(LG), v(LG + 1), v(LG + 2)))
    e("v_max3_f32 %s, %s, %s, %s" % (v(T + 3), v(T + 3), v(LG + 3), v(LG + 4)))
    e("v_max3_f32 %s, %s, %s, %s" % (v(T + 3), v(T + 3), v(LG + 5), v(LG + 6)))
    e("v_max_f32 %s, %s, %s" % (v(T + 3), v(T + 3), v(LG + 7)))
    for w in range(8):
        e("v_sub_f32 %s, %s, %s" % (v(LG + w), v(LG + w), v(T + 3)))
        e("v_exp_f32 %s, %s" % (v(LG + w), v(LG + w)))
    nop(1)
    e("v_add_f32 %s, %s, %s" % (v(T + 4), v(LG), v(LG + 1)))
    for w in range(2, 8): e("v_add_f32 %s, %s, %s" % (v(T + 4), v(T + 4), v(LG + w)))
    e("v_rcp_f32 %s, %s" % (v(T + 4), v(T + 4)))
    if not HF: e("s_waitcnt vmcnt(12)"); flag("s48", 0)
    for w in range(8):
        e("s_waitcnt lgkmcnt(%d)" % (3 * (min(w + 4, 7) - w)))
        kr = Kr + w * 12
        for d in range(9):
            if w == 0: e("v_mul_f32 %s, %s, %s" % (v(Or + d), v(LG), v(kr + d)))
            else: e("v_fmac_f32 %s, %s, %s" % (v(Or + d), v(LG + w), v(kr + d)))
        if w + 5 < 8: rec(Kr + (w + 5) * 12, VB + 1280 - 160 * (w + 5))
    for d in range(9): e("v_mul_f32 %s, %s, %s" % (v(Or + d), v(T + 4), v(Or + d)))
    for d in range(4): e("v_cvt_pk_bf16_f32 %s, %s, %s" % (v(Qr + d), v(Or + 2 * d), v(Or + 2 * d + 1)))
    e("v_mov_b32 %s, %s" % (v(Or + 9), v(Or + 8)))
    nop(2)
    e("v_permlane16_swap_b32 %s, %s" % (v(Or + 8), v(Or + 9)))
    nop(2)
    e("v_cvt_pk_bf16_f32 %s, %s, %s" % (v(Qr + 4), v(Or + 8), v(Or + 9)))
    e("s_lshl_b32 s40, %s, 4" % s(sMt))
    e("v_add_u32 %s, s40, %s" % (v(T + 5), v(T + 15)))
    e("v_lshlrev_b32 %s, 10, %s" % (v(T + 5), v(T + 5)))
    e("v_lshl_add_u32 %s, %s, 4, %s" % (v(T + 5), v(vM), v(T + 5)))
    e("v_lshl_add_u32 %s, %s, 8, %s" % (v(T + 6), v(T), v(T + 5)))
    e("s_lshr_b32 s42, %s, 1" % s(sJ)); e("s_lshl_b32 s42, s42, 17"); e("s_and_b32 s41, %s, 1" % s(sJ)); e("s_lshl_b32 s41, s41, 9"); e("s_add_u32 s42, s42, s41")
    e("s_bfe_u32 s43, %s, 0x20002" % s(sJ)); e("s_lshl_b32 s43, s43, 8"); e("s_and_b32 s41, %s, 3" % s(sJ)); e("s_lshl_b32 s41, s41, 2")
    e("s_add_u32 s43, s43, s41"); e("s_lshr_b32 s41, %s, 4" % s(sJ)); e("s_add_u32 s41, s41, 16"); e("s_lshl_b32 s41, s41, 17"); e("s_add_u32 s43, s43, s41")
    e("buffer_store_dwordx4 %s, %s, %s, s42 offen sc1" % (v(Qr, 4), v(T + 6), s(sO, 4)))
    e("s_mov_b32 exec_lo, 0xffff"); e("s_mov_b32 exec_hi, 0xffff")
    e("buffer_store_dword %s, %s, %s, s43 offen sc1" % (v(Qr + 4), v(T + 5), s(sO, 4)))
    e("s_mov_b64 exec, -1")
    stamp(7)
    e("v_lshlrev_b32 v249, 4, %s" % v(vL))
    e("s_cmp_lg_u32 %s, %d" % (s(sWave), PW1)); e("s_cbranch_scc1 K1_NPL"); e("s_cmp_eq_u32 %s, 7" % s(sKs)); e("s_cbranch_scc1 K1_NPL")
    poll("K1_PH", 0, 1)
    e("s_branch K1_POX")
    lab("K1_NPL")
    e("s_waitcnt vmcnt(0)")
    flag("s49", 0)
    e("s_cmp_lg_u32 %s, %d" % (s(sWave), PW1)); e("s_cbranch_scc1 K1_POX")
    poll("K1_PO", 1, 0)
    e("s_mov_b32 s2, s50")
    e("s_barrier")
    stamp(8)
    SOFF[0] = 8
    next(k2)
    stamp_out(1, 16, 30)
    lab("K1_END")
    e("s_endpgm")
    lab("K1_LAST")

K2_STAGE = 96 * 288; K2_NS = 4; K2_LDS = K2_STAGE * K2_NS
OWN = 12288; QL = 24576; PW = int(os.environ.get('PW', '7'))
def reduce_vals(src, nd, F, order=tuple(range(8)), pre=None, mid=None):
    for k in order:
        if pre: pre(k)
        for r in range(nd):
            x = src(k, r)
            if k == order[0] or k == 7:
                o = F + (8 if k == 7 else 0) + 2 * r
                e("v_lshlrev_b32 %s, 16, %s" % (v(o), v(x))); e("v_and_b32 %s, s46, %s" % (v(o + 1), v(x)))
            else:
                tp = F + 16 + 2 * (r & 1)
                e("v_lshlrev_b32 %s, 16, %s" % (v(tp), v(x))); e("v_and_b32 %s, s46, %s" % (v(tp + 1), v(x)))
                e("v_pk_add_f32 %s, %s, %s" % (v(F + 2 * r, 2), v(F + 2 * r, 2), v(tp, 2)))
    if mid: mid()
    for r in range(2 * nd):
        e("v_mul_f32 %s, s45, %s" % (v(F + 16 + r), v(F + r)))
        e("v_exp_f32 %s, %s" % (v(F + 16 + r), v(F + 16 + r)))
        e("v_mul_f32 %s, %s, %s" % (v(F + r), v(F + r), v(F + 8 + r)))
        e("v_add_f32 %s, 1.0, %s" % (v(F + 16 + r), v(F + 16 + r)))
        e("v_rcp_f32 %s, %s" % (v(F + 16 + r), v(F + 16 + r)))
    nop(1)
    for r in range(2 * nd): e("v_mul_f32 %s, %s, %s" % (v(F + r), v(F + r), v(F + 16 + r)))
    for r in range(nd): e("v_cvt_pk_bf16_f32 %s, %s, %s" % (v(F + 24 + r), v(F + 2 * r), v(F + 2 * r + 1)))
def k2_tail(sP, sX, sFl, sWave, sKs, sMt, sNt, vL, vG, vM, vTid, T):
    sOut = 20; YS = 304
    srd(sX, 52, 2048 * 1152); srd(sOut, 60, 2048 * 1152); srd(sFl, 54, 256 << RSH, FLAG_OFF + 16384)
    e("s_lshl_b32 s40, %s, 3" % s(sMt)); e("s_add_u32 s40, s40, %s" % s(sKs))
    e("s_mul_i32 s41, s40, %d" % (32 * 1152)); e("s_mul_i32 s42, %s, 288" % s(sNt)); e("s_add_u32 s41, s41, s42")
    vXA, vYA, XR = 72, 74, 76
    for n in range(2):
        e("v_add_u32 %s, %d, %s" % (v(T + 1), 512 * n, v(vTid)))
        divc(T + 2, T + 3, T + 1, 18, 3641, 16)
        e("v_mul_u32_u24 %s, 1152, %s" % (v(T + 4), v(T + 2))); e("v_lshl_add_u32 %s, %s, 4, %s" % (v(T + 4), v(T + 3), v(T + 4)))
        e("v_add_u32 %s, s41, %s" % (v(vXA + n), v(T + 4)))
        e("v_mul_u32_u24 %s, %d, %s" % (v(T + 4), YS, v(T + 2))); e("v_lshl_add_u32 %s, %s, 4, %s" % (v(vYA + n), v(T + 3), v(T + 4)))
    e("s_cmp_eq_u32 %s, 0" % s(sWave)); e("s_cselect_b32 s47, 0, 0x40000000")
    e("buffer_load_dwordx4 %s, %s, %s, 0 offen" % (v(XR, 4), v(vXA), s(sX, 4)))
    e("buffer_load_dwordx4 %s, %s, %s, s47 offen" % (v(XR + 4, 4), v(vXA + 1), s(sX, 4)))
    e("s_mul_i32 s40, s40, 36"); e("s_mul_i32 s41, %s, 9" % s(sNt)); e("s_add_u32 s40, s40, s41")
    e("s_add_u32 s41, s40, %s" % s(sWave)); e("s_lshl_b32 s41, s41, 10"); e("s_add_u32 s40, s40, 8"); e("s_lshl_b32 s40, s40, 10")
    e("v_add_u32 %s, s41, %s" % (v(T + 1), v(T)))
    e("v_add_u32 %s, s40, %s" % (v(T + 2), v(T)))
    e("v_mul_u32_u24 %s, %d, %s" % (v(T + 3), YS, v(vM))); e("v_lshl_add_u32 %s, %s, 3, %s" % (v(T + 3), v(vG), v(T + 3)))
    e("s_lshr_b32 s40, %s, 1" % s(sWave)); e("s_mul_i32 s40, s40, %d" % (16 * YS)); e("s_and_b32 s41, %s, 1" % s(sWave)); e("s_lshl_b32 s41, s41, 2")
    e("s_add_u32 s40, s40, s41"); e("v_add_u32 %s, s40, %s" % (v(T + 4), v(T + 3)))
    e("s_lshl_b32 s40, %s, 5" % s(sWave)); e("v_add_u32 %s, s40, %s" % (v(T + 3), v(T + 3)))
    for k in range(8):
        e("s_mov_b32 s%d, %d" % (32 + k, k * SLAB)); e("s_cmp_eq_u32 %s, %d" % (s(sKs), k)); e("s_cmov_b32 s%d, 0x40000000" % (32 + k))
    e("s_mul_i32 s43, %s, %d" % (s(sWave), SLAB)); e("s_cmp_eq_u32 %s, %s" % (s(sWave), s(sKs))); e("s_cmov_b32 s43, 0x40000000"); e("s_cselect_b32 s44, -1, 0")
    e("s_cmp_eq_u32 %s, 7" % s(sKs)); e("s_cselect_b32 s49, -1, 0"); e("s_cselect_b32 s48, 0, -1")
    e("s_lshl_b32 s40, %s, 10" % s(sWave)); e("v_add_u32 %s, s40, %s" % (v(T + 10), v(T)))
    e("s_lshl_b32 s40, %s, 2" % s(sWave)); e("v_add_u32 %s, s40, %s" % (v(T + 11), v(T)))
    e("s_mov_b32 s45, 0x%08x" % f2u(-1.4426950408889634)); e("s_mov_b32 s46, 0xffff0000")
    e("s_lshr_b32 s40, s2, 3"); e("s_lshl_b32 s40, s40, %d" % (RSH + 3))
    e("v_and_b32 %s, 7, %s" % (v(T + 5), v(vL))); e("v_lshlrev_b32 %s, 2, %s" % (v(T + 5), v(T + 5))); e("v_mov_b32 %s, 1" % v(T + 6))
    e("s_lshl_b32 s41, %s, %d" % (s(sWave), RSH)); e("s_add_u32 s41, s41, s40"); e("s_lshl_b32 s42, %s, 2" % s(sKs)); e("s_add_u32 s41, s41, s42")
    e("s_lshl_b32 s42, %s, %d" % (s(sKs), RSH)); e("s_add_u32 s40, s40, s42")
    e("s_waitcnt vmcnt(2)")
    stamp(5)
    e("s_mov_b64 exec, 1")
    e("buffer_store_dword %s, %s, %s, s41 offen sc1" % (v(T + 6), v(T + 5), s(sFl, 4)))
    e("s_mov_b64 exec, -1"); e("s_mov_b32 s42, 0"); e("s_mov_b32 s31, 0")
    e("s_cmp_lg_u32 %s, %d" % (s(sWave), PW)); e("s_cbranch_scc1 K2_SPIN")
    e("s_mov_b64 exec, 0xff")
    R = (T + 7, T + 14, T + 15)
    def ld(r): e("buffer_load_dword %s, %s, %s, s40 offen sc1" % (v(r), v(T + 5), s(sFl, 4)))
    if PP: ld(R[0]); e("s_sleep %d" % SLR); ld(R[1])
    lab("K2_POLL")
    e("s_add_u32 s42, s42, 1")
    for i in range(3):
        e("s_sleep %d" % SLR); ld(R[(i + 2) % 3])
        e("s_waitcnt vmcnt(%d)" % (2 if PP else 0))
        e("v_cmp_eq_u32 vcc, 1, %s" % v(R[i if PP else (i + 2) % 3])); e("s_nop 3")
        e("s_cmp_gt_u32 s42, 20000"); e("s_cselect_b32 s41, 0xff, vcc_lo")
        e("v_mov_b32 %s, s41" % v(T + 13)); e("ds_write_b32 %s, %s" % (v(T + 12), v(T + 13)))
        e("s_cmp_eq_u32 s41, 0xff"); e("s_cbranch_scc1 K2_POLLX")
    e("s_branch K2_POLL")
    lab("K2_POLLX")
    e("s_mov_b64 exec, -1"); e("s_mov_b32 s42, 0xff"); e("s_branch K2_ISSUE")
    lab("K2_SPIN")
    e("s_sleep 1")
    e("ds_read_b32 %s, %s" % (v(T + 13), v(T + 12))); e("s_waitcnt lgkmcnt(0)")
    e("v_readfirstlane_b32 s42, %s" % v(T + 13)); e("s_nop 3")
    e("s_cmp_eq_u32 s42, s31"); e("s_cbranch_scc1 K2_SPIN")
    lab("K2_ISSUE")
    e("s_andn2_b32 s41, s42, s31"); e("s_or_b32 s31, s31, s42")
    e("s_bitcmp1_b32 s41, %s" % s(sWave)); e("s_cbranch_scc0 K2_LT")
    e("buffer_load_dwordx4 v[120:123], %s, %s, s43 offen sc1" % (v(T + 2), s(sP, 4)))
    lab("K2_LT")
    for k in range(8):
        e("s_bitcmp1_b32 s41, %d" % k); e("s_cbranch_scc0 K2_L%d" % k)
        e("buffer_load_dwordx4 %s, %s, %s, s%d offen sc1" % (v(4 * k, 4), v(T + 1), s(sP, 4), 32 + k))
        lab("K2_L%d" % k)
    e("s_cmp_eq_u32 s31, 0xff"); e("s_cbranch_scc0 K2_SPIN")
    e("s_waitcnt lgkmcnt(0)"); e("s_barrier")
    stamp(6)
    e("ds_read_b128 v[116:119], %s offset:%d" % (v(T + 10), OWN))
    e("ds_read_b128 v[124:127], %s offset:%d" % (v(T), OWN + 8192))
    e("s_waitcnt vmcnt(0) lgkmcnt(0)")
    for r in range(4): e("v_and_or_b32 v%d, v%d, s44, v%d" % (120 + r, 124 + r, 120 + r))
    e("ds_write_b128 %s, v[120:123] offset:%d" % (v(T + 10), QL))
    for r in range(4): e("v_and_b32 v%d, s48, v%d" % (124 + r, 116 + r))
    def pre(k):
        if k == 7:
            for r in range(4): e("v_and_or_b32 v%d, v%d, s49, v%d" % (28 + r, 116 + r, 28 + r))
    def mid():
        stamp(1)
        e("s_waitcnt lgkmcnt(0)"); e("s_barrier")
        stamp(2)
        e("s_cmp_gt_u32 %s, 3" % s(sWave)); e("s_cbranch_scc1 K2_NOQ0")
        for k in range(8): e("ds_read_b32 %s, %s offset:%d" % (v(32 + k), v(T + 11), QL + k * 1024))
        lab("K2_NOQ0")
    reduce_vals(lambda k, r: (4 * k + r) if k < 8 else 124 + r, 4, 40, (8, 0, 1, 2, 3, 4, 5, 6, 7), pre, mid)
    e("ds_write_b64 %s, %s" % (v(T + 3), v(64, 2)))
    e("ds_write_b64 %s, %s offset:%d" % (v(T + 3), v(66, 2), 16 * YS))
    e("s_cmp_gt_u32 %s, 3" % s(sWave)); e("s_cbranch_scc1 K2_NOQ")
    e("s_waitcnt lgkmcnt(2)")
    reduce_vals(lambda k, r: 32 + k, 1, 88)
    e("ds_write_b32 %s, %s offset:256" % (v(T + 4), v(88 + 24)))
    lab("K2_NOQ")
    e("s_waitcnt lgkmcnt(0)"); e("s_barrier")
    stamp(3)
    def fin(n):
        e("ds_read_b128 %s, %s" % (v(0, 4), v(vYA + n)))
        e("s_waitcnt lgkmcnt(0)")
        for r in range(4):
            x = XR + 4 * n + r
            e("v_lshlrev_b32 v8, 16, %s" % v(r)); e("v_and_b32 v9, s46, %s" % v(r))
            e("v_lshlrev_b32 v10, 16, %s" % v(x)); e("v_and_b32 v11, s46, %s" % v(x))
            e("v_pk_add_f32 v[8:9], v[8:9], v[10:11]")
            e("v_cvt_pk_bf16_f32 %s, v8, v9" % v(12 + 4 * n + r))
        e("buffer_store_dwordx4 %s, %s, %s, 0 offen" % (v(12 + 4 * n, 4), v(vXA + n), s(sOut, 4)))
    fin(0)
    e("s_cmp_lg_u32 %s, 0" % s(sWave)); e("s_cbranch_scc1 K2_FIN")
    fin(1)
    lab("K2_FIN")
def gen_k2(vL, vG, vM, vTid, k0hook):
    P = Loop(); P.name = "K2"; P.STAGE = K2_STAGE; P.NS = K2_NS; P.D = 6; P.AR = K2_AR; P.RW = 9
    P.asc = " sc1"; P.early = 1; P.slot0 = 1; P.RB = K1_LDS - K2_LDS
    ACT = 72; WR = 144; vMain = 180; vTail = 188; vD = 189; vDT = 192; vA0, vA1 = 193, 194; T = 200
    acc = lambda i, u: (i * 2 + u) * 4
    P.acc = acc; P.act = lambda st, f: ACT + (st * 2 + f) * 4; P.WR = WR; P.nacc = 72
    sW, sA, sP = 8, 12, 16
    sWave, sKs, sMt, sNt = 28, 51, 30, 46
    P.sCnt, P.sDelta, P.sRd, P.sWr, P.sT, P.sOffA, P.sAct = 31, 32, 33, 34, 35, 36, sA
    sOffW, sBM, sBT = 37, 39, 45
    P.k0hook = k0hook; P.sKs = sKs
    TAILB = 96 * 256
    e("s_and_b32 %s, s2, 7" % s(sKs)); e("s_bfe_u32 %s, s2, 0x20003" % s(sNt))
    w_setup(vL, T, sWave, sNt, 1152, vD, vDT, vMain, vTail, TAILB, 1)
    Lsave = len(L)
    w_setup_rd(vL, T, vMain, vTail, TAILB)
    e("s_lshl_b32 s40, %s, 4" % s(sMt)); e("s_lshl_b32 s41, %s, 1" % s(sWave)); e("s_add_u32 s41, s41, s40")
    e("s_lshl_b32 s41, s41, 10")
    e("v_lshlrev_b32 %s, 4, %s" % (v(T), v(vL)))
    e("v_add_u32 %s, s41, %s" % (v(vA0), v(T)))
    late = L[Lsave:]; del L[Lsave:]
    P.late_setup = lambda: L.extend(late)
    e("s_mul_i32 %s, %s, 3072" % (s(sBM), s(sWave))); e("s_add_u32 %s, %s, %d" % (s(sBM), s(sBM), P.RB))
    e("s_mul_i32 %s, %s, 384" % (s(sBT), s(sWave))); e("s_add_u32 %s, %s, %d" % (s(sBT), s(sBT), TAILB + P.RB))
    srd(sP, 54, 8 * SLAB, P_OFF)
    e("s_cmp_eq_u32 %s, 7" % s(sKs)); e("s_cbranch_scc1 K2_SJOB")
    srd(sW, 58, 4608 * 1152); srd(sA, 54, H_BYTES, H_OFF)
    e("s_mul_i32 %s, %s, %d" % (s(sOffW), s(sKs), 21 * 32 * 1152)); e("s_mul_i32 %s, %s, %d" % (s(P.sOffA), s(sKs), 21 * 131072))
    e("s_add_u32 s40, %s, %d" % (s(sOffW), 7 * 96 * 1152)); e("s_min_u32 %s, s40, %s" % (s(sW + 2), s(sW + 2)))
    e("s_branch K2_GO")
    lab("K2_SJOB")
    srd(sW, 54, WO_BYTES, WO_OFF); srd(sA, 54, O_BYTES, O_OFF)
    e("s_mov_b32 %s, 0x%x" % (s(sOffW), (1 << 32) - 96 * 1152)); e("s_mov_b32 %s, 0" % s(P.sOffA))
    lab("K2_GO")
    P.tiles = [(vMain + i, 4096, 8192) for i in range(8)] + [(vTail, 512, 1024)]
    P.dmas = [(vD, sW, sOffW, sBM, 0, 64), (vDT, sW, sOffW, sBT, 0, 24), (vD + 1, sW, sOffW, sBM, 1024, 64), (vD + 2, sW, sOffW, sBM, 2048, 64)]
    P.dsteps = [(sOffW, 96 * 1152)]
    P.vA = [(vA0, 0), (vA0, 1024)]; P.vmpos = [0, 2, 4, 6]; P.dd = [[0, 1], [2], [3]]
    P.extra = lambda q, kk, wr, tag: None
    P.K = 21; P.groups = [[0, 1, 2], [3, 4], [5, 6], [7, 8]]
    def tail_pre(store):
        e("s_lshl_b32 s40, %s, 3" % s(sMt)); e("s_add_u32 s40, s40, %s" % s(sWave)); e("s_mul_i32 s40, s40, 36")
        e("s_mul_i32 s41, %s, 9" % s(sNt)); e("s_add_u32 s40, s40, s41"); e("s_lshl_b32 s40, s40, 10")
        e("s_mul_i32 s41, %s, %d" % (s(sKs), SLAB)); e("s_add_u32 s40, s40, s41")
        e("s_and_b32 s41, %s, 1" % s(sNt)); e("s_lshl_b32 s42, s41, 10"); e("s_add_u32 s42, s42, s40"); e("s_add_u32 s43, s42, 4096")
        e("s_xor_b32 s41, s41, 1"); e("s_lshl_b32 s41, s41, 13"); e("s_add_u32 s41, s41, s40")
        e("v_lshlrev_b32 %s, 4, %s" % (v(T), v(vL)))
        e("v_mov_b32 %s, 40960" % v(T + 12)); e("v_mov_b32 %s, 0" % v(T + 13)); e("ds_write_b32 %s, %s" % (v(T + 12), v(T + 13)))
        e("s_sub_u32 s44, s42, s40"); e("v_add_u32 %s, s44, %s" % (v(T + 8), v(T)))
        e("s_sub_u32 s44, s41, s40"); e("v_add_u32 %s, s44, %s" % (v(T + 9), v(T)))
        e("s_cmp_eq_u32 %s, %s" % (s(sWave), s(sKs)))
        for x in (41, 42, 43): e("s_cmov_b32 s%d, 0x40000000" % x)
    def fin(g, store):
        for i in g:
            a0 = acc(i, 0)
            for r in range(4): e("v_cvt_pk_bf16_f32 %s, %s, %s" % (v(a0 + r), v(a0 + 2 * r), v(a0 + 2 * r + 1)))
            store("buffer_store_dwordx4 %s, %s, %s, %s offen offset:%d" % (v(a0, 4), v(T), s(sP, 4), ("s42", "s43", "s41")[i >> 2], (i & 3) * 1024) + (" sc1" if FUSE3 else PSC))
        e("s_cmp_lg_u32 %s, %s" % (s(sWave), s(sKs))); e("s_cbranch_scc1 K2_OWN%d" % g[0])
        for i in g: e("ds_write_b128 %s, %s offset:%d" % (v(T + 8 + (i >> 3)), v(acc(i, 0), 4), OWN + (i & 7) * 1024))
        lab("K2_OWN%d" % g[0])
    P.tail_pre = tail_pre; P.fin = fin
    ml = mainloop(P)
    next(ml)
    yield
    next(ml)
    stamp(4)
    k2_tail(sP, sW, sA, sWave, sKs, sMt, sNt, vL, vG, vM, vTid, T)
    yield

def gen_k3():
    sX, sP, sOut = 8, 12, 16
    kstart("k3_kernel")
    e("s_cmp_ge_u32 s2, 192"); e("s_cbranch_scc1 K3_END"); stamp_init()
    e("s_load_dwordx2 s[48:49], s[0:1], 0"); e("s_load_dwordx2 s[50:51], s[0:1], 48"); e("s_load_dwordx2 s[54:55], s[0:1], 64")
    e("v_and_b32 v1, 63, v0"); e("v_lshrrev_b32 v2, 6, v0")
    e("s_mul_i32 s40, s2, 12288")
    e("v_mul_u32_u24 v5, 3072, v2"); e("v_lshl_add_u32 v5, v1, 4, v5"); e("v_add_u32 v5, s40, v5")
    e("v_and_b32 v6, 15, v1"); e("v_mul_u32_u24 v6, 400, v6"); e("v_mul_u32_u24 v7, 96, v2"); e("v_lshrrev_b32 v8, 4, v1")
    e("v_lshl_add_u32 v7, v8, 3, v7"); e("v_add_u32 v6, v6, v7")
    e("s_mul_hi_u32 s41, s2, 1431655766"); e("s_mul_i32 s42, s41, 3"); e("s_sub_u32 s42, s2, s42")
    e("s_mul_i32 s41, s41, %d" % (32 * 1152)); e("s_mul_i32 s42, s42, 384"); e("s_add_u32 s41, s41, s42")
    for n in range(3):
        e("v_add_u32 v9, %d, v0" % (256 * n))
        divc(10, 11, 9, 24, 2731, 16)
        e("v_mul_u32_u24 v9, 1152, v10"); e("v_lshl_add_u32 v9, v11, 4, v9"); e("v_add_u32 %s, s41, v9" % v(12 + n))
        e("v_mul_u32_u24 v9, 400, v10"); e("v_lshl_add_u32 %s, v11, 4, v9" % v(15 + n))
    e("s_waitcnt lgkmcnt(0)")
    srd(sX, 48, 2048 * 1152); srd(sOut, 50, 2048 * 1152); srd(sP, 54, 8 * SLAB, P_OFF)
    for k in range(8): e("s_mov_b32 s%d, %d" % (32 + k, k * SLAB))
    B = 32
    for t in range(3):
        for k in range(8):
            e("buffer_load_dwordx4 %s, v5, %s, s%d offen offset:%d" % (v(B + (t * 8 + k) * 4, 4), s(sP, 4), 32 + k, t * 1024))
    XR = 128
    for n in range(3): e("buffer_load_dwordx4 %s, %s, %s, 0 offen" % (v(XR + 4 * n, 4), v(12 + n), s(sX, 4)))
    e("s_mov_b32 s45, 0x%08x" % f2u(-1.4426950408889634)); e("s_mov_b32 s46, 0xffff0000")
    F = 140
    for t in range(3):
        b = B + t * 32
        for k in range(8):
            e("s_waitcnt vmcnt(%d)" % (26 - (t * 8 + k)))
            for r in range(4):
                src = b + k * 4 + r
                if k == 0:
                    e("v_lshlrev_b32 %s, 16, %s" % (v(F + 2 * r), v(src))); e("v_and_b32 %s, s46, %s" % (v(F + 2 * r + 1), v(src)))
                elif k < 7:
                    e("v_lshlrev_b32 v20, 16, %s" % v(src)); e("v_and_b32 v21, s46, %s" % v(src))
                    e("v_add_f32 %s, %s, v20" % (v(F + 2 * r), v(F + 2 * r))); e("v_add_f32 %s, %s, v21" % (v(F + 2 * r + 1), v(F + 2 * r + 1)))
                else:
                    e("v_lshlrev_b32 %s, 16, %s" % (v(F + 8 + 2 * r), v(src))); e("v_and_b32 %s, s46, %s" % (v(F + 8 + 2 * r + 1), v(src)))
        for r in range(8):
            e("v_mul_f32 %s, s45, %s" % (v(F + 16 + r), v(F + r)))
            e("v_exp_f32 %s, %s" % (v(F + 16 + r), v(F + 16 + r)))
            e("v_mul_f32 %s, %s, %s" % (v(F + r), v(F + r), v(F + 8 + r)))
            e("v_add_f32 %s, 1.0, %s" % (v(F + 16 + r), v(F + 16 + r)))
            e("v_rcp_f32 %s, %s" % (v(F + 16 + r), v(F + 16 + r)))
        nop(1)
        for r in range(8): e("v_mul_f32 %s, %s, %s" % (v(F + r), v(F + r), v(F + 16 + r)))
        for r in range(4): e("v_cvt_pk_bf16_f32 %s, %s, %s" % (v(b + r), v(F + 2 * r), v(F + 2 * r + 1)))
        e("ds_write_b64 v6, %s offset:%d" % (v(b, 2), t * 32))
        e("ds_write_b64 v6, %s offset:%d" % (v(b + 2, 2), t * 32 + 6400))
    e("s_waitcnt lgkmcnt(0)"); e("s_barrier")
    for n in range(3): e("ds_read_b128 %s, %s" % (v(B + 4 * n, 4), v(15 + n)))
    e("s_waitcnt vmcnt(0)")
    for n in range(3):
        e("s_waitcnt lgkmcnt(%d)" % (2 - n))
        for r in range(4):
            p = B + 4 * n + r; x = XR + 4 * n + r
            e("v_lshlrev_b32 v20, 16, %s" % v(p)); e("v_and_b32 v21, s46, %s" % v(p))
            e("v_lshlrev_b32 v22, 16, %s" % v(x)); e("v_and_b32 v23, s46, %s" % v(x))
            e("v_add_f32 v20, v20, v22"); e("v_add_f32 v21, v21, v23")
            e("v_cvt_pk_bf16_f32 %s, v20, v21" % v(p))
        e("buffer_store_dwordx4 %s, %s, %s, 0 offen" % (v(B + 4 * n, 4), v(12 + n), s(sOut, 4)))
    stamp_out(3, 2, 2)
    lab("K3_END")
    e("s_endpgm")

def kd(name, vg):
    return [".amdhsa_kernel %s" % name, "  .amdhsa_next_free_vgpr %d" % vg, "  .amdhsa_next_free_sgpr %d" % (96 if INSTR else 64),
            "  .amdhsa_accum_offset %d" % ((vg + 3) // 4 * 4), "  .amdhsa_group_segment_fixed_size 0", "  .amdhsa_kernarg_size 72",
            "  .amdhsa_user_sgpr_count 2", "  .amdhsa_user_sgpr_kernarg_segment_ptr 1",
            "  .amdhsa_system_sgpr_workgroup_id_x 1", "  .amdhsa_float_denorm_mode_32 3", ".end_amdhsa_kernel"]
hdr = ["; generated: LN+repack | QKV/FFN1+attention | FFN2 split-K + wo | reduce+epilogue",
       "; @launch kernel=k0_kernel grid=(256,1,1) block=(256,1,1) lds=0",
       "; @launch kernel=k1_kernel grid=(256,1,1) block=(512,1,1) lds=%d" % K1_LDS,
       ] + ([] if FUSE3 else ["; @launch kernel=k3_kernel grid=(192,1,1) block=(256,1,1) lds=12800"]) + [
       '.amdgcn_target "amdgcn-amd-amdhsa--gfx950"', ".text"]
gen_k0(); gen_k1()
tail = ['.section .rodata,"a"']
for n, vg in (("k0_kernel", 80), ("k1_kernel", 256), ("k2_kernel", 216), ("k3_kernel", 168))[:2]:
    tail += [".p2align 6"] + kd(n, vg)
open(sys.argv[1] if len(sys.argv) > 1 else OUT, "w").write("\n".join(hdr + L + tail) + "\n")
print("ok", len(L))
```

```python
import sys
NAME = "recurrent_scan__sliding_local_dilated__dense_activation_relu__prompt"
OUT = "cdna_kernels/%s.s" % NAME

import struct
def f2u(x): return struct.unpack("<I", struct.pack("<f", x))[0]
H_OFF = 0
H_BYTES = 128 * 144 * 1024
O_OFF = H_BYTES
O_BYTES = 2048 * 1152
XN_OFF = O_OFF + O_BYTES
WQ_OFF = XN_OFF + O_BYTES
WQ_BYTES = 32 * 576 * 128
WO_OFF = WQ_OFF + WQ_BYTES
WO_BYTES = 576 * 1152
P_OFF = WO_OFF + WO_BYTES
SLAB = 64 * 36 * 1024
L = []
def e(s): L.append("    " + s)
def lab(s): L.append(s + ":")
def v(i, n=1): return "v%d" % i if n == 1 else "v[%d:%d]" % (i, i + n - 1)
def s(i, n=1): return "s%d" % i if n == 1 else "s[%d:%d]" % (i, i + n - 1)
def nop(n): e("s_nop %d" % (n - 1))
def srd(d, lo, nbytes, add=0):
    if add:
        e("s_add_u32 %s, %s, 0x%x" % (s(d), s(lo), add))
        e("s_addc_u32 %s, %s, 0" % (s(d + 1), s(lo + 1)))
    else:
        e("s_mov_b32 %s, %s" % (s(d), s(lo)))
        e("s_mov_b32 %s, %s" % (s(d + 1), s(lo + 1)))
    e("s_mov_b32 %s, 0x%x" % (s(d + 2), nbytes))
    e("s_mov_b32 %s, 0x00020000" % s(d + 3))
def mfma(d, a, b): e("v_mfma_f32_16x16x32_bf16 %s, %s, %s, %s" % (v(d, 4), v(a, 4), v(b, 4), v(d, 4)))
def kstart(name):
    L.append(".globl %s" % name); L.append(".p2align 8"); L.append(".type %s,@function" % name); lab(name)
def perm_pi(dst, src, t0, t1):
    e("v_and_b32 %s, 0x63, %s" % (v(dst), v(src)))
    e("v_bfe_u32 %s, %s, 2, 2" % (v(t0), v(src)))
    e("v_lshl_add_u32 %s, %s, 3, %s" % (v(dst), v(t0), v(dst)))
    e("v_bfe_u32 %s, %s, 4, 1" % (v(t1), v(src)))
    e("v_lshl_add_u32 %s, %s, 2, %s" % (v(dst), v(t1), v(dst)))
def divc(q, r, x, c, magic, sh):
    e("v_mul_u32_u24 %s, %d, %s" % (v(q), magic, v(x)))
    e("v_lshrrev_b32 %s, %d, %s" % (v(q), sh, v(q)))
    e("v_mul_u32_u24 %s, %d, %s" % (v(r), c, v(q)))
    e("v_sub_u32 %s, %s, %s" % (v(r), v(x), v(r)))
def bf16r(d, src):
    e("v_cvt_pk_bf16_f32 %s, %s, %s" % (v(d), v(src), v(src)))
    e("v_and_b32 %s, 0xffff0000, %s" % (v(d), v(d)))
def xreduce(a, t):
    for p in ("v_permlane32_swap_b32", "v_permlane16_swap_b32"):
        e("v_mov_b32 %s, %s" % (v(t), v(a)))
        nop(2)
        e("%s %s, %s" % (p, v(a), v(t)))
        nop(2)
        e("v_add_f32 %s, %s, %s" % (v(a), v(a), v(t)))


import os
INSTR = int(os.environ.get("INSTR", "0"))
DBG_OFF = 60 << 20
SOFF = [0]
def stamp(i):
    if not INSTR: return
    i += SOFF[0]
    e("s_memrealtime s[62:63]"); e("s_waitcnt lgkmcnt(0)"); e("s_mov_b32 s%d, s62" % (64 + i))
    if INSTR == 2 and i in (2, 3):
        e("s_memtime s[62:63]"); e("s_waitcnt lgkmcnt(0)"); e("s_mov_b32 s%d, s62" % (64 + i - 2))
def stamp_out(kern, n, vt):
    if not INSTR: return
    SOFF[0] = 0
    stamp(n - 1)
    srd(80, 54, 1 << 20, DBG_OFF + kern * 65536 * 4)
    e("s_lshl_b32 s62, s2, 3"); e("s_add_u32 s62, s62, s84"); e("s_lshl_b32 s62, s62, 6")
    e("s_mov_b64 exec, 1")
    e("v_mov_b32 %s, s62" % v(vt))
    for i in range(n):
        e("v_mov_b32 %s, s%d" % (v(vt + 1), 64 + i))
        e("buffer_store_dword %s, %s, s[80:83], 0 offen offset:%d" % (v(vt + 1), v(vt), 4 * i))
        e("s_nop 1")
def stamp_init():
    if not INSTR: return
    e("v_lshrrev_b32 v1, 6, v0"); e("s_nop 1"); e("v_readfirstlane_b32 s84, v1")
    stamp(0)

HSC = " sc1"
PSC = os.environ.get("PSC", "")
K2_AR = int(os.environ.get("K2_AR", "6"))
PF = int(os.environ.get("PF", "1"))
FUSE3 = int(os.environ.get("FUSE3", "1"))
FLAG_OFF = P_OFF + 8 * SLAB
POLLW = int(os.environ.get("POLLW", "4"))
SLP = int(os.environ.get("SLP", "8"))
PRIO = int(os.environ.get("PRIO", "1"))
CPF = int(os.environ.get("CPF", "5"))
RSH = int(os.environ.get("RSH", "7"))
SLR = int(os.environ.get("SLR", "8"))
JSH = int(os.environ.get("JSH", "5"))
class Loop:
    pass
def mainloop(P):
    NT = len(P.tiles); D = P.D; AR = P.AR; LA = AR - 1; RW = P.RW; U = AR // 3
    assert (NT * 3 * U) % RW == 0 and D < RW + 0 and AR % 3 == 0
    def wreg(gq): return P.WR + (gq % RW) * 4
    def wread(gq, q=None, kk=None):
        if q is None:
            gq %= NT * 3 * U
            q = gq % NT; kk = (gq // NT) % 3
        base, o16, okk = P.tiles[q]
        if kk == 0: e("v_add_u32 %s, %s, %s" % (v(base), s(P.sDelta), v(base)))
        e("ds_read_b64_tr_b16 %s, %s offset:%d" % (v(wreg(gq), 2), v(base), kk * okk))
        e("ds_read_b64_tr_b16 %s, %s offset:%d" % (v(wreg(gq) + 2, 2), v(base), kk * okk + o16))
    def nextdelta():
        e("s_add_u32 %s, %s, %d" % (s(P.sRd), s(P.sRd), P.STAGE))
        e("s_cmp_ge_u32 %s, %d" % (s(P.sRd), P.STAGE * P.NS))
        e("s_cselect_b32 %s, %d, 0" % (s(P.sDelta), P.STAGE * P.NS))
        e("s_sub_u32 %s, %s, %s" % (s(P.sRd), s(P.sRd), s(P.sDelta)))
        e("s_sub_u32 %s, %d, %s" % (s(P.sDelta), P.STAGE, s(P.sDelta)))
    def dma(n):
        vo, sr, so, sbase, ldsoff, lanes = P.dmas[n]
        e("s_add_u32 m0, %s, %s" % (s(P.sWr), s(sbase)))
        if lanes < 64:
            e("s_mov_b32 exec_lo, 0x%x" % ((1 << min(lanes, 32)) - 1)); e("s_mov_b32 exec_hi, 0")
            assert lanes <= 32
        else: e("s_nop 0")
        e("buffer_load_dwordx4 %s, %s, %s offen offset:%d lds" % (v(vo), s(sr, 4), s(so), ldsoff))
        if lanes < 64: e("s_mov_b64 exec, -1")
        if n == len(P.dmas) - 1:
            for so2, st in P.dsteps: e("s_add_u32 %s, %s, %d" % (s(so2), s(so2), st))
            e("s_add_u32 %s, %s, %d" % (s(P.sWr), s(P.sWr), P.STAGE))
            e("s_cmp_ge_u32 %s, %d" % (s(P.sWr), P.STAGE * P.NS))
            e("s_cselect_b32 %s, 0, %s" % (s(P.sWr), s(P.sWr)))
    def aload(st, f, off):
        e("buffer_load_dwordx4 %s, %s, %s, %s offen offset:%d" % (v(P.act(st, f), 4), v(P.vA[f][0]), s(P.sAct, 4), s(P.sOffA), P.vA[f][1]) + P.asc)
        if f == len(P.vA) - 1: e("s_add_u32 %s, %s, 0x20000" % (s(P.sOffA), s(P.sOffA)))
    NA = len(P.vA); ND = len(P.dmas); dd = P.dd
    cnt = [NA + len(dd[k]) for k in range(3)]
    assert AR == 6 and P.NS == 4
    Q = []
    def A(k): return [("a", k, f) for f in range(NA)]
    def S(st): return [("d", st, n) for n in range(ND)]
    def issue(op):
        Q.append(op)
        if op[0] == "a": aload(op[1] % AR, op[2], 0)
        else: dma(op[2])
    def after(ops): return len(Q) - 1 - max(Q.index(o) for o in ops)
    def wcount(kk): return len(dd[(kk - LA) % 3]) + sum(cnt[(kk - i) % 3] for i in range(1, LA))
    def kstep(k, vm, vpos, tag, emit=True, steady=False):
        ks = k % AR; kk = k % 3
        need = [o for o in A(k) + (S(k // 3 + 1) if kk == 2 else []) if o not in Done]
        w = after(need) if need else 63
        if steady:
            assert wcount(kk) <= w, (k, wcount(kk), w)
            w = wcount(kk)
        if not emit:
            Q.extend(vm); return
        e("s_waitcnt vmcnt(%d)" % w)
        if kk == 2: nextdelta()
        pos = {}
        for i, x in enumerate(vm): pos.setdefault(vpos[i], []).append(x)
        for q in range(NT):
            gq = ks * NT + q
            e("s_waitcnt lgkmcnt(%d)" % (2 * D - 2))
            if kk == 2 and q == NT - D: e("s_barrier")
            wread(gq + D)
            mfma(P.acc(q, 0), wreg(gq), P.act(ks, 0))
            mfma(P.acc(q, 1), wreg(gq), P.act(ks, 1))
            P.extra(q, ks, wreg(gq), tag)
            for x in pos.get(q, []): issue(x)
    def svm(k): return A(k + LA) + [("d", k // 3 + 3, n) for n in dd[k % 3]]
    Done = set()
    if PRIO and not P.early:
        e("s_cmp_lt_u32 s28, 4"); e("s_cbranch_scc1 %s_NP" % P.name); e("s_setprio 1"); lab(P.name + "_NP")
    e("s_mov_b32 %s, %d" % (s(P.sWr), P.STAGE * P.slot0)); e("s_mov_b32 %s, %d" % (s(P.sRd), P.STAGE * P.slot0))
    e("s_mov_b32 %s, %d" % (s(P.sDelta), P.RB + P.STAGE * P.slot0))
    if P.early:
        for op in S(0) + S(1) + S(2): issue(op)
        P.late_setup()
        yield
        Done = set(Q)
        ramp = [A(3) + A(4), A(5) + A(6), A(7) + S(3)]
        e("s_cmp_lg_u32 %s, 7" % s(P.sKs)); e("s_cbranch_scc1 %s_FULL" % P.name)
        Qs = list(Q)
        for op in A(3) + A(4) + A(5) + A(6) + A(7): issue(op)
        for op in S(3): issue(op)
        for base, _, _ in P.tiles: e("v_add_u32 %s, %s, %s" % (v(base), s(P.sDelta), v(base)))
        nextdelta()
        for q in range(D): wread(3 * NT + q)
        for r in range(P.nacc): e("v_mov_b32 %s, 0" % v(r))
        e("s_branch %s_JOIN" % P.name)
        Q[:] = Qs
        lab(P.name + "_FULL")
        for op in A(0) + A(1) + A(2): issue(op)
        for q in range(D): wread(q)
        for r in range(P.nacc): e("v_mov_b32 %s, 0" % v(r))
        stamp(1)
    else:
        for op in S(0): issue(op)
        P.late_setup()
        for op in A(0) + A(1): issue(op)
        for r in range(P.nacc): e("v_mov_b32 %s, 0" % v(r))
        stamp(1)
        e("s_waitcnt vmcnt(%d)" % after(S(0))); e("s_barrier")
        stamp(2)
        for q in range(D): wread(q)
        ramp = [A(2) + S(1) + A(3), A(4) + S(2) + A(5), A(6) + A(7) + S(3)]
    for k in range(3):
        kstep(k, ramp[k], list(range(NT)), "P")
        if k == 0 and P.early: stamp(2)
    if P.early:
        lab(P.name + "_JOIN")
        e("s_waitcnt vmcnt(%d)" % after(A(4))); Done = set(Q[:Q.index(A(4)[-1]) + 1])
    e("s_mov_b32 %s, %d" % (s(P.sCnt), P.K // 3 - 3))
    e("s_branch %s_MID" % P.name)
    Q0 = list(Q)
    for k in range(3, 12): kstep(k, svm(k), None, "", emit=False, steady=True)
    lab(P.name + "_LOOP")
    for u in range(U):
        if u == 1: lab(P.name + "_MID")
        for kk in range(3):
            k = 12 + u * 3 + kk
            kstep(k, svm(k), P.vmpos, "L", steady=True)
        e("s_sub_u32 %s, %s, 1" % (s(P.sCnt), s(P.sCnt)))
        e("s_cmp_lg_u32 %s, 0" % s(P.sCnt))
        if u == U - 1: e("s_cbranch_scc1 %s_LOOP" % P.name)
        else: e("s_cbranch_scc0 %s_DONE" % P.name)
    lab(P.name + "_DONE")
    stamp(3)
    K0 = P.K - 6
    Q[:] = Q0
    for k in range(3, K0): Q.extend(svm(k))
    seq = [(K0, q) for q in range(NT)]; fins = {}
    for g in P.groups:
        seq += [(k, q) for k in range(K0 + 1, P.K) for q in g]
        fins[len(seq) - 1 + 2] = g
    g0 = (K0 % AR) * NT; seen = set(); first = True
    vm = A(P.K - 1)
    def store(txt): Q.append(("s", len(Q))); e(txt)
    for i, (k, q) in enumerate(seq):
        if k not in seen:
            seen.add(k); e("s_waitcnt vmcnt(%d)" % after(A(k)))
        e("s_waitcnt lgkmcnt(%d)" % (2 * min(D - 1, len(seq) - 1 - i)))
        if i + D < len(seq):
            k2, q2 = seq[i + D]
            if k2 == P.K - 3 and first:
                first = False
                nextdelta(); e("s_waitcnt vmcnt(%d)" % after(S(P.K // 3 - 1))); e("s_barrier")
            wread(g0 + i + D, q2, k2 % 3)
        mfma(P.acc(q, 0), wreg(g0 + i), P.act(k % AR, 0))
        mfma(P.acc(q, 1), wreg(g0 + i), P.act(k % AR, 1))
        P.extra(q, k % AR, wreg(g0 + i), "T")
        if i < len(vm): issue(vm[i])
        if i == len(vm): P.tail_pre(store)
        if i in fins: P.fin(fins.pop(i), store)
    e("s_nop 7"); e("s_nop 7")
    for i in sorted(fins): P.fin(fins[i], store)
    P.after = after; P.S = S
    yield

def common_ids(vL, vG, vM, T, sWave):
    e("v_and_b32 %s, 63, v0" % v(vL))
    e("v_lshrrev_b32 %s, 6, v0" % v(T))
    e("v_lshrrev_b32 %s, 4, %s" % (v(vG), v(vL)))
    e("v_readfirstlane_b32 %s, %s" % (s(sWave), v(T)))
    e("v_and_b32 %s, 15, %s" % (v(vM), v(vL)))
def w_setup(vL, T, sWave, sCol, stride, vD, vDT, vMain, vTail, TAILB, perm=0):
    def pp():
        if perm:
            perm_pi(T + 2, T, T + 3, T + 3); e("v_mov_b32 %s, %s" % (v(T), v(T + 2)))
    e("s_mul_i32 s40, %s, 12" % s(sWave))
    e("s_mul_i32 s41, %s, 288" % s(sCol)); e("s_and_b32 s42, %s, 1" % s(sCol))
    e("s_lshl_b32 s43, s42, 5"); e("s_add_u32 s43, s43, s41")
    e("s_xor_b32 s42, s42, 1"); e("s_lshl_b32 s42, s42, 8"); e("s_add_u32 s42, s42, s41")
    e("s_mov_b32 s41, %d" % stride)
    for n in range(3):
        e("v_lshrrev_b32 %s, 4, %s" % (v(T), v(vL)))
        e("v_add3_u32 %s, %s, s40, %d" % (v(T), v(T), 4 * n))
        e("v_bfe_u32 %s, %s, 1, 3" % (v(T + 1), v(vL)))
        e("v_xor_b32 %s, %s, %s" % (v(T + 1), v(T + 1), v(T)))
        e("v_and_b32 %s, 7, %s" % (v(T + 1), v(T + 1)))
        pp()
        e("v_mul_lo_u32 %s, %s, s41" % (v(T), v(T)))
        e("v_lshl_add_u32 %s, %s, 5, %s" % (v(T), v(T + 1), v(T)))
        e("v_and_b32 %s, 1, %s" % (v(T + 1), v(vL)))
        e("v_lshl_add_u32 %s, %s, 4, %s" % (v(T), v(T + 1), v(T)))
        e("v_add_u32 %s, s43, %s" % (v(vD + n), v(T)))
        e("s_sub_u32 s43, s43, 1024")
    e("v_lshrrev_b32 %s, 1, %s" % (v(T), v(vL)))
    e("v_add_u32 %s, s40, %s" % (v(T), v(T)))
    pp()
    e("v_mul_lo_u32 %s, %s, s41" % (v(T), v(T)))
    e("v_lshl_add_u32 %s, %s, 4, %s" % (v(T), v(T + 1), v(T)))
    e("v_add_u32 %s, s42, %s" % (v(vDT), v(T)))
def w_setup_rd(vL, T, vMain, vTail, TAILB):
    e("v_lshrrev_b32 %s, 2, %s" % (v(T), v(vL)))
    e("v_and_b32 %s, 3, %s" % (v(T + 1), v(vL)))
    e("v_and_b32 %s, 7, %s" % (v(T + 2), v(T)))
    e("v_lshlrev_b32 %s, 8, %s" % (v(T + 3), v(T)))
    e("v_lshl_add_u32 %s, %s, 5, %s" % (v(T + 3), v(T + 2), v(T + 3)))
    e("v_lshl_add_u32 %s, %s, 3, %s" % (v(vMain), v(T + 1), v(T + 3)))
    for i in range(1, 8): e("v_xor_b32 %s, %d, %s" % (v(vMain + i), i << 5, v(vMain)))
    e("v_lshlrev_b32 %s, 3, %s" % (v(vTail), v(vL)))
    e("v_add_u32 %s, %d, %s" % (v(vTail), TAILB, v(vTail)))

def gen_k0():
    sX, sXN, sWQ, sWQP, sWO, sWOP = 8, 12, 16, 20, 24, 28
    kstart("k0_kernel")
    e("s_cmp_ge_u32 s2, 256"); e("s_cbranch_scc1 K0_END"); stamp_init()
    e("s_load_dwordx4 s[48:51], s[0:1], 0"); e("s_load_dwordx2 s[52:53], s[0:1], 16"); e("s_load_dwordx2 s[54:55], s[0:1], 64")
    e("s_load_dwordx2 s[34:35], s[0:1], 32")
    e("v_lshrrev_b32 v1, 7, v0"); e("v_and_b32 v2, 127, v0"); e("s_nop 0")
    e("v_readfirstlane_b32 s33, v1")
    e("s_waitcnt lgkmcnt(0)")
    srd(sX, 48, 2048 * 1152); srd(sWQ, 50, 576 * 3456); srd(sWO, 52, WO_BYTES)
    srd(sXN, 54, O_BYTES, XN_OFF); srd(sWQP, 54, WQ_BYTES, WQ_OFF); srd(sWOP, 54, WO_BYTES, WO_OFF)
    def pf():
        if not PF: return
        srd(36, 34, 576 * 9216)
        if CPF:
            n = len(L)
            e("s_getpc_b64 s[56:57]")
            lab("K0_PC%d" % n)
            e("v_lshrrev_b32 v72, 6, v0"); e("s_lshr_b32 s58, s2, 3"); e("s_lshl_b32 s58, s58, 2"); e("v_readfirstlane_b32 s59, v72")
            e("s_add_u32 s58, s58, s59"); e("s_mul_i32 s58, s58, %d" % (64 * CPF)); e("s_min_u32 s58, s58, K1_LAST-k1_kernel-%d" % (64 * CPF))
            e("s_add_u32 s58, s58, k1_kernel-K0_PC%d" % n)
            e("s_add_u32 s56, s56, s58"); e("s_addc_u32 s57, s57, 0")
            for i in range(CPF): e("s_load_dword s60, s[56:57], %d" % (64 * i))
        e("s_lshr_b32 s44, s2, 3"); e("s_mul_i32 s44, s44, %d" % (18 * 9216)); e("s_and_b32 s45, s2, 7"); e("s_mul_i32 s45, s45, 1152"); e("s_add_u32 s44, s44, s45")
        for n in range(2):
            e("v_add_u32 v72, %d, v0" % (256 * n)); e("v_min_u32 v72, 323, v72")
            divc(73, 74, 72, 18, 3641, 16)
            e("v_mul_u32_u24 v73, 9216, v73"); e("v_lshl_add_u32 v73, v74, 6, v73")
            e("buffer_load_dword v75, v73, s[36:39], s44 offen")
    e("s_cmp_eq_u32 s33, 0"); e("s_cbranch_scc0 K0_PACK")
    e("s_lshl_b32 s40, s2, 3")
    e("v_lshrrev_b32 v3, 4, v2"); e("v_add_u32 v3, s40, v3"); e("v_and_b32 v4, 15, v2")
    e("v_mul_u32_u24 v5, 1152, v3"); e("v_lshl_add_u32 v5, v4, 3, v5")
    for i in range(9): e("buffer_load_dwordx2 %s, v5, %s, 0 offen offset:%d" % (v(10 + 2 * i, 2), s(sX, 4), i * 128))
    pf()
    e("v_lshrrev_b32 v6, 4, v3"); e("v_lshrrev_b32 v7, 3, v4"); e("v_lshl_add_u32 v6, v7, 7, v6")
    e("v_lshlrev_b32 v6, 10, v6"); e("v_and_b32 v7, 3, v4"); e("v_lshl_add_u32 v6, v7, 8, v6")
    e("v_and_b32 v7, 15, v3"); e("v_lshl_add_u32 v6, v7, 4, v6"); e("v_bfe_u32 v7, v4, 2, 1"); e("v_lshl_add_u32 v6, v7, 3, v6")
    e("s_mov_b32 s40, 0x%08x" % f2u(1.0 / 576.0)); e("s_mov_b32 s41, 0x%08x" % f2u(1e-5))
    X = 32
    e("v_mov_b32 v8, 0")
    for i in range(18):
        if i % 2 == 0: e("s_waitcnt vmcnt(%d)" % (8 - i // 2 + 2 * PF))
        e("v_lshlrev_b32 %s, 16, %s" % (v(X + 2 * i), v(10 + i)))
        e("v_and_b32 %s, 0xffff0000, %s" % (v(X + 2 * i + 1), v(10 + i)))
        e("v_add_f32 v8, v8, %s" % v(X + 2 * i)); e("v_add_f32 v8, v8, %s" % v(X + 2 * i + 1))
    def rowred(r):
        for sh in (8, 4, 2, 1):
            nop(2); e("v_add_f32_dpp %s, %s, %s row_ror:%d row_mask:0xf bank_mask:0xf" % (v(r), v(r), v(r), sh))
    rowred(8)
    e("v_mul_f32 v8, s40, v8")
    bf16r(9, 8)
    e("v_mov_b32 v70, 0")
    for i in range(36):
        e("v_sub_f32 v71, %s, v8" % v(X + i)); e("v_fmac_f32 v70, v71, v71")
    rowred(70)
    e("v_mul_f32 v70, s40, v70"); bf16r(70, 70)
    e("v_add_f32 v70, s41, v70"); bf16r(70, 70)
    e("v_sqrt_f32 v70, v70"); nop(1); bf16r(70, 70)
    e("v_rcp_f32 v70, v70")
    for i in range(18):
        a = X + 2 * i
        e("v_sub_f32 %s, %s, v9" % (v(a), v(a))); e("v_sub_f32 %s, %s, v9" % (v(a + 1), v(a + 1)))
        e("v_cvt_pk_bf16_f32 %s, %s, %s" % (v(a), v(a), v(a + 1)))
        e("v_and_b32 %s, 0xffff0000, %s" % (v(a + 1), v(a))); e("v_lshlrev_b32 %s, 16, %s" % (v(a), v(a)))
        e("v_mul_f32 %s, %s, v70" % (v(a), v(a))); e("v_mul_f32 %s, %s, v70" % (v(a + 1), v(a + 1)))
        e("v_cvt_pk_bf16_f32 %s, %s, %s" % (v(10 + i), v(a), v(a + 1)))
        if i % 2 == 1:
            k = i // 2
            e("s_mov_b32 s42, %d" % (k * 262144))
            e("buffer_store_dwordx2 %s, v6, %s, s42 offen" % (v(10 + i - 1, 2), s(sXN, 4)))
    stamp_out(0, 2, 2)
    e("s_endpgm")
    lab("K0_PACK")
    e("s_lshr_b32 s40, s2, 3"); e("s_and_b32 s41, s2, 7"); e("s_mul_i32 s41, s41, 72"); e("s_mul_i32 s40, s40, 36")
    e("v_lshrrev_b32 v3, 5, v2"); e("v_add_u32 v3, s41, v3"); e("v_mul_u32_u24 v3, 3456, v3")
    e("v_and_b32 v4, 31, v2")
    e("v_lshrrev_b32 v5, 3, v4"); e("v_and_b32 v6, 7, v4")
    e("v_min_u32 v7, 2, v6")
    e("v_cmp_eq_u32 vcc, 3, v5"); nop(2)
    e("v_cndmask_b32 v5, v5, v7, vcc"); e("v_cndmask_b32 v6, v6, 8, vcc")
    e("v_mul_u32_u24 v5, 1152, v5"); e("v_lshl_add_u32 v5, v6, 2, v5"); e("v_add3_u32 v3, v3, v5, s40")
    e("s_mul_i32 s42, s2, 9216"); e("v_lshlrev_b32 v4, 2, v2"); e("v_add_u32 v4, s42, v4")
    for i in range(18):
        e("s_mov_b32 s43, %d" % (i * 4 * 3456))
        e("buffer_load_dword %s, v3, %s, s43 offen" % (v(10 + i), s(sWQ, 4)))
    e("s_mul_i32 s40, s2, 162")
    for n in range(2):
        b = 40 + n * 12
        e("v_add_u32 %s, s40, v2" % v(b))
        if n: e("v_add_u32 %s, 128, %s" % (v(b), v(b)))
        e("s_mov_b32 s41, 59652324"); e("v_mul_hi_u32 %s, %s, s41" % (v(b + 1), v(b)))
        e("v_mul_u32_u24 %s, 72, %s" % (v(b + 2), v(b + 1))); e("v_sub_u32 %s, %s, %s" % (v(b + 2), v(b), v(b + 2)))
        e("v_mov_b32 %s, %s" % (v(b + 4), v(b + 1)))
        e("v_lshrrev_b32 %s, 4, %s" % (v(b + 5), v(b + 4))); e("v_mul_u32_u24 %s, 18, %s" % (v(b + 5), v(b + 5)))
        e("v_and_b32 %s, 15, %s" % (v(b + 6), v(b + 4))); e("v_add_u32 %s, %s, %s" % (v(b + 5), v(b + 5), v(b + 6)))
        e("v_bfe_u32 %s, %s, 1, 5" % (v(b + 6), v(b + 4))); e("v_mul_u32_u24 %s, 18, %s" % (v(b + 6), v(b + 6)))
        e("v_and_b32 %s, 1, %s" % (v(b + 7), v(b + 4))); e("v_add3_u32 %s, %s, %s, 16" % (v(b + 6), v(b + 6), v(b + 7)))
        e("v_cmp_gt_u32 vcc, 512, %s" % v(b + 4)); nop(2)
        e("v_cndmask_b32 %s, %s, %s, vcc" % (v(b + 5), v(b + 6), v(b + 5)))
        e("v_mul_u32_u24 %s, 1152, %s" % (v(b + 5), v(b + 5))); e("v_lshl_add_u32 %s, %s, 4, %s" % (v(b + 5), v(b + 2), v(b + 5)))
        e("v_lshlrev_b32 %s, 4, %s" % (v(b), v(b)))
        if n:
            e("v_mov_b32 %s, 0x80000000" % v(b + 7)); e("v_cmp_gt_u32 vcc, 34, v2"); nop(2)
            e("v_cndmask_b32 %s, %s, %s, vcc" % (v(b), v(b + 7), v(b))); e("v_cndmask_b32 %s, %s, %s, vcc" % (v(b + 5), v(b + 7), v(b + 5)))
        e("buffer_load_dwordx4 %s, %s, %s, 0 offen" % (v(b + 8, 4), v(b + 5), s(sWO, 4)))
    pf()
    for i in range(18):
        e("s_waitcnt vmcnt(%d)" % (19 + 2 * PF))
        e("buffer_store_dword %s, v4, %s, 0 offen offset:%d" % (v(10 + i), s(sWQP, 4), 0) if i == 0 else
          "buffer_store_dword %s, v4, %s, s43 offen" % (v(10 + i), s(sWQP, 4)))
        e("s_mov_b32 s43, %d" % ((i + 1) * 512))
    e("s_waitcnt vmcnt(%d)" % (18 + 2 * PF))
    for n in range(2):
        b = 40 + n * 12
        e("buffer_store_dwordx4 %s, %s, %s, 0 offen" % (v(b + 8, 4), v(b), s(sWOP, 4)))
    if FUSE3:
        e("s_cmp_ge_u32 s2, %d" % ((1 << (JSH - 2)) + (1 << (RSH - 3)))); e("s_cbranch_scc1 K0_NOFLAG")
        srd(36, 54, (512 << JSH) + (256 << RSH), FLAG_OFF)
        for r in range(4): e("v_mov_b32 v%d, 0" % (76 + r))
        e("v_lshlrev_b32 v72, 4, v2"); e("s_lshl_b32 s44, s2, 11")
        e("buffer_store_dwordx4 v[76:79], v72, s[36:39], s44 offen")
        lab("K0_NOFLAG")
    stamp_out(0, 2, 2)
    lab("K0_END")
    e("s_endpgm")

PW1 = int(os.environ.get('PW1', '7')); HF = int(os.environ.get('HF', '1')); PP = int(os.environ.get('PP', '0'))
K1_STAGE = 96 * 416; K1_NS = 4; K1_LDS = K1_STAGE * K1_NS
def gen_k1():
    P = Loop(); P.name = "K1"; P.STAGE = K1_STAGE; P.NS = K1_NS; P.D = 5; P.AR = 6; P.RW = 6; P.asc = ""; P.early = 0; P.slot0 = 0; P.RB = 0
    EX = 104; ACT = 108; WR = 180; vMain = 204; vTail = 212; vQK = 213; vD = 217; vDT = 220; vDQ = 221; ST = 136
    vA0, vA1, vAH = 223, 224, 225; vL, vG, vM, vTid = 226, 227, 228, 229; T = 232
    acc = lambda i, u: (i * 2 + u) * 4
    P.acc = acc; P.act = lambda st, f: ACT + (st * 3 + f) * 4; P.WR = WR; P.nacc = 108
    sX, sW1, sWQ, sH, sO = 8, 12, 16, 20, 24
    sWave, sJ, sMt = 28, 29, 30
    P.sCnt, P.sDelta, P.sRd, P.sWr, P.sT, P.sOffA, P.sAct = 31, 32, 33, 34, 35, 36, sX
    sOffW1, sOffWQ, sBM, sBT, sBQ = 37, 38, 39, 44, 45
    TAILB = 96 * 256; QKB = TAILB + 96 * 32
    kstart("k1_kernel")
    e("s_cmp_ge_u32 s2, 256"); e("s_cbranch_scc1 K1_END"); stamp_init()
    e("s_load_dwordx4 s[56:59], s[0:1], 32"); e("s_load_dwordx2 s[54:55], s[0:1], 64")
    e("s_load_dwordx2 s[60:61], s[0:1], 48"); e("s_load_dwordx2 s[52:53], s[0:1], 0")
    common_ids(vL, vG, vM, T, sWave)
    e("v_mov_b32 %s, v0" % v(vTid))
    e("s_and_b32 s40, s2, 7"); e("s_lshr_b32 s41, s2, 3")
    e("s_lshr_b32 %s, s41, 2" % s(sMt)); e("s_and_b32 s41, s41, 3"); e("s_lshl_b32 s40, s40, 2"); e("s_add_u32 %s, s40, s41" % s(sJ))
    w_setup(vL, T, sWave, sJ, 9216, vD, vDT, vMain, vTail, TAILB)
    e("s_mul_i32 s41, %s, %d" % (s(sJ), 576 * 128))
    for n in range(2):
        e("v_lshrrev_b32 %s, 3, %s" % (v(T), v(vL)))
        e("v_add3_u32 %s, %s, s40, %d" % (v(T), v(T), 8 * n))
        e("v_lshrrev_b32 %s, 1, %s" % (v(T + 1), v(T)))
        e("v_bfe_u32 %s, %s, 1, 2" % (v(T + 2), v(vL)))
        e("v_xor_b32 %s, %s, %s" % (v(T + 1), v(T + 1), v(T + 2)))
        e("v_and_b32 %s, 3, %s" % (v(T + 1), v(T + 1)))
        e("v_lshlrev_b32 %s, 7, %s" % (v(T), v(T)))
        e("v_lshl_add_u32 %s, %s, 5, %s" % (v(T), v(T + 1), v(T)))
        e("v_and_b32 %s, 1, %s" % (v(T + 1), v(vL)))
        e("v_lshl_add_u32 %s, %s, 4, %s" % (v(T), v(T + 1), v(T)))
        e("v_add_u32 %s, s41, %s" % (v(vDQ + n), v(T)))
        e("s_sub_u32 s41, s41, 1024")
    Lsave = len(L)
    w_setup_rd(vL, T, vMain, vTail, TAILB)
    e("v_lshrrev_b32 %s, 2, %s" % (v(T), v(vL)))
    e("v_bfe_u32 %s, %s, 3, 2" % (v(T + 1), v(vL)))
    e("v_lshlrev_b32 %s, 7, %s" % (v(T), v(T)))
    e("v_lshl_add_u32 %s, %s, 5, %s" % (v(T), v(T + 1), v(T)))
    e("v_and_b32 %s, 3, %s" % (v(T + 1), v(vL)))
    e("v_lshl_add_u32 %s, %s, 3, %s" % (v(T), v(T + 1), v(T)))
    for i in range(4):
        e("v_xor_b32 %s, %d, %s" % (v(vQK + i), i << 5, v(T)))
        e("v_add_u32 %s, %d, %s" % (v(vQK + i), QKB, v(vQK + i)))
    e("s_lshl_b32 s40, %s, 4" % s(sMt)); e("s_lshl_b32 s41, %s, 1" % s(sWave)); e("s_add_u32 s41, s41, s40")
    e("s_lshl_b32 s41, s41, 10")
    e("v_lshlrev_b32 %s, 4, %s" % (v(T), v(vL)))
    e("v_add_u32 %s, s41, %s" % (v(vA0), v(T)))
    e("s_sub_u32 s41, s40, 1"); e("s_lshl_b32 s41, s41, 10")
    e("s_cmp_eq_u32 %s, 0" % s(sMt)); e("s_cselect_b32 s41, 0x80000000, s41")
    e("s_cmp_gt_u32 %s, 2" % s(sWave)); e("s_cselect_b32 s41, 0x80000000, s41")
    e("v_add_u32 %s, s41, %s" % (v(vAH), v(T)))
    late = L[Lsave:]; del L[Lsave:]
    P.late_setup = lambda: L.extend(late)
    e("s_mul_i32 %s, %s, 3072" % (s(sBM), s(sWave)))
    e("s_mul_i32 %s, %s, 384" % (s(sBT), s(sWave))); e("s_add_u32 %s, %s, %d" % (s(sBT), s(sBT), TAILB))
    e("s_mul_i32 %s, %s, 1536" % (s(sBQ), s(sWave))); e("s_add_u32 %s, %s, %d" % (s(sBQ), s(sBQ), QKB))
    e("s_mov_b32 %s, 0" % s(sOffW1)); e("s_mov_b32 %s, 0" % s(sOffWQ)); e("s_mov_b32 %s, 0" % s(P.sOffA))
    e("s_waitcnt lgkmcnt(0)")
    srd(sX, 54, O_BYTES, XN_OFF); srd(sW1, 56, 576 * 9216); srd(sH, 54, H_BYTES, H_OFF); srd(sO, 54, O_BYTES, O_OFF)
    srd(sWQ, 54, WQ_BYTES, WQ_OFF)
    e("s_add_u32 s40, %s, 1" % s(sJ)); e("s_mul_i32 %s, s40, %d" % (s(sWQ + 2), 576 * 128))
    P.tiles = [(vMain + i, 4096, 8192) for i in range(8)] + [(vTail, 512, 1024)] + [(vQK + i, 2048, 4096) for i in range(4)]
    P.dmas = [(vD, sW1, sOffW1, sBM, 0, 64), (vD + 1, sW1, sOffW1, sBM, 1024, 64), (vD + 2, sW1, sOffW1, sBM, 2048, 64),
              (vDT, sW1, sOffW1, sBT, 0, 24), (vDQ, sWQ, sOffWQ, sBQ, 0, 64), (vDQ + 1, sWQ, sOffWQ, sBQ, 1024, 32)]
    P.dsteps = [(sOffW1, 96 * 9216), (sOffWQ, 96 * 128)]
    P.vA = [(vA0, 0), (vA0, 1024), (vAH, 0)]; P.vmpos = [0, 2, 4, 7, 10]; P.dd = [[0, 1], [2, 3], [4, 5]]
    def extra(q, kk, wr, tag):
        if q >= 10:
            e("s_cmp_eq_u32 %s, %d" % (s(sWave), q - 10)); e("s_cbranch_scc0 K1_X%s%d_%d" % (tag, q, kk))
            mfma(EX, wr, P.act(kk, 2))
            lab("K1_X%s%d_%d" % (tag, q, kk))
    P.extra = extra
    P.K = 18; P.groups = [[0, 1, 2, 3], [4, 5], [6, 7, 8], [9, 10], [11, 12]]
    def tail_pre(store):
        e("s_mul_i32 s40, %s, 9" % s(sJ)); e("s_and_b32 s41, %s, 1" % s(sJ))
        e("s_add_u32 s47, s40, s41"); e("s_lshl_b32 s47, s47, 16")
        e("s_xor_b32 s43, s41, 1"); e("s_lshl_b32 s43, s43, 3"); e("s_add_u32 s43, s43, s40"); e("s_lshr_b32 s43, s43, 1"); e("s_lshl_b32 s43, s43, 17")
        e("s_lshl_b32 s41, s41, 9"); e("s_add_u32 s43, s43, s41")
        for i in range(1, 4): e("s_add_u32 s%d, s47, %d" % (47 + i, i << 17))
        e("s_lshl_b32 s40, %s, 4" % s(sMt)); e("s_lshl_b32 s41, %s, 1" % s(sWave)); e("s_add_u32 s41, s41, s40"); e("s_lshl_b32 s41, s41, 10")
        e("v_and_b32 v253, 1, %s" % v(vG)); e("v_lshlrev_b32 v253, 10, v253"); e("v_lshl_add_u32 v253, %s, 4, v253" % v(vM))
        e("v_lshrrev_b32 v248, 1, %s" % v(vG)); e("v_lshl_add_u32 v253, v248, 8, v253"); e("v_add_u32 v253, s41, v253")
        if PF:
            srd(sW1, 58, 4608 * 1152)
            e("s_and_b32 s40, s2, 7"); e("s_mul_i32 s40, s40, %d" % (672 * 1152)); e("s_lshr_b32 s41, s2, 3"); e("s_mul_i32 s41, s41, %d" % (378 * 64))
            e("s_add_u32 s40, s40, s41")
            e("v_min_u32 v248, 377, %s" % v(vTid)); e("v_lshlrev_b32 v248, 6, v248")
            store("buffer_load_dword v249, v248, %s, s40 offen" % s(sW1, 4))
    def fin(g, store):
        g = [i for i in g if i <= 8]
        for i in g:
            d = acc(i, 0)
            for n in range(4): e("v_cvt_pk_bf16_f32 %s, %s, %s" % (v(d + n), v(d + 2 * n), v(d + 2 * n + 1)))
            for n in range(4): e("v_pk_max_i16 %s, %s, 0" % (v(d + n), v(d + n)))
        if g: nop(2)
        for i in g:
            d = acc(i, 0)
            e("v_permlane16_swap_b32 %s, %s" % (v(d), v(d + 2))); e("v_permlane16_swap_b32 %s, %s" % (v(d + 1), v(d + 3)))
        if g: nop(2)
        for i in g:
            store("buffer_store_dwordx4 %s, v253, %s, %s offen offset:%d%s" % (v(acc(i, 0), 4), s(sH, 4), "s43" if i == 8 else s(47 + (i >> 1)), (i & 1) * 512, HSC))
    P.tail_pre = tail_pre; P.fin = fin
    next(mainloop(P))
    e("s_waitcnt vmcnt(%d)" % P.after(P.S(6))); e("s_barrier")
    stamp(4)
    sFl = 20; sKs = 51
    def flag(soff, off):
        e("s_mov_b64 exec, 1")
        e("buffer_store_dword v251, v250, %s, %s offen offset:%d sc1" % (s(sFl, 4), soff, off))
        e("s_mov_b64 exec, -1")
    def poll(name, x4, oflag):
        R = (244, 240, 236)
        def ld(r):
            if x4: e("buffer_load_dwordx4 v[%d:%d], v249, %s, s47 offen sc1" % (r, r + 3, s(sFl, 4)))
            else: e("buffer_load_dword v%d, v250, %s, s47 offen sc1" % (r, s(sFl, 4)))
        e("s_mov_b32 s42, 0")
        ld(R[0])
        if oflag:
            e("s_waitcnt vmcnt(1)"); flag("s49", 0)
            e("v_mov_b32 v%d, 0" % R[1])
        elif PP: e("s_sleep %d" % SLP); ld(R[1])
        lab(name)
        for i in range(3):
            c = R[i]
            if PP: e("s_sleep %d" % SLP); ld(R[(i + 2) % 3]); e("s_waitcnt vmcnt(2)")
            else: e("s_waitcnt vmcnt(%d)" % (1 if oflag else 0))
            if x4: e("v_min_u32 v%d, v%d, v%d" % (c, c, c + 1)); e("v_min3_u32 v%d, v%d, v%d, v%d" % (c, c, c + 2, c + 3))
            e("v_cmp_eq_u32 vcc, 1, v%d" % c); e("s_nop 3")
            e("s_and_b64 s[40:41], vcc, s[2:3]"); e("s_cmp_eq_u64 s[40:41], s[2:3]"); e("s_cbranch_scc1 %sX" % name)
            if not PP:
                e("s_sleep %d" % SLP); ld(R[(i + 1) % 3])
                if oflag: e("s_waitcnt vmcnt(0)")
        e("s_add_u32 s42, s42, 1"); e("s_cmp_lt_u32 s42, 20000"); e("s_cbranch_scc1 %s" % name)
        lab(name + "X")
    QB, KB, VB = 0, 20480, 20480 + 21760
    e("s_lshl_b32 s44, %s, 5" % s(sWave))
    e("v_add_u32 %s, s44, %s" % (v(T + 9), v(vM)))
    e("v_mul_u32_u24 %s, 80, %s" % (v(T + 9), v(T + 9)))
    e("v_lshl_add_u32 %s, %s, 4, %s" % (v(T + 8), v(vG), v(T + 9)))
    e("v_mul_u32_u24 %s, %d, %s" % (v(T + 10), VB + 1280 - QB, v(vG)))
    e("v_add_u32 %s, %s, %s" % (v(T + 10), v(T + 10), v(T + 9)))
    for u in range(2):
        e("ds_write_b128 %s, %s offset:%d" % (v(T + 8), v(acc(9, u), 4), QB + u * 1280))
        e("ds_write_b128 %s, %s offset:%d" % (v(T + 8), v(acc(10, u), 4), KB + 1280 + u * 1280))
        e("ds_write_b128 %s, %s offset:%d" % (v(T + 8), v(acc(11, u), 4), VB + 1280 + u * 1280))
        e("s_mov_b32 exec_hi, 0")
        e("ds_write_b64 %s, %s offset:%d" % (v(T + 10), v(acc(12, u), 2), QB + 64 + u * 1280))
        e("s_mov_b32 exec_lo, 0xffff")
        e("ds_write_b64 %s, %s offset:%d" % (v(T + 9), v(acc(12, u) + 2, 2), KB + 1280 + 64 + u * 1280))
        e("s_mov_b64 exec, -1")
    e("v_mul_u32_u24 %s, 80, %s" % (v(T + 9), v(vM)))
    e("v_lshl_add_u32 %s, %s, 4, %s" % (v(T + 10), v(vG), v(T + 9)))
    e("s_cmp_gt_u32 %s, 1" % s(sWave)); e("s_cbranch_scc1 K1_H2")
    e("s_mul_i32 s44, %s, %d" % (s(sWave), VB - KB))
    e("v_add_u32 %s, s44, %s" % (v(T + 10), v(T + 10)))
    e("ds_write_b128 %s, %s offset:%d" % (v(T + 10), v(EX, 4), KB))
    e("s_branch K1_HD")
    lab("K1_H2")
    e("s_cmp_eq_u32 %s, 2" % s(sWave)); e("s_cbranch_scc0 K1_HD")
    e("s_mov_b64 exec, 0xffff")
    e("ds_write_b64 %s, %s offset:%d" % (v(T + 9), v(EX + 2, 2), KB + 64))
    e("s_mov_b32 exec_lo, 0xffff0000")
    e("ds_write_b64 %s, %s offset:%d" % (v(T + 9), v(EX, 2), VB + 64))
    e("s_mov_b64 exec, -1")
    lab("K1_HD")
    stamp(5)
    e("s_waitcnt lgkmcnt(0)"); e("s_barrier")
    stamp(6)
    Qr = 0; Kr = 12; LG = 112; Or = 124; vB, vBt, vRow = T + 12, T + 13, T + 14
    e("v_lshrrev_b32 %s, 5, %s" % (v(T + 15), v(vTid)))
    e("v_lshl_add_u32 %s, %s, 4, %s" % (v(vRow), v(T + 15), v(vM)))
    e("v_and_b32 %s, 1, %s" % (v(T), v(vG)))
    e("v_mul_u32_u24 %s, 80, %s" % (v(T + 1), v(vRow)))
    e("v_lshl_add_u32 %s, %s, 5, %s" % (v(vB), v(T), v(T + 1)))
    e("v_lshl_add_u32 %s, %s, 2, %s" % (v(vBt), v(T), v(T + 1)))
    def rec(dst, base_off):
        e("ds_read_b128 %s, %s offset:%d" % (v(dst, 4), v(vB), base_off))
        e("ds_read_b128 %s, %s offset:%d" % (v(dst + 4, 4), v(vB), base_off + 16))
        e("ds_read_b32 %s, %s offset:%d" % (v(dst + 8), v(vBt), base_off + 64))
    rec(Qr, QB)
    for w in range(4): rec(Kr + w * 12, KB + 1280 - 160 * w)
    srd(sFl, 54, 512 << JSH, FLAG_OFF)
    e("v_and_b32 v250, 7, %s" % v(vL)); e("v_lshlrev_b32 v250, 2, v250"); e("v_lshrrev_b32 v251, 3, %s" % v(vL))
    e("v_lshl_add_u32 v250, v251, %d, v250" % JSH); e("v_mov_b32 v251, 1")
    e("s_lshl_b32 s47, %s, %d" % (s(sMt), JSH + 5)); e("s_lshl_b32 s48, %s, %d" % (s(sJ), JSH)); e("s_add_u32 s48, s48, s47")
    e("s_lshl_b32 s49, %s, 2" % s(sWave)); e("s_add_u32 s48, s48, s49"); e("s_add_u32 s49, s48, %d" % (256 << JSH))
    if HF: e("s_waitcnt vmcnt(0)"); flag("s48", 0)
    k2 = gen_k2(vL, vG, vM, vTid, None)
    next(k2)
    e("s_mov_b32 s50, s2")
    e("s_mul_i32 s40, %s, 14" % s(sKs)); e("s_add_u32 s41, s40, 16"); e("s_mul_i32 s40, s40, 21846"); e("s_lshr_b32 s40, s40, 16")
    e("s_mul_i32 s41, s41, 21846"); e("s_lshr_b32 s41, s41, 16"); e("s_min_u32 s41, s41, 32"); e("s_sub_u32 s41, s41, s40"); e("s_lshl_b32 s41, s41, 3")
    e("s_bfm_b64 s[2:3], s41, 0"); e("s_lshl_b32 s40, s40, %d" % JSH)
    e("s_cmp_eq_u32 %s, 7" % s(sKs)); e("s_cselect_b32 s40, %d, s40" % (256 << JSH)); e("s_cselect_b64 s[2:3], -1, s[2:3]"); e("s_add_u32 s47, s47, s40")
    e("s_lshl_b32 s40, %s, 8" % s(sMt))
    e("v_add_u32 %s, s40, %s" % (v(vRow), v(vRow)))
    e("s_mov_b32 s41, 0x%08x" % f2u(18 ** -0.5 * 1.4426950408889634))
    e("v_mov_b32 %s, 0x%08x" % (v(T + 2), f2u(-1e9 * 1.4426950408889634)))
    for w in range(8):
        e("s_waitcnt lgkmcnt(%d)" % (9 if w < 5 else 9 - 3 * (w - 4)))
        kr = Kr + w * 12
        e("v_mul_f32 %s, %s, %s" % (v(LG + w), v(Qr), v(kr)))
        for d in range(1, 9): e("v_fmac_f32 %s, %s, %s" % (v(LG + w), v(Qr + d), v(kr + d)))
        if w < 4: rec(Kr + (w + 4) * 12, KB + 1280 - 160 * (w + 4))
    for w in range(5): rec(Kr + w * 12, VB + 1280 - 160 * w)
    for w in range(8): e("v_mov_b32 %s, %s" % (v(Or + w), v(LG + w)))
    nop(2)
    for w in range(8): e("v_permlane16_swap_b32 %s, %s" % (v(LG + w), v(Or + w)))
    nop(2)
    for w in range(8):
        e("v_add_f32 %s, %s, %s" % (v(LG + w), v(LG + w), v(Or + w)))
        e("v_cmp_le_u32 vcc, %d, %s" % (2 * w, v(vRow)))
        e("v_mul_f32 %s, s41, %s" % (v(LG + w), v(LG + w)))
        nop(1)
        e("v_cndmask_b32 %s, %s, %s, vcc" % (v(LG + w), v(T + 2), v(LG + w)))
    e("v_max3_f32 %s, %s, %s, %s" % (v(T + 3), v(LG), v(LG + 1), v(LG + 2)))
    e("v_max3_f32 %s, %s, %s, %s" % (v(T + 3), v(T + 3), v(LG + 3), v(LG + 4)))
    e("v_max3_f32 %s, %s, %s, %s" % (v(T + 3), v(T + 3), v(LG + 5), v(LG + 6)))
    e("v_max_f32 %s, %s, %s" % (v(T + 3), v(T + 3), v(LG + 7)))
    for w in range(8):
        e("v_sub_f32 %s, %s, %s" % (v(LG + w), v(LG + w), v(T + 3)))
        e("v_exp_f32 %s, %s" % (v(LG + w), v(LG + w)))
    nop(1)
    e("v_add_f32 %s, %s, %s" % (v(T + 4), v(LG), v(LG + 1)))
    for w in range(2, 8): e("v_add_f32 %s, %s, %s" % (v(T + 4), v(T + 4), v(LG + w)))
    e("v_rcp_f32 %s, %s" % (v(T + 4), v(T + 4)))
    if not HF: e("s_waitcnt vmcnt(12)"); flag("s48", 0)
    for w in range(8):
        e("s_waitcnt lgkmcnt(%d)" % (3 * (min(w + 4, 7) - w)))
        kr = Kr + w * 12
        for d in range(9):
            if w == 0: e("v_mul_f32 %s, %s, %s" % (v(Or + d), v(LG), v(kr + d)))
            else: e("v_fmac_f32 %s, %s, %s" % (v(Or + d), v(LG + w), v(kr + d)))
        if w + 5 < 8: rec(Kr + (w + 5) * 12, VB + 1280 - 160 * (w + 5))
    for d in range(9): e("v_mul_f32 %s, %s, %s" % (v(Or + d), v(T + 4), v(Or + d)))
    for d in range(4): e("v_cvt_pk_bf16_f32 %s, %s, %s" % (v(Qr + d), v(Or + 2 * d), v(Or + 2 * d + 1)))
    e("v_mov_b32 %s, %s" % (v(Or + 9), v(Or + 8)))
    nop(2)
    e("v_permlane16_swap_b32 %s, %s" % (v(Or + 8), v(Or + 9)))
    nop(2)
    e("v_cvt_pk_bf16_f32 %s, %s, %s" % (v(Qr + 4), v(Or + 8), v(Or + 9)))
    e("s_lshl_b32 s40, %s, 4" % s(sMt))
    e("v_add_u32 %s, s40, %s" % (v(T + 5), v(T + 15)))
    e("v_lshlrev_b32 %s, 10, %s" % (v(T + 5), v(T + 5)))
    e("v_lshl_add_u32 %s, %s, 4, %s" % (v(T + 5), v(vM), v(T + 5)))
    e("v_lshl_add_u32 %s, %s, 8, %s" % (v(T + 6), v(T), v(T + 5)))
    e("s_lshr_b32 s42, %s, 1" % s(sJ)); e("s_lshl_b32 s42, s42, 17"); e("s_and_b32 s41, %s, 1" % s(sJ)); e("s_lshl_b32 s41, s41, 9"); e("s_add_u32 s42, s42, s41")
    e("s_bfe_u32 s43, %s, 0x20002" % s(sJ)); e("s_lshl_b32 s43, s43, 8"); e("s_and_b32 s41, %s, 3" % s(sJ)); e("s_lshl_b32 s41, s41, 2")
    e("s_add_u32 s43, s43, s41"); e("s_lshr_b32 s41, %s, 4" % s(sJ)); e("s_add_u32 s41, s41, 16"); e("s_lshl_b32 s41, s41, 17"); e("s_add_u32 s43, s43, s41")
    e("buffer_store_dwordx4 %s, %s, %s, s42 offen sc1" % (v(Qr, 4), v(T + 6), s(sO, 4)))
    e("s_mov_b32 exec_lo, 0xffff"); e("s_mov_b32 exec_hi, 0xffff")
    e("buffer_store_dword %s, %s, %s, s43 offen sc1" % (v(Qr + 4), v(T + 5), s(sO, 4)))
    e("s_mov_b64 exec, -1")
    stamp(7)
    e("v_and_b32 v249, 1, %s" % v(vL)); e("v_lshlrev_b32 v249, 4, v249"); e("v_lshrrev_b32 v248, 1, %s" % v(vL))
    e("v_lshl_add_u32 v249, v248, %d, v249" % JSH)
    e("s_cmp_lg_u32 %s, %d" % (s(sWave), PW1)); e("s_cbranch_scc1 K1_NPL"); e("s_cmp_eq_u32 %s, 7" % s(sKs)); e("s_cbranch_scc1 K1_NPL")
    poll("K1_PH", 0, 1)
    e("s_branch K1_POX")
    lab("K1_NPL")
    e("s_waitcnt vmcnt(0)")
    flag("s49", 0)
    e("s_cmp_lg_u32 %s, %d" % (s(sWave), PW1)); e("s_cbranch_scc1 K1_POX")
    poll("K1_PO", 1, 0)
    e("s_mov_b32 s2, s50")
    e("s_barrier")
    stamp(8)
    SOFF[0] = 8
    next(k2)
    stamp_out(1, 16, 30)
    lab("K1_END")
    e("s_endpgm")
    lab("K1_LAST")

K2_STAGE = 96 * 288; K2_NS = 4; K2_LDS = K2_STAGE * K2_NS
OWN = 12288; QL = 24576; PW = int(os.environ.get('PW', '7'))
def reduce_vals(src, nd, F, order=tuple(range(8)), pre=None, mid=None):
    for k in order:
        if pre: pre(k)
        for r in range(nd):
            x = src(k, r)
            if k == order[0] or k == 7:
                o = F + (8 if k == 7 else 0) + 2 * r
                e("v_lshlrev_b32 %s, 16, %s" % (v(o), v(x))); e("v_and_b32 %s, s46, %s" % (v(o + 1), v(x)))
            else:
                tp = F + 16 + 2 * (r & 1)
                e("v_lshlrev_b32 %s, 16, %s" % (v(tp), v(x))); e("v_and_b32 %s, s46, %s" % (v(tp + 1), v(x)))
                e("v_pk_add_f32 %s, %s, %s" % (v(F + 2 * r, 2), v(F + 2 * r, 2), v(tp, 2)))
    if mid: mid()
    for r in range(2 * nd):
        e("v_mul_f32 %s, s45, %s" % (v(F + 16 + r), v(F + r)))
        e("v_exp_f32 %s, %s" % (v(F + 16 + r), v(F + 16 + r)))
        e("v_mul_f32 %s, %s, %s" % (v(F + r), v(F + r), v(F + 8 + r)))
        e("v_add_f32 %s, 1.0, %s" % (v(F + 16 + r), v(F + 16 + r)))
        e("v_rcp_f32 %s, %s" % (v(F + 16 + r), v(F + 16 + r)))
    nop(1)
    for r in range(2 * nd): e("v_mul_f32 %s, %s, %s" % (v(F + r), v(F + r), v(F + 16 + r)))
    for r in range(nd): e("v_cvt_pk_bf16_f32 %s, %s, %s" % (v(F + 24 + r), v(F + 2 * r), v(F + 2 * r + 1)))
def k2_tail(sP, sX, sFl, sWave, sKs, sMt, sNt, vL, vG, vM, vTid, T):
    sOut = 20; YS = 304
    srd(sX, 52, 2048 * 1152); srd(sOut, 60, 2048 * 1152); srd(sFl, 54, 256 << RSH, FLAG_OFF + (512 << JSH))
    e("s_lshl_b32 s40, %s, 3" % s(sMt)); e("s_add_u32 s40, s40, %s" % s(sKs))
    e("s_mul_i32 s41, s40, %d" % (32 * 1152)); e("s_mul_i32 s42, %s, 288" % s(sNt)); e("s_add_u32 s41, s41, s42")
    vXA, vYA, XR = 72, 74, 76
    for n in range(2):
        e("v_add_u32 %s, %d, %s" % (v(T + 1), 512 * n, v(vTid)))
        divc(T + 2, T + 3, T + 1, 18, 3641, 16)
        e("v_mul_u32_u24 %s, 1152, %s" % (v(T + 4), v(T + 2))); e("v_lshl_add_u32 %s, %s, 4, %s" % (v(T + 4), v(T + 3), v(T + 4)))
        e("v_add_u32 %s, s41, %s" % (v(vXA + n), v(T + 4)))
        e("v_mul_u32_u24 %s, %d, %s" % (v(T + 4), YS, v(T + 2))); e("v_lshl_add_u32 %s, %s, 4, %s" % (v(vYA + n), v(T + 3), v(T + 4)))
    e("s_cmp_eq_u32 %s, 0" % s(sWave)); e("s_cselect_b32 s47, 0, 0x40000000")
    e("buffer_load_dwordx4 %s, %s, %s, 0 offen" % (v(XR, 4), v(vXA), s(sX, 4)))
    e("buffer_load_dwordx4 %s, %s, %s, s47 offen" % (v(XR + 4, 4), v(vXA + 1), s(sX, 4)))
    e("s_mul_i32 s40, s40, 36"); e("s_mul_i32 s41, %s, 9" % s(sNt)); e("s_add_u32 s40, s40, s41")
    e("s_add_u32 s41, s40, %s" % s(sWave)); e("s_lshl_b32 s41, s41, 10"); e("s_add_u32 s40, s40, 8"); e("s_lshl_b32 s40, s40, 10")
    e("v_add_u32 %s, s41, %s" % (v(T + 1), v(T)))
    e("v_add_u32 %s, s40, %s" % (v(T + 2), v(T)))
    e("v_mul_u32_u24 %s, %d, %s" % (v(T + 3), YS, v(vM))); e("v_lshl_add_u32 %s, %s, 3, %s" % (v(T + 3), v(vG), v(T + 3)))
    e("s_lshr_b32 s40, %s, 1" % s(sWave)); e("s_mul_i32 s40, s40, %d" % (16 * YS)); e("s_and_b32 s41, %s, 1" % s(sWave)); e("s_lshl_b32 s41, s41, 2")
    e("s_add_u32 s40, s40, s41"); e("v_add_u32 %s, s40, %s" % (v(T + 4), v(T + 3)))
    e("s_lshl_b32 s40, %s, 5" % s(sWave)); e("v_add_u32 %s, s40, %s" % (v(T + 3), v(T + 3)))
    for k in range(8):
        e("s_mov_b32 s%d, %d" % (32 + k, k * SLAB)); e("s_cmp_eq_u32 %s, %d" % (s(sKs), k)); e("s_cmov_b32 s%d, 0x40000000" % (32 + k))
    e("s_mul_i32 s43, %s, %d" % (s(sWave), SLAB)); e("s_cmp_eq_u32 %s, %s" % (s(sWave), s(sKs))); e("s_cmov_b32 s43, 0x40000000"); e("s_cselect_b32 s44, -1, 0")
    e("s_cmp_eq_u32 %s, 7" % s(sKs)); e("s_cselect_b32 s49, -1, 0"); e("s_cselect_b32 s48, 0, -1")
    e("s_lshl_b32 s40, %s, 10" % s(sWave)); e("v_add_u32 %s, s40, %s" % (v(T + 10), v(T)))
    e("s_lshl_b32 s40, %s, 2" % s(sWave)); e("v_add_u32 %s, s40, %s" % (v(T + 11), v(T)))
    e("s_mov_b32 s45, 0x%08x" % f2u(-1.4426950408889634)); e("s_mov_b32 s46, 0xffff0000")
    e("s_lshr_b32 s40, s2, 3"); e("s_lshl_b32 s40, s40, %d" % (RSH + 3))
    e("v_and_b32 %s, 7, %s" % (v(T + 5), v(vL))); e("v_lshlrev_b32 %s, 2, %s" % (v(T + 5), v(T + 5))); e("v_mov_b32 %s, 1" % v(T + 6))
    e("s_lshl_b32 s41, %s, %d" % (s(sWave), RSH)); e("s_add_u32 s41, s41, s40"); e("s_lshl_b32 s42, %s, 2" % s(sKs)); e("s_add_u32 s41, s41, s42")
    e("s_lshl_b32 s42, %s, %d" % (s(sKs), RSH)); e("s_add_u32 s40, s40, s42")
    e("s_waitcnt vmcnt(2)")
    stamp(5)
    e("s_mov_b64 exec, 1")
    e("buffer_store_dword %s, %s, %s, s41 offen sc1" % (v(T + 6), v(T + 5), s(sFl, 4)))
    e("s_mov_b64 exec, -1"); e("s_mov_b32 s42, 0"); e("s_mov_b32 s31, 0")
    e("s_cmp_lg_u32 %s, %d" % (s(sWave), PW)); e("s_cbranch_scc1 K2_SPIN")
    e("s_mov_b64 exec, 0xff")
    R = (T + 7, T + 14, T + 15)
    def ld(r): e("buffer_load_dword %s, %s, %s, s40 offen sc1" % (v(r), v(T + 5), s(sFl, 4)))
    if PP: ld(R[0]); e("s_sleep %d" % SLR); ld(R[1])
    lab("K2_POLL")
    e("s_add_u32 s42, s42, 1")
    for i in range(3):
        e("s_sleep %d" % SLR); ld(R[(i + 2) % 3])
        e("s_waitcnt vmcnt(%d)" % (2 if PP else 0))
        e("v_cmp_eq_u32 vcc, 1, %s" % v(R[i if PP else (i + 2) % 3])); e("s_nop 3")
        e("s_cmp_gt_u32 s42, 20000"); e("s_cselect_b32 s41, 0xff, vcc_lo")
        e("v_mov_b32 %s, s41" % v(T + 13)); e("ds_write_b32 %s, %s" % (v(T + 12), v(T + 13)))
        e("s_cmp_eq_u32 s41, 0xff"); e("s_cbranch_scc1 K2_POLLX")
    e("s_branch K2_POLL")
    lab("K2_POLLX")
    e("s_mov_b64 exec, -1"); e("s_mov_b32 s42, 0xff"); e("s_branch K2_ISSUE")
    lab("K2_SPIN")
    e("s_sleep 1")
    e("ds_read_b32 %s, %s" % (v(T + 13), v(T + 12))); e("s_waitcnt lgkmcnt(0)")
    e("v_readfirstlane_b32 s42, %s" % v(T + 13)); e("s_nop 3")
    e("s_cmp_eq_u32 s42, s31"); e("s_cbranch_scc1 K2_SPIN")
    lab("K2_ISSUE")
    e("s_andn2_b32 s41, s42, s31"); e("s_or_b32 s31, s31, s42")
    e("s_bitcmp1_b32 s41, %s" % s(sWave)); e("s_cbranch_scc0 K2_LT")
    e("buffer_load_dwordx4 v[120:123], %s, %s, s43 offen sc1" % (v(T + 2), s(sP, 4)))
    lab("K2_LT")
    for k in range(8):
        e("s_bitcmp1_b32 s41, %d" % k); e("s_cbranch_scc0 K2_L%d" % k)
        e("buffer_load_dwordx4 %s, %s, %s, s%d offen sc1" % (v(4 * k, 4), v(T + 1), s(sP, 4), 32 + k))
        lab("K2_L%d" % k)
    e("s_cmp_eq_u32 s31, 0xff"); e("s_cbranch_scc0 K2_SPIN")
    e("s_waitcnt lgkmcnt(0)"); e("s_barrier")
    stamp(6)
    e("ds_read_b128 v[116:119], %s offset:%d" % (v(T + 10), OWN))
    e("ds_read_b128 v[124:127], %s offset:%d" % (v(T), OWN + 8192))
    e("s_waitcnt vmcnt(0) lgkmcnt(0)")
    for r in range(4): e("v_and_or_b32 v%d, v%d, s44, v%d" % (120 + r, 124 + r, 120 + r))
    e("ds_write_b128 %s, v[120:123] offset:%d" % (v(T + 10), QL))
    for r in range(4): e("v_and_b32 v%d, s48, v%d" % (124 + r, 116 + r))
    def pre(k):
        if k == 7:
            for r in range(4): e("v_and_or_b32 v%d, v%d, s49, v%d" % (28 + r, 116 + r, 28 + r))
    def mid():
        stamp(1)
        e("s_waitcnt lgkmcnt(0)"); e("s_barrier")
        stamp(2)
        e("s_cmp_gt_u32 %s, 3" % s(sWave)); e("s_cbranch_scc1 K2_NOQ0")
        for k in range(8): e("ds_read_b32 %s, %s offset:%d" % (v(32 + k), v(T + 11), QL + k * 1024))
        lab("K2_NOQ0")
    reduce_vals(lambda k, r: (4 * k + r) if k < 8 else 124 + r, 4, 40, (8, 0, 1, 2, 3, 4, 5, 6, 7), pre, mid)
    e("ds_write_b64 %s, %s" % (v(T + 3), v(64, 2)))
    e("ds_write_b64 %s, %s offset:%d" % (v(T + 3), v(66, 2), 16 * YS))
    e("s_cmp_gt_u32 %s, 3" % s(sWave)); e("s_cbranch_scc1 K2_NOQ")
    e("s_waitcnt lgkmcnt(2)")
    reduce_vals(lambda k, r: 32 + k, 1, 88)
    e("ds_write_b32 %s, %s offset:256" % (v(T + 4), v(88 + 24)))
    lab("K2_NOQ")
    e("s_waitcnt lgkmcnt(0)"); e("s_barrier")
    stamp(3)
    def fin(n):
        e("ds_read_b128 %s, %s" % (v(0, 4), v(vYA + n)))
        e("s_waitcnt lgkmcnt(0)")
        for r in range(4):
            x = XR + 4 * n + r
            e("v_lshlrev_b32 v8, 16, %s" % v(r)); e("v_and_b32 v9, s46, %s" % v(r))
            e("v_lshlrev_b32 v10, 16, %s" % v(x)); e("v_and_b32 v11, s46, %s" % v(x))
            e("v_pk_add_f32 v[8:9], v[8:9], v[10:11]")
            e("v_cvt_pk_bf16_f32 %s, v8, v9" % v(12 + 4 * n + r))
        e("buffer_store_dwordx4 %s, %s, %s, 0 offen" % (v(12 + 4 * n, 4), v(vXA + n), s(sOut, 4)))
    fin(0)
    e("s_cmp_lg_u32 %s, 0" % s(sWave)); e("s_cbranch_scc1 K2_FIN")
    fin(1)
    lab("K2_FIN")
def gen_k2(vL, vG, vM, vTid, k0hook):
    P = Loop(); P.name = "K2"; P.STAGE = K2_STAGE; P.NS = K2_NS; P.D = 6; P.AR = K2_AR; P.RW = 9
    P.asc = " sc1"; P.early = 1; P.slot0 = 1; P.RB = K1_LDS - K2_LDS
    ACT = 72; WR = 144; vMain = 180; vTail = 188; vD = 189; vDT = 192; vA0, vA1 = 193, 194; T = 200
    acc = lambda i, u: (i * 2 + u) * 4
    P.acc = acc; P.act = lambda st, f: ACT + (st * 2 + f) * 4; P.WR = WR; P.nacc = 72
    sW, sA, sP = 8, 12, 16
    sWave, sKs, sMt, sNt = 28, 51, 30, 46
    P.sCnt, P.sDelta, P.sRd, P.sWr, P.sT, P.sOffA, P.sAct = 31, 32, 33, 34, 35, 36, sA
    sOffW, sBM, sBT = 37, 39, 45
    P.k0hook = k0hook; P.sKs = sKs
    TAILB = 96 * 256
    e("s_and_b32 %s, s2, 7" % s(sKs)); e("s_bfe_u32 %s, s2, 0x20003" % s(sNt))
    w_setup(vL, T, sWave, sNt, 1152, vD, vDT, vMain, vTail, TAILB, 1)
    Lsave = len(L)
    w_setup_rd(vL, T, vMain, vTail, TAILB)
    e("s_lshl_b32 s40, %s, 4" % s(sMt)); e("s_lshl_b32 s41, %s, 1" % s(sWave)); e("s_add_u32 s41, s41, s40")
    e("s_lshl_b32 s41, s41, 10")
    e("v_lshlrev_b32 %s, 4, %s" % (v(T), v(vL)))
    e("v_add_u32 %s, s41, %s" % (v(vA0), v(T)))
    late = L[Lsave:]; del L[Lsave:]
    P.late_setup = lambda: L.extend(late)
    e("s_mul_i32 %s, %s, 3072" % (s(sBM), s(sWave))); e("s_add_u32 %s, %s, %d" % (s(sBM), s(sBM), P.RB))
    e("s_mul_i32 %s, %s, 384" % (s(sBT), s(sWave))); e("s_add_u32 %s, %s, %d" % (s(sBT), s(sBT), TAILB + P.RB))
    srd(sP, 54, 8 * SLAB, P_OFF)
    e("s_cmp_eq_u32 %s, 7" % s(sKs)); e("s_cbranch_scc1 K2_SJOB")
    srd(sW, 58, 4608 * 1152); srd(sA, 54, H_BYTES, H_OFF)
    e("s_mul_i32 %s, %s, %d" % (s(sOffW), s(sKs), 21 * 32 * 1152)); e("s_mul_i32 %s, %s, %d" % (s(P.sOffA), s(sKs), 21 * 131072))
    e("s_add_u32 s40, %s, %d" % (s(sOffW), 7 * 96 * 1152)); e("s_min_u32 %s, s40, %s" % (s(sW + 2), s(sW + 2)))
    e("s_branch K2_GO")
    lab("K2_SJOB")
    srd(sW, 54, WO_BYTES, WO_OFF); srd(sA, 54, O_BYTES, O_OFF)
    e("s_mov_b32 %s, 0x%x" % (s(sOffW), (1 << 32) - 96 * 1152)); e("s_mov_b32 %s, 0" % s(P.sOffA))
    lab("K2_GO")
    P.tiles = [(vMain + i, 4096, 8192) for i in range(8)] + [(vTail, 512, 1024)]
    P.dmas = [(vD, sW, sOffW, sBM, 0, 64), (vDT, sW, sOffW, sBT, 0, 24), (vD + 1, sW, sOffW, sBM, 1024, 64), (vD + 2, sW, sOffW, sBM, 2048, 64)]
    P.dsteps = [(sOffW, 96 * 1152)]
    P.vA = [(vA0, 0), (vA0, 1024)]; P.vmpos = [0, 2, 4, 6]; P.dd = [[0, 1], [2], [3]]
    P.extra = lambda q, kk, wr, tag: None
    P.K = 21; P.groups = [[0, 1, 2], [3, 4], [5, 6], [7, 8]]
    def tail_pre(store):
        e("s_lshl_b32 s40, %s, 3" % s(sMt)); e("s_add_u32 s40, s40, %s" % s(sWave)); e("s_mul_i32 s40, s40, 36")
        e("s_mul_i32 s41, %s, 9" % s(sNt)); e("s_add_u32 s40, s40, s41"); e("s_lshl_b32 s40, s40, 10")
        e("s_mul_i32 s41, %s, %d" % (s(sKs), SLAB)); e("s_add_u32 s40, s40, s41")
        e("s_and_b32 s41, %s, 1" % s(sNt)); e("s_lshl_b32 s42, s41, 10"); e("s_add_u32 s42, s42, s40"); e("s_add_u32 s43, s42, 4096")
        e("s_xor_b32 s41, s41, 1"); e("s_lshl_b32 s41, s41, 13"); e("s_add_u32 s41, s41, s40")
        e("v_lshlrev_b32 %s, 4, %s" % (v(T), v(vL)))
        e("v_mov_b32 %s, 40960" % v(T + 12)); e("v_mov_b32 %s, 0" % v(T + 13)); e("ds_write_b32 %s, %s" % (v(T + 12), v(T + 13)))
        e("s_sub_u32 s44, s42, s40"); e("v_add_u32 %s, s44, %s" % (v(T + 8), v(T)))
        e("s_sub_u32 s44, s41, s40"); e("v_add_u32 %s, s44, %s" % (v(T + 9), v(T)))
        e("s_cmp_eq_u32 %s, %s" % (s(sWave), s(sKs)))
        for x in (41, 42, 43): e("s_cmov_b32 s%d, 0x40000000" % x)
    def fin(g, store):
        for i in g:
            a0 = acc(i, 0)
            for r in range(4): e("v_cvt_pk_bf16_f32 %s, %s, %s" % (v(a0 + r), v(a0 + 2 * r), v(a0 + 2 * r + 1)))
            store("buffer_store_dwordx4 %s, %s, %s, %s offen offset:%d" % (v(a0, 4), v(T), s(sP, 4), ("s42", "s43", "s41")[i >> 2], (i & 3) * 1024) + (" sc1" if FUSE3 else PSC))
        e("s_cmp_lg_u32 %s, %s" % (s(sWave), s(sKs))); e("s_cbranch_scc1 K2_OWN%d" % g[0])
        for i in g: e("ds_write_b128 %s, %s offset:%d" % (v(T + 8 + (i >> 3)), v(acc(i, 0), 4), OWN + (i & 7) * 1024))
        lab("K2_OWN%d" % g[0])
    P.tail_pre = tail_pre; P.fin = fin
    ml = mainloop(P)
    next(ml)
    yield
    next(ml)
    stamp(4)
    k2_tail(sP, sW, sA, sWave, sKs, sMt, sNt, vL, vG, vM, vTid, T)
    yield

def gen_k3():
    sX, sP, sOut = 8, 12, 16
    kstart("k3_kernel")
    e("s_cmp_ge_u32 s2, 192"); e("s_cbranch_scc1 K3_END"); stamp_init()
    e("s_load_dwordx2 s[48:49], s[0:1], 0"); e("s_load_dwordx2 s[50:51], s[0:1], 48"); e("s_load_dwordx2 s[54:55], s[0:1], 64")
    e("v_and_b32 v1, 63, v0"); e("v_lshrrev_b32 v2, 6, v0")
    e("s_mul_i32 s40, s2, 12288")
    e("v_mul_u32_u24 v5, 3072, v2"); e("v_lshl_add_u32 v5, v1, 4, v5"); e("v_add_u32 v5, s40, v5")
    e("v_and_b32 v6, 15, v1"); e("v_mul_u32_u24 v6, 400, v6"); e("v_mul_u32_u24 v7, 96, v2"); e("v_lshrrev_b32 v8, 4, v1")
    e("v_lshl_add_u32 v7, v8, 3, v7"); e("v_add_u32 v6, v6, v7")
    e("s_mul_hi_u32 s41, s2, 1431655766"); e("s_mul_i32 s42, s41, 3"); e("s_sub_u32 s42, s2, s42")
    e("s_mul_i32 s41, s41, %d" % (32 * 1152)); e("s_mul_i32 s42, s42, 384"); e("s_add_u32 s41, s41, s42")
    for n in range(3):
        e("v_add_u32 v9, %d, v0" % (256 * n))
        divc(10, 11, 9, 24, 2731, 16)
        e("v_mul_u32_u24 v9, 1152, v10"); e("v_lshl_add_u32 v9, v11, 4, v9"); e("v_add_u32 %s, s41, v9" % v(12 + n))
        e("v_mul_u32_u24 v9, 400, v10"); e("v_lshl_add_u32 %s, v11, 4, v9" % v(15 + n))
    e("s_waitcnt lgkmcnt(0)")
    srd(sX, 48, 2048 * 1152); srd(sOut, 50, 2048 * 1152); srd(sP, 54, 8 * SLAB, P_OFF)
    for k in range(8): e("s_mov_b32 s%d, %d" % (32 + k, k * SLAB))
    B = 32
    for t in range(3):
        for k in range(8):
            e("buffer_load_dwordx4 %s, v5, %s, s%d offen offset:%d" % (v(B + (t * 8 + k) * 4, 4), s(sP, 4), 32 + k, t * 1024))
    XR = 128
    for n in range(3): e("buffer_load_dwordx4 %s, %s, %s, 0 offen" % (v(XR + 4 * n, 4), v(12 + n), s(sX, 4)))
    e("s_mov_b32 s45, 0x%08x" % f2u(-1.4426950408889634)); e("s_mov_b32 s46, 0xffff0000")
    F = 140
    for t in range(3):
        b = B + t * 32
        for k in range(8):
            e("s_waitcnt vmcnt(%d)" % (26 - (t * 8 + k)))
            for r in range(4):
                src = b + k * 4 + r
                if k == 0:
                    e("v_lshlrev_b32 %s, 16, %s" % (v(F + 2 * r), v(src))); e("v_and_b32 %s, s46, %s" % (v(F + 2 * r + 1), v(src)))
                elif k < 7:
                    e("v_lshlrev_b32 v20, 16, %s" % v(src)); e("v_and_b32 v21, s46, %s" % v(src))
                    e("v_add_f32 %s, %s, v20" % (v(F + 2 * r), v(F + 2 * r))); e("v_add_f32 %s, %s, v21" % (v(F + 2 * r + 1), v(F + 2 * r + 1)))
                else:
                    e("v_lshlrev_b32 %s, 16, %s" % (v(F + 8 + 2 * r), v(src))); e("v_and_b32 %s, s46, %s" % (v(F + 8 + 2 * r + 1), v(src)))
        for r in range(8):
            e("v_mul_f32 %s, s45, %s" % (v(F + 16 + r), v(F + r)))
            e("v_exp_f32 %s, %s" % (v(F + 16 + r), v(F + 16 + r)))
            e("v_mul_f32 %s, %s, %s" % (v(F + r), v(F + r), v(F + 8 + r)))
            e("v_add_f32 %s, 1.0, %s" % (v(F + 16 + r), v(F + 16 + r)))
            e("v_rcp_f32 %s, %s" % (v(F + 16 + r), v(F + 16 + r)))
        nop(1)
        for r in range(8): e("v_mul_f32 %s, %s, %s" % (v(F + r), v(F + r), v(F + 16 + r)))
        for r in range(4): e("v_cvt_pk_bf16_f32 %s, %s, %s" % (v(b + r), v(F + 2 * r), v(F + 2 * r + 1)))
        e("ds_write_b64 v6, %s offset:%d" % (v(b, 2), t * 32))
        e("ds_write_b64 v6, %s offset:%d" % (v(b + 2, 2), t * 32 + 6400))
    e("s_waitcnt lgkmcnt(0)"); e("s_barrier")
    for n in range(3): e("ds_read_b128 %s, %s" % (v(B + 4 * n, 4), v(15 + n)))
    e("s_waitcnt vmcnt(0)")
    for n in range(3):
        e("s_waitcnt lgkmcnt(%d)" % (2 - n))
        for r in range(4):
            p = B + 4 * n + r; x = XR + 4 * n + r
            e("v_lshlrev_b32 v20, 16, %s" % v(p)); e("v_and_b32 v21, s46, %s" % v(p))
            e("v_lshlrev_b32 v22, 16, %s" % v(x)); e("v_and_b32 v23, s46, %s" % v(x))
            e("v_add_f32 v20, v20, v22"); e("v_add_f32 v21, v21, v23")
            e("v_cvt_pk_bf16_f32 %s, v20, v21" % v(p))
        e("buffer_store_dwordx4 %s, %s, %s, 0 offen" % (v(B + 4 * n, 4), v(12 + n), s(sOut, 4)))
    stamp_out(3, 2, 2)
    lab("K3_END")
    e("s_endpgm")

def kd(name, vg):
    return [".amdhsa_kernel %s" % name, "  .amdhsa_next_free_vgpr %d" % vg, "  .amdhsa_next_free_sgpr %d" % (96 if INSTR else 64),
            "  .amdhsa_accum_offset %d" % ((vg + 3) // 4 * 4), "  .amdhsa_group_segment_fixed_size 0", "  .amdhsa_kernarg_size 72",
            "  .amdhsa_user_sgpr_count 2", "  .amdhsa_user_sgpr_kernarg_segment_ptr 1",
            "  .amdhsa_system_sgpr_workgroup_id_x 1", "  .amdhsa_float_denorm_mode_32 3", ".end_amdhsa_kernel"]
hdr = ["; generated: LN+repack | QKV/FFN1+attention | FFN2 split-K + wo | reduce+epilogue",
       "; @launch kernel=k0_kernel grid=(256,1,1) block=(256,1,1) lds=0",
       "; @launch kernel=k1_kernel grid=(256,1,1) block=(512,1,1) lds=%d" % K1_LDS,
       ] + ([] if FUSE3 else ["; @launch kernel=k3_kernel grid=(192,1,1) block=(256,1,1) lds=12800"]) + [
       '.amdgcn_target "amdgcn-amd-amdhsa--gfx950"', ".text"]
gen_k0(); gen_k1()
tail = ['.section .rodata,"a"']
for n, vg in (("k0_kernel", 80), ("k1_kernel", 256), ("k2_kernel", 216), ("k3_kernel", 168))[:2]:
    tail += [".p2align 6"] + kd(n, vg)
open(sys.argv[1] if len(sys.argv) > 1 else OUT, "w").write("\n".join(hdr + L + tail) + "\n")
print("ok", len(L))
```
